```python
import torch

def _softmax(x, axis=-1):
    return torch.softmax(x, dim=axis)
def _gelu(x):
    return torch.nn.functional.gelu(x, approximate="tanh")
def _silu(x):
    return torch.nn.functional.silu(x)
def _sigmoid(x):
    return torch.sigmoid(x)
def _layernorm(x, axis=-1, eps=1e-5):
    m = x.mean(dim=axis, keepdim=True)
    v = x.var(dim=axis, keepdim=True, unbiased=False)
    return (x - m) / torch.sqrt(v + eps)
def _scatter_add(tgt, idx, src, axis=0):
    return tgt.clone().index_add_(axis, idx, src)
def _segment_sum(src, seg, n):
    out = torch.zeros((n,) + src.shape[1:], dtype=src.dtype)
    return out.index_add_(0, seg, src)
def _pad(x, pw):
    flat = tuple(v for pair in reversed(pw) for v in pair)
    return torch.nn.functional.pad(x, flat)

kernel_name = 'concat_heads__mha_block_cached__sliding_block_cached__decode'

def setup_inputs():

    _w = (lambda a: (lambda t: t.to(torch.bfloat16) if t.is_floating_point() else t)(torch.as_tensor(a)))
    def _A_setup():
        B, Sq, D = 1, 1, 512
        H, Sk, Dh = 32, 32768, 128
        return {
            "x": _w((lambda *s: torch.randn(*s, dtype=torch.bfloat16) * 0.8)(B, Sq, D)),
            "k_cache": _w((lambda *s: torch.randn(*s, dtype=torch.bfloat16) * 1.6)(B, H, Sk, Dh)),
            "v_cache": _w((lambda *s: torch.randn(*s, dtype=torch.bfloat16) * 0.2)(B, H, Sk, Dh)),
            "wq": _w((lambda *s: torch.randn(*s, dtype=torch.bfloat16) * 1.6)(D, H * Dh) * (D ** -0.5)),
            "wo": _w((lambda *s: torch.randn(*s, dtype=torch.bfloat16) * 0.2)(H * Dh, D) * ((H * Dh) ** -0.5)),
        }
    _A_in = _A_setup()

    def _B_setup():
        B, Sq, D = 1, 1, 512
        Hq, Hkv, Sk, Dh = 32, 8, 32768, 128
        assert Hq % Hkv == 0, (Hq, Hkv)
        return {
            "x": _w((lambda *s: torch.randn(*s, dtype=torch.bfloat16) * 0.8)(B, Sq, D)),
            "k_cache": _w((lambda *s: torch.randn(*s, dtype=torch.bfloat16) * 1.6)(B, Hkv, Sk, Dh)),
            "v_cache": _w((lambda *s: torch.randn(*s, dtype=torch.bfloat16) * 0.2)(B, Hkv, Sk, Dh)),
            "wq": _w((lambda *s: torch.randn(*s, dtype=torch.bfloat16) * 1.6)(D, Hq * Dh) * (D ** -0.5)),
            "wo": _w((lambda *s: torch.randn(*s, dtype=torch.bfloat16) * 0.2)(Hq * Dh, D) * ((Hq * Dh) ** -0.5)),
        }
    _B_in = _B_setup()

    return {
        "A_x": _A_in["x"],
        "A_k_cache": _A_in["k_cache"],
        "A_v_cache": _A_in["v_cache"],
        "A_wq": _A_in["wq"],
        "A_wo": _A_in["wo"],
        "B_x": _B_in["x"],
        "B_k_cache": _B_in["k_cache"],
        "B_v_cache": _B_in["v_cache"],
        "B_wq": _B_in["wq"],
        "B_wo": _B_in["wo"],
    }

def reference(A_x, A_k_cache, A_v_cache, A_wq, A_wo, B_x, B_k_cache, B_v_cache, B_wq, B_wo):
    def _A_ref(x, k_cache, v_cache, wq, wo):
        B, Sq, D = x.shape
        H, Dh = 32, 128
        q = (lambda x, *d: x.permute(*d))((x @ wq).reshape(B, Sq, H, Dh), 0, 2, 1, 3)
        scores = torch.einsum("bhqd,bhkd->bhqk", q, k_cache) * (Dh ** -0.5)
        p = _softmax(scores, axis=-1)
        o = torch.einsum("bhqk,bhkd->bhqd", p, v_cache)
        return (lambda x, *d: x.permute(*d))(o, 0, 2, 1, 3).reshape(B, Sq, H * Dh) @ wo

    def _B_ref(x, k_cache, v_cache, wq, wo):
        B, Sq, D = x.shape
        Hq, Dh = 32, 128
        Hkv, Sk = k_cache.shape[1], k_cache.shape[2]
        W = min(4096, max(256, Sk // 4))
        rep = Hq // Hkv
        q = (lambda x, *d: x.permute(*d))((x @ wq).reshape(B, Sq, Hq, Dh), 0, 2, 1, 3)
        k = (lambda x, n, axis: torch.repeat_interleave(x, n, dim=axis))(k_cache[:, :, Sk - W:, :], rep, axis=1)
        v = (lambda x, n, axis: torch.repeat_interleave(x, n, dim=axis))(v_cache[:, :, Sk - W:, :], rep, axis=1)
        scores = torch.einsum("bhqd,bhkd->bhqk", q, k) * (Dh ** -0.5)
        p = _softmax(scores, axis=-1)
        o = torch.einsum("bhqk,bhkd->bhqd", p, v)
        return (lambda x, *d: x.permute(*d))(o, 0, 2, 1, 3).reshape(B, Sq, Hq * Dh) @ wo

    a = _A_ref(A_x, A_k_cache, A_v_cache, A_wq, A_wo)
    b = _B_ref(B_x, B_k_cache, B_v_cache, B_wq, B_wo)
    return torch.concatenate([a, b], axis=-1)
```

```python
import sys, struct

KNAME = "concat_heads__mha_block_cached__sliding_block_cached__decode_kernel"

class P:
    NBUF = 2
    NBUFB = 2
    J = 54
    NB = 32
    NA = 256
    MIMIC = 1
    STAMP = 0
    SLEEP = 1
    SPIN = 0x40000

for a in sys.argv[2:]:
    k, v = a.split("=")
    setattr(P, k, int(v))

L = []
def e(s): L.append("    " + s)
def lab(s): L.append(s + ":")
def cm(s): L.append("    ; " + s)
def nop(n):
    while n > 0:
        k = min(n, 16)
        e(f"s_nop {k-1}")
        n -= k
def f32(x): return "0x%08x" % struct.unpack("<I", struct.pack("<f", x))[0]
def vr(b, n): return f"v[{b}:{b+n-1}]"
def sr(b, n): return f"s[{b}:{b+n-1}]"
DPPM = "row_mask:0xf bank_mask:0xf"

WS_CTR = 0x0
WS_QA = 0x10000
WS_PA = 0x80000
WS_YA = 0x100000
WS_QB = 0x180000
WS_PB = 0x1A0000
WS_YB = 0x200000
WS_STAMP = 0x300000
WS_SIZE = 0x400000
OOB = 0x40000000

sK, sV, sWS, sW, sX = 4, 8, 12, 16, 20
pAx, pAk, pAv, pAwq, pAwo, pBx, pBk, pBv, pBwq, pBwo, pOut, pDbg, pWs = [24 + 2 * i for i in range(13)]
sWave = 50; sH = 51; sS = 52; sT0 = 53; sT1 = 54; sNonce = 55; sJ = 56; sStat = 57
sScale = 58; sLog2e = 59; sOff = 60
sId = 68; sT2 = 69; sTm = 70
sDupLo = 74; sDupHi = 75; sCnt = 76; sMask = 78
sStampA = 80

vLane, vOffK, vOffV, vCtr = 0, 1, 2, 3
vN, vG = 4, 5
vMask = 6
vM, vML, vL = 10, 11, 12
vT = 13
vTag = 20
vZ = 21
vAop = 22
vS = 34
vO = 50
vQ = 34 + 4
A_vS, A_vQ, A_vO, A_vClaim = 34, 38, 54, 58
B_vS, B_vQ, B_vO = 34, 50, 54
vBuf = 64

LDS_Q = 0
LDS_NONCE = 1024
LDS_O = 2048
LDS_ML = 10240
LDS_OB = 10496
LDS_BYTES = 12288

def srd(dst, ptr, nrec, add_lo=None):
    if add_lo is None:
        e(f"s_mov_b32 s{dst}, s{ptr}")
        e(f"s_mov_b32 s{dst+1}, s{ptr+1}")
    else:
        e(f"s_add_u32 s{dst}, s{ptr}, s{add_lo}")
        e(f"s_addc_u32 s{dst+1}, s{ptr+1}, 0")
    e(f"s_mov_b32 s{dst+2}, {hex(nrec)}")
    e(f"s_mov_b32 s{dst+3}, 0x00020000")

def stamp(idx):
    if P.STAMP:
        e(f"s_memrealtime s[{sStampA+2*idx}:{sStampA+2*idx+1}]")

def allreduce_rows(op, x, a, b):
    e(f"v_mov_b32 v{a}, v{x}")
    e(f"v_mov_b32 v{b}, v{x}")
    nop(2)
    e(f"v_permlane16_swap_b32 v{a}, v{b}")
    nop(1)
    e(f"{op} v{x}, v{a}, v{b}")
    e(f"v_mov_b32 v{a}, v{x}")
    e(f"v_mov_b32 v{b}, v{x}")
    nop(2)
    e(f"v_permlane32_swap_b32 v{a}, v{b}")
    nop(1)
    e(f"{op} v{x}, v{a}, v{b}")

def ror_reduce(op, x, rors):
    for r in rors:
        nop(2)
        e(f"{op}_dpp v{x}, v{x}, v{x} row_ror:{r} {DPPM}")

def tag_check(tags, t0, t1):
    tags = list(tags)
    if len(tags) == 1:
        e(f"v_cmp_ne_u32 vcc, s{sNonce}, v{tags[0]}")
        return
    e(f"v_min_u32 v{t0}, v{tags[0]}, v{tags[1]}")
    e(f"v_max_u32 v{t1}, v{tags[0]}, v{tags[1]}")
    rest = tags[2:]
    while len(rest) >= 2:
        e(f"v_min3_u32 v{t0}, v{t0}, v{rest[0]}, v{rest[1]}")
        e(f"v_max3_u32 v{t1}, v{t1}, v{rest[0]}, v{rest[1]}")
        rest = rest[2:]
    if rest:
        e(f"v_min_u32 v{t0}, v{t0}, v{rest[0]}")
        e(f"v_max_u32 v{t1}, v{t1}, v{rest[0]}")
    e(f"v_cmp_ne_u32 vcc, s{sNonce}, v{t0}")
    e(f"v_cmp_ne_u32 s[{sMask}:{sMask+1}], s{sNonce}, v{t1}")
    e(f"s_or_b64 vcc, vcc, s[{sMask}:{sMask+1}]")

def get_nonce(tag):
    lab(f"NONCE_{tag}")
    e("s_waitcnt vmcnt(0)")
    e(f"v_readfirstlane_b32 s{sNonce}, v{vTag}")
    e(f"s_cmp_lg_u32 s{sNonce}, 0")
    e(f"s_cbranch_scc1 NONCE_OK_{tag}")
    e(f"s_add_u32 s{sCnt}, s{sCnt}, 1")
    e(f"s_cmp_gt_u32 s{sCnt}, {hex(P.SPIN)}")
    e(f"s_cbranch_scc1 NONCE_OK_{tag}")
    e(f"s_sleep {P.SLEEP}")
    e(f"v_mov_b32 v{vT}, 0")
    e(f"buffer_load_dword v{vTag}, v{vT}, {sr(sX,4)}, 0 offen sc1")
    e(f"s_branch NONCE_{tag}")
    lab(f"NONCE_OK_{tag}")

def rowsum_mfma(pp, tt, setidx, breg, acc, first, masks=vMask):
    a = vAop + 4 * setidx
    for i in range(4):
        e(f"v_and_b32_dpp v{a+i}, v{pp}, v{masks+i} row_newbcast:{4*tt} {DPPM}")
    return a

hdr = open("concat_heads__mha_block_cached__sliding_block_cached__decode.s.ref").read().split("; Override launch")[0]
out = hdr
NWG = P.NB + P.NA
out += "; Override launch geometry by editing the next line (default: block=256,\n"
out += f"; @launch grid=({NWG},1,1) block=(256,1,1) lds={LDS_BYTES}\n"
out += '.amdgcn_target "amdgcn-amd-amdhsa--gfx950"\n.text\n'
out += f".globl {KNAME}\n.p2align 8\n.type {KNAME},@function\n{KNAME}:\n"

e(f"s_cmp_ge_u32 s2, {NWG}")
e("s_cbranch_scc1 END")
e("s_load_dwordx16 s[24:39], s[0:1], 0")
e("s_load_dwordx8 s[40:47], s[0:1], 64")
e("s_load_dwordx2 s[48:49], s[0:1], 96")
stamp(0)
e(f"v_lshrrev_b32 v{vT}, 6, v0")
e(f"v_and_b32 v{vLane}, 63, v0")
e(f"v_readfirstlane_b32 s{sWave}, v{vT}")
e(f"v_and_b32 v{vN}, 15, v{vLane}")
e(f"v_lshrrev_b32 v{vG}, 4, v{vLane}")
e(f"v_lshrrev_b32 v{vT}, 2, v{vN}")
e(f"v_lshlrev_b32 v{vOffK}, 8, v{vT}")
e(f"v_lshl_or_b32 v{vOffK}, v{vG}, 6, v{vOffK}")
e(f"v_and_b32 v{vT}, 3, v{vN}")
e(f"v_lshl_or_b32 v{vOffK}, v{vT}, 4, v{vOffK}")
e(f"v_lshlrev_b32 v{vOffV}, 4, v{vLane}")
e(f"v_mov_b32 v{vT}, {hex(OOB)}")
e(f"v_cmp_eq_u32 vcc, 0, v{vLane}")
nop(2)
e(f"v_cndmask_b32 v{vCtr}, v{vT}, 0, vcc")
e(f"v_and_b32 v{vT}, 1, v{vN}")
e(f"v_cmp_eq_u32 vcc, 1, v{vT}")
e(f"v_mov_b32 v{vT+1}, 0xffff")
e(f"v_mov_b32 v{vT+2}, 0xffff0000")
e(f"v_cndmask_b32 v{vT+1}, v{vT+1}, v{vT+2}, vcc")
e(f"v_lshrrev_b32 v{vT}, 1, v{vN}")
for i in range(4):
    e(f"v_cmp_eq_u32 vcc, {i}, v{vT}")
    nop(2)
    e(f"v_cndmask_b32 v{vMask+i}, 0, v{vT+1}, vcc")
e(f"s_mov_b32 s{sScale}, {f32(128 ** -0.5)}")
e(f"s_mov_b32 s{sLog2e}, {f32(1.4426950408889634)}")
e(f"s_mov_b32 s{sCnt}, 0")
e(f"s_mov_b32 s{sDupLo}, 0x01000100")
e(f"s_mov_b32 s{sDupHi}, 0x03020302")
e(f"v_mov_b32 v{vM}, 0xff800000")
e(f"v_mov_b32 v{vML}, 0xff800000")
e(f"v_mov_b32 v{vL}, 0")
e("s_waitcnt lgkmcnt(0)")
srd(sWS, pWs, WS_SIZE)
srd(sX, pDbg, 256)
e("s_cmp_lg_u32 s2, 0")
e("s_cbranch_scc1 NO_NONCE_WRITE")
e(f"s_cmp_lg_u32 s{sWave}, 0")
e("s_cbranch_scc1 NO_NONCE_WRITE")
e(f"s_memrealtime s[{sTm}:{sTm+1}]")
e("s_waitcnt lgkmcnt(0)")
e(f"s_or_b32 s{sT0}, s{sTm}, 1")
e(f"v_mov_b32 v{vT}, s{sT0}")
e(f"buffer_store_dword v{vT}, v{vCtr}, {sr(sX,4)}, 0 offen sc1")
lab("NO_NONCE_WRITE")
e(f"s_cmp_lt_u32 s2, {P.NB}")
e("s_cbranch_scc1 B_PATH")

N = P.NBUF
J = P.J
LIMIT = 0x800000
e(f"s_sub_u32 s{sId}, s2, {P.NB}")
e(f"s_lshr_b32 s{sH}, s{sId}, 3")
e(f"s_and_b32 s{sS}, s{sId}, 7")
e(f"s_lshl_b32 s{sT0}, s{sH}, 23")
srd(sK, pAk, LIMIT, sT0)
srd(sV, pAv, LIMIT, sT0)
e(f"s_lshl_b32 s{sT0}, s{sH}, 8")
e(f"v_add_u32 v{vCtr}, s{sT0}, v{vCtr}")
e(f"s_lshl_b32 s{sT0}, s{sS}, 2")
e(f"s_add_u32 s{sT0}, s{sT0}, s{sWave}")
e(f"s_lshl_b32 s{sStat}, s{sT0}, 12")
e(f"s_mov_b32 s{sJ}, 0")

def A_issueK(b):
    for t in range(4):
        e(f"buffer_load_dwordx4 {vr(vBuf+32*b+4*t,4)}, v{vOffK}, {sr(sK,4)}, s{sOff+b} offen offset:{1024*t} nt")
def A_issueV(b, ts=range(4)):
    for t in ts:
        e(f"buffer_load_dwordx4 {vr(vBuf+32*b+16+4*t,4)}, v{vOffV}, {sr(sV,4)}, s{sOff+b} offen offset:{1024*t} nt")
def A_prefetch():
    for b in range(N):
        e(f"s_mov_b32 s{sOff+b}, s{sStat}")
        e(f"s_add_u32 s{sStat}, s{sStat}, 0x20000")
        A_issueK(b)
        A_issueV(b)
    e(f"s_mov_b32 s{sJ}, {N}")

e(f"s_cmp_lg_u32 s{sWave}, 0")
e("s_cbranch_scc1 A_NONLEADER")
cm("A leader: nonce load, counter init, x, wq loads")
e(f"v_mov_b32 v{vT}, 0")
e(f"buffer_load_dword v{vTag}, v{vT}, {sr(sX,4)}, 0 offen sc1")
e(f"s_cmp_lg_u32 s{sS}, 0")
e("s_cbranch_scc1 A_NOCTR")
e(f"buffer_store_dword v{vT}, v{vCtr}, {sr(sWS,4)}, 0 offen sc1")
lab("A_NOCTR")
srd(sW, pAx, 1024)
e(f"v_lshrrev_b32 v{vT}, 2, v{vN}")
e(f"v_lshlrev_b32 v{vT}, 3, v{vT}")
e(f"v_lshl_or_b32 v{vT}, v{vG}, 5, v{vT}")
e(f"s_lshl_b32 s{sT0}, s{sS}, 7")
e(f"buffer_load_dwordx2 {vr(A_vQ,2)}, v{vT}, {sr(sW,4)}, s{sT0} offen")
nop(1)
srd(sW, pAwq, 512 * 8192)
e(f"v_lshlrev_b32 v{vT+1}, 17, v{vG}")
e(f"v_lshl_or_b32 v{vT+1}, v{vN}, 4, v{vT+1}")
e(f"s_lshl_b32 s{sT0}, s{sS}, 19")
e(f"s_lshl_b32 s{sT1}, s{sH}, 8")
e(f"s_add_u32 s{sT0}, s{sT0}, s{sT1}")
for T in range(4):
    for tt in range(4):
        idx = T * 4 + tt
        e(f"s_add_u32 s{sT1}, s{sT0}, {hex((4*tt+T)*8192)}")
        e(f"buffer_load_dwordx4 {vr(vBuf+4*idx,4)}, v{vT+1}, {sr(sW,4)}, s{sT1} offen nt")
e("s_waitcnt vmcnt(16)")
for T in range(4):
    e(f"v_perm_b32 v{A_vQ+4+T}, v{A_vQ+T//2}, v{A_vQ+T//2}, s{sDupHi if T&1 else sDupLo}")
nop(2)
for T in range(4):
    for tt in range(4):
        idx = T * 4 + tt
        a = rowsum_mfma(A_vQ + 4 + T, tt, idx & 1, None, None, None)
        e(f"s_waitcnt vmcnt({15-idx})")
        nop(1)
        c = "0" if idx == 0 else vr(A_vO, 4)
        e(f"v_mfma_f32_16x16x32_bf16 {vr(A_vO,4)}, {vr(a,4)}, {vr(vBuf+4*idx,4)}, {c}")
get_nonce("A")
e(f"v_lshlrev_b32 v{vT}, 6, v{vN}")
e(f"v_lshl_or_b32 v{vT}, v{vG}, 5, v{vT}")
e(f"v_mov_b32 v{vT+1}, {hex(OOB)}")
e(f"v_cmp_gt_u32 vcc, 32, v{vLane}")
e(f"s_lshl_b32 s{sT0}, s{sId}, 10")
e(f"s_add_u32 s{sT0}, s{sT0}, {hex(WS_QA)}")
e(f"v_cndmask_b32 v{vT}, v{vT+1}, v{vT}, vcc")
nop(8)
b0 = vBuf
for i in range(4):
    e(f"v_mov_b32 v{b0+2*i}, v{A_vO+i}")
    e(f"v_mov_b32 v{b0+2*i+1}, s{sNonce}")
e(f"buffer_store_dwordx4 {vr(b0,4)}, v{vT}, {sr(sWS,4)}, s{sT0} offen sc1")
e(f"buffer_store_dwordx4 {vr(b0+4,4)}, v{vT}, {sr(sWS,4)}, s{sT0} offen offset:16 sc1")
stamp(1)
e(f"v_and_b32 v{vT}, 1, v{vG}")
e(f"v_lshlrev_b32 v{vT}, 5, v{vT}")
e(f"v_lshl_or_b32 v{vT}, v{vN}, 6, v{vT}")
e(f"v_lshrrev_b32 v{vT+1}, 5, v{vLane}")
e(f"v_lshl_or_b32 v{vT}, v{vT+1}, 12, v{vT}")
e(f"s_lshl_b32 s{sT0}, s{sH}, 13")
e(f"s_add_u32 s{sT0}, s{sT0}, {hex(WS_QA)}")
g0 = vBuf + 8
lab("A_QPOLL")
for k in range(4):
    e(f"buffer_load_dwordx4 {vr(g0+8*k,4)}, v{vT}, {sr(sWS,4)}, s{sT0} offen offset:{1024*k} sc1")
    e(f"buffer_load_dwordx4 {vr(g0+8*k+4,4)}, v{vT}, {sr(sWS,4)}, s{sT0} offen offset:{1024*k+16} sc1")
e("s_waitcnt vmcnt(0)")
tag_check([g0 + 2 * i + 1 for i in range(16)], vT + 1, vT + 2)
e("s_cbranch_vccz A_QDONE")
e(f"s_add_u32 s{sCnt}, s{sCnt}, 1")
e(f"s_cmp_gt_u32 s{sCnt}, {hex(P.SPIN)}")
e("s_cbranch_scc1 A_QDONE")
e(f"s_sleep {P.SLEEP}")
e("s_branch A_QPOLL")
lab("A_QDONE")
stamp(2)
for i in range(4):
    e(f"v_add_f32 v{A_vO+i}, v{g0+2*i}, v{g0+8+2*i}")
    e(f"v_add_f32 v{A_vO+i}, v{A_vO+i}, v{g0+16+2*i}")
    e(f"v_add_f32 v{A_vO+i}, v{A_vO+i}, v{g0+24+2*i}")
A_prefetch()
for i in range(4):
    e(f"v_mov_b32 v{A_vS+i}, v{A_vO+i}")
nop(2)
for i in range(4):
    e(f"v_permlane32_swap_b32 v{A_vS+i}, v{A_vO+i}")
nop(1)
for i in range(4):
    e(f"v_add_f32 v{A_vO+i}, v{A_vS+i}, v{A_vO+i}")
e(f"v_cvt_pk_bf16_f32 v{A_vS}, v{A_vO}, v{A_vO+1}")
e(f"v_cvt_pk_bf16_f32 v{A_vS+1}, v{A_vO+2}, v{A_vO+3}")
e(f"v_and_b32 v{vT}, 1, v{vG}")
e(f"v_lshlrev_b32 v{vT}, 3, v{vT}")
e(f"v_lshl_or_b32 v{vT}, v{vN}, 4, v{vT}")
e(f"ds_write_b64 v{vT}, {vr(A_vS,2)} offset:{LDS_Q}")
e("s_waitcnt lgkmcnt(0)")
e("s_branch A_QBAR")
lab("A_NONLEADER")
A_prefetch()
lab("A_QBAR")
e("s_barrier")
e(f"v_and_b32 v{vT}, 3, v{vN}")
e(f"v_lshlrev_b32 v{vT}, 4, v{vT}")
e(f"v_lshl_or_b32 v{vT}, v{vG}, 6, v{vT}")
e(f"ds_read_b128 {vr(A_vS,4)}, v{vT} offset:{LDS_Q}")
e(f"v_lshrrev_b32 v{vT+1}, 2, v{vN}")
for i in range(4):
    e(f"v_mov_b32 v{A_vO+i}, 0")
e("s_waitcnt lgkmcnt(0)")
for t in range(4):
    e(f"v_cmp_eq_u32 vcc, {t}, v{vT+1}")
    nop(2)
    for i in range(4):
        e(f"v_cndmask_b32 v{A_vQ+4*t+i}, 0, v{A_vS+i}, vcc")
nop(2)

lab("A_LOOP")
rare = []
for b in range(N):
    kb = vBuf + 32 * b
    vb = kb + 16
    cm(f"--- A body {b}")
    e(f"s_cmp_ge_u32 s{sOff+b}, {hex(LIMIT)}")
    e("s_cbranch_scc1 A_EXIT")
    e(f"s_waitcnt vmcnt({8*N-4})")
    for t in range(4):
        c = "0" if t == 0 else vr(A_vS, 4)
        e(f"v_mfma_f32_16x16x32_bf16 {vr(A_vS,4)}, {vr(kb+4*t,4)}, {vr(A_vQ+4*t,4)}, {c}")
    e(f"s_cmp_lt_u32 s{sJ}, {J}")
    e(f"s_cbranch_scc1 A_STAT{b}")
    e(f"v_readfirstlane_b32 s{sT0}, v{A_vClaim+b}")
    e(f"s_lshl_b32 s{sT0}, s{sT0}, 12")
    e(f"s_add_u32 s{sT0}, s{sT0}, {hex(J*0x20000)}")
    e(f"s_cmp_lt_u32 s{sT0}, {hex(LIMIT)}")
    e(f"s_cselect_b32 s{sOff+b}, s{sT0}, {hex(OOB)}")
    e(f"s_branch A_JOIN{b}")
    lab(f"A_STAT{b}")
    e(f"s_mov_b32 s{sOff+b}, s{sStat}")
    e(f"s_add_u32 s{sStat}, s{sStat}, 0x20000")
    lab(f"A_JOIN{b}")
    e(f"s_add_u32 s{sJ}, s{sJ}, 1")
    e(f"s_cmp_lt_u32 s{sJ}, {J-N+1}")
    e(f"s_cbranch_scc1 A_NOCLAIM{b}")
    e(f"v_mov_b32 v{A_vClaim+b}, 1")
    e(f"buffer_atomic_add v{A_vClaim+b}, v{vCtr}, {sr(sWS,4)}, 0 offen sc0")
    lab(f"A_NOCLAIM{b}")
    A_issueK(b)
    nop(2)
    s = vT
    e(f"v_mov_b32_dpp v{s}, v{A_vS} quad_perm:[0,0,0,0] {DPPM}")
    for i in range(1, 4):
        e(f"v_add_f32_dpp v{s}, v{A_vS+i}, v{s} quad_perm:[{i},{i},{i},{i}] {DPPM}")
    if P.MIMIC:
        e(f"v_cvt_pk_bf16_f32 v{s}, v{s}, v{s}")
        e(f"v_and_b32 v{s}, 0xffff0000, v{s}")
        e(f"v_mul_f32 v{s}, s{sScale}, v{s}")
        e(f"v_cvt_pk_bf16_f32 v{s}, v{s}, v{s}")
        e(f"v_and_b32 v{s}, 0xffff0000, v{s}")
    else:
        e(f"v_mul_f32 v{s}, s{sScale}, v{s}")
    e(f"v_cmp_gt_f32 vcc, v{s}, v{vM}")
    e(f"s_cbranch_vccnz A_RARE{b}")
    lab(f"A_BACK{b}")
    e(f"v_fma_f32 v{s+1}, v{s}, s{sLog2e}, -v{vML}")
    e(f"v_exp_f32 v{s+1}, v{s+1}")
    nop(1)
    e(f"v_cvt_pk_bf16_f32 v{s+2}, v{s+1}, v{s+1}")
    e(f"v_add_f32 v{vL}, v{vL}, v{s+1}")
    e(f"s_waitcnt vmcnt({8*N-4})")
    pp = s + 2
    a0 = rowsum_mfma(pp, 0, 0, None, None, None)
    a1 = rowsum_mfma(pp, 1, 1, None, None, None)
    e(f"v_mfma_f32_16x16x32_bf16 {vr(A_vO,4)}, {vr(a0,4)}, {vr(vb,4)}, {vr(A_vO,4)}")
    rowsum_mfma(pp, 2, 0, None, None, None)
    e(f"v_mfma_f32_16x16x32_bf16 {vr(A_vO,4)}, {vr(a1,4)}, {vr(vb+4,4)}, {vr(A_vO,4)}")
    rowsum_mfma(pp, 3, 1, None, None, None)
    e(f"v_mfma_f32_16x16x32_bf16 {vr(A_vO,4)}, {vr(a0,4)}, {vr(vb+8,4)}, {vr(A_vO,4)}")
    A_issueV(b, [0, 1])
    e(f"v_mfma_f32_16x16x32_bf16 {vr(A_vO,4)}, {vr(a1,4)}, {vr(vb+12,4)}, {vr(A_vO,4)}")
    A_issueV(b, [2, 3])
    rare.append(b)
e("s_branch A_LOOP")
for b in rare:
    s = vT
    lab(f"A_RARE{b}")
    x = s + 3
    e(f"v_mov_b32 v{x}, v{s}")
    ror_reduce("v_max_f32", x, [4, 8])
    allreduce_rows("v_max_f32", x, s + 4, s + 5)
    e(f"v_mul_f32 v{s+4}, s{sLog2e}, v{x}")
    e(f"v_sub_f32 v{s+5}, v{vML}, v{s+4}")
    e(f"v_exp_f32 v{s+5}, v{s+5}")
    e(f"v_mov_b32 v{vM}, v{x}")
    e(f"v_mov_b32 v{vML}, v{s+4}")
    nop(8)
    e(f"v_mul_f32 v{vL}, v{vL}, v{s+5}")
    for i in range(4):
        e(f"v_mul_f32 v{A_vO+i}, v{A_vO+i}, v{s+5}")
    e(f"s_branch A_BACK{b}")

lab("A_EXIT")
e("s_waitcnt vmcnt(0)")
stamp(3)
e(f"s_cmp_lg_u32 s{sWave}, 0")
e("s_cbranch_scc1 A_NOWO")
cm("leader: issue wo slice loads: load t': lane (n,g) row 16(2g+(n>>3)) + t', cols 64s + 8(n&7)")
srd(sW, pAwo, 4096 * 1024)
e(f"v_lshrrev_b32 v{vT}, 3, v{vN}")
e(f"v_lshl_or_b32 v{vT}, v{vG}, 1, v{vT}")
e(f"v_lshlrev_b32 v{vT}, 14, v{vT}")
e(f"v_and_b32 v{vT+1}, 7, v{vN}")
e(f"v_lshl_or_b32 v{vT}, v{vT+1}, 4, v{vT}")
e(f"s_lshl_b32 s{sT0}, s{sH}, 17")
e(f"s_lshl_b32 s{sT1}, s{sS}, 7")
e(f"s_add_u32 s{sT0}, s{sT0}, s{sT1}")
for t in range(16):
    if t % 4 == 0 and t > 0:
        e(f"s_add_u32 s{sT0}, s{sT0}, 4096")
    e(f"buffer_load_dwordx4 {vr(vBuf+4*t,4)}, v{vT}, {sr(sW,4)}, s{sT0} offen offset:{1024*(t%4)} nt")
lab("A_NOWO")
ror_reduce("v_add_f32", vL, [4, 8])
allreduce_rows("v_add_f32", vL, vT, vT + 1)
e(f"v_lshlrev_b32 v{vT}, 5, v{vN}")
e(f"v_lshl_or_b32 v{vT}, v{vG}, 4, v{vT}")
e(f"s_lshl_b32 s{sT0}, s{sWave}, 9")
e(f"v_add_u32 v{vT}, s{sT0}, v{vT}")
e(f"s_lshl_b32 s{sT0}, s{sWave}, 3")
e(f"v_mov_b32 v{vT+1}, s{sT0}")
e("s_mov_b32 exec_hi, 0")
e(f"ds_write_b128 v{vT}, {vr(A_vO,4)} offset:{LDS_O}")
e("s_mov_b64 exec, -1")
assert (vT + 3) % 2 == 0
e(f"v_mov_b32 v{vT+3}, v{vML}")
e(f"v_mov_b32 v{vT+4}, v{vL}")
e(f"ds_write_b64 v{vT+1}, {vr(vT+3,2)} offset:{LDS_ML}")
e("s_waitcnt lgkmcnt(0)")
e("s_barrier")
e(f"s_cmp_lg_u32 s{sWave}, 0")
e("s_cbranch_scc1 END")
cm("leader: combine 4 waves")
c0 = A_vS
e(f"v_mov_b32 v{vT}, 0")
e(f"ds_read_b128 {vr(c0,4)}, v{vT} offset:{LDS_ML}")
e(f"ds_read_b128 {vr(c0+4,4)}, v{vT} offset:{LDS_ML+16}")
e(f"v_lshlrev_b32 v{vT+1}, 3, v{vLane}")
for w in range(4):
    e(f"ds_read_b64 {vr(c0+8+2*w,2)}, v{vT+1} offset:{LDS_O+512*w}")
e("s_waitcnt lgkmcnt(0)")
e(f"v_max3_f32 v{vML}, v{c0}, v{c0+2}, v{c0+4}")
e(f"v_max_f32 v{vML}, v{vML}, v{c0+6}")
for w in range(4):
    e(f"v_sub_f32 v{c0+2*w}, v{c0+2*w}, v{vML}")
    e(f"v_exp_f32 v{c0+2*w}, v{c0+2*w}")
nop(1)
pb = c0 + 16
e(f"v_mul_f32 v{vL}, v{c0}, v{c0+1}")
e(f"v_mul_f32 v{pb}, v{c0}, v{c0+8}")
e(f"v_mul_f32 v{pb+2}, v{c0}, v{c0+9}")
for w in range(1, 4):
    e(f"v_fmac_f32 v{vL}, v{c0+2*w}, v{c0+2*w+1}")
    e(f"v_fmac_f32 v{pb}, v{c0+2*w}, v{c0+8+2*w}")
    e(f"v_fmac_f32 v{pb+2}, v{c0+2*w}, v{c0+9+2*w}")
e(f"v_mov_b32 v{pb+1}, s{sNonce}")
e(f"v_mov_b32 v{pb+3}, s{sNonce}")
e(f"v_mov_b32 v{pb+4}, v{vML}")
e(f"v_mov_b32 v{pb+5}, s{sNonce}")
e(f"v_mov_b32 v{pb+6}, v{vL}")
e(f"v_mov_b32 v{pb+7}, s{sNonce}")
e(f"s_lshl_b32 s{sT0}, s{sId}, 11")
e(f"s_add_u32 s{sT0}, s{sT0}, {hex(WS_PA)}")
e(f"v_mov_b32 v{vT+3}, {hex(OOB)}")
e(f"v_cmp_eq_u32 vcc, 0, v{vLane}")
e(f"buffer_store_dwordx4 {vr(pb,4)}, v{vOffV}, {sr(sWS,4)}, s{sT0} offen sc1")
nop(1)
e(f"v_cndmask_b32 v{vT+2}, v{vT+3}, 0, vcc")
e(f"buffer_store_dwordx4 {vr(pb+4,4)}, v{vT+2}, {sr(sWS,4)}, s{sT0} offen offset:1024 sc1")
go = 22
gm = 54
e(f"s_lshl_b32 s{sT0}, s{sH}, 14")
e(f"s_add_u32 s{sT0}, s{sT0}, {hex(WS_PA)}")
e(f"s_add_u32 s{sT1}, s{sT0}, 8192")
e(f"v_and_b32 v{vT}, 7, v{vLane}")
e(f"v_lshlrev_b32 v{vT}, 11, v{vT}")
nop(2)
lab("A_PPOLL")
e(f"v_add_u32 v{vT+1}, 4096, v{vOffV}")
for p in range(8):
    so = sT0 if p < 4 else sT1
    vo = vOffV if (p % 4) < 2 else vT + 1
    e(f"buffer_load_dwordx4 {vr(go+4*p,4)}, v{vo}, {sr(sWS,4)}, s{so} offen offset:{2048*(p%2)} sc1")
e(f"buffer_load_dwordx4 {vr(gm,4)}, v{vT}, {sr(sWS,4)}, s{sT0} offen offset:1024 sc1")
e("s_waitcnt vmcnt(0)")
tag_check([go + 2 * i + 1 for i in range(16)] + [gm + 1, gm + 3], vT + 2, vT + 3)
e("s_cbranch_vccz A_PDONE")
e(f"s_add_u32 s{sCnt}, s{sCnt}, 1")
e(f"s_cmp_gt_u32 s{sCnt}, {hex(P.SPIN)}")
e("s_cbranch_scc1 A_PDONE")
e(f"s_sleep {P.SLEEP}")
e("s_branch A_PPOLL")
lab("A_PDONE")
e(f"v_mov_b32 v{vT+2}, v{gm}")
ror_reduce("v_max_f32", vT + 2, [1, 2, 4])
e(f"v_sub_f32 v{vT+3}, v{gm}, v{vT+2}")
e(f"v_exp_f32 v{vT+3}, v{vT+3}")
nop(1)
e(f"v_mul_f32 v{vT+4}, v{vT+3}, v{gm+2}")
ror_reduce("v_add_f32", vT + 4, [1, 2, 4])
e(f"v_rcp_f32 v{vT+4}, v{vT+4}")
e(f"v_mov_b32 v{vT+5}, 0")
e(f"v_mov_b32 v{vT+6}, 0")
for p in range(8):
    e(f"v_fmac_f32_dpp v{vT+5}, v{vT+3}, v{go+4*p} row_newbcast:{p} {DPPM}")
    e(f"v_fmac_f32_dpp v{vT+6}, v{vT+3}, v{go+4*p+2} row_newbcast:{p} {DPPM}")
e(f"v_mul_f32 v{vT+5}, v{vT+5}, v{vT+4}")
e(f"v_mul_f32 v{vT+6}, v{vT+6}, v{vT+4}")
e(f"v_cvt_pk_bf16_f32 v{vT+5}, v{vT+5}, v{vT+6}")
e(f"v_lshlrev_b32 v{vT}, 2, v{vLane}")
e(f"ds_write_b32 v{vT}, v{vT+5} offset:{LDS_OB}")
e(f"v_lshrrev_b32 v{vT}, 3, v{vN}")
e(f"v_lshl_or_b32 v{vT}, v{vG}, 1, v{vT}")
e(f"v_lshlrev_b32 v{vT}, 5, v{vT}")
e("s_waitcnt lgkmcnt(0)")
od = 34
e(f"ds_read_b128 {vr(od,4)}, v{vT} offset:{LDS_OB}")
e(f"ds_read_b128 {vr(od+4,4)}, v{vT} offset:{LDS_OB+16}")
e(f"v_and_b32 v{vT}, 1, v{vN}")
e(f"v_cmp_eq_u32 vcc, 1, v{vT}")
e(f"v_mov_b32 v{vT+1}, 0xffff")
e(f"v_mov_b32 v{vT+2}, 0xffff0000")
e(f"v_cndmask_b32 v{vT+1}, v{vT+1}, v{vT+2}, vcc")
e(f"v_bfe_u32 v{vT}, v{vN}, 1, 2")
for i in range(4):
    e(f"v_cmp_eq_u32 vcc, {i}, v{vT}")
    nop(2)
    e(f"v_cndmask_b32 v{vMask+i}, 0, v{vT+1}, vcc")
e("s_waitcnt lgkmcnt(0)")
yacc = 54
for t in range(16):
    a = vAop + 4 * (t & 1)
    e(f"v_perm_b32 v{vT}, v{od+t//2}, v{od+t//2}, s{sDupHi if t&1 else sDupLo}")
    for i in range(4):
        e(f"v_and_b32 v{a+i}, v{vT}, v{vMask+i}")
    nop(2)
    c = "0" if t == 0 else vr(yacc, 4)
    e(f"v_mfma_f32_16x16x32_bf16 {vr(yacc,4)}, {vr(a,4)}, {vr(vBuf+4*t,4)}, {c}")
e(f"v_and_b32 v{vT}, 7, v{vN}")
e(f"v_lshlrev_b32 v{vT}, 7, v{vT}")
e(f"v_and_b32 v{vT+1}, 1, v{vG}")
e(f"v_lshl_or_b32 v{vT}, v{vT+1}, 6, v{vT}")
e(f"v_lshrrev_b32 v{vT+1}, 3, v{vN}")
e(f"v_lshl_or_b32 v{vT}, v{vT+1}, 4, v{vT}")
e(f"v_lshrrev_b32 v{vT+2}, 1, v{vG}")
e(f"v_cmp_eq_u32 vcc, v{vT+1}, v{vT+2}")
e(f"v_mov_b32 v{vT+3}, {hex(OOB)}")
e(f"s_lshl_b32 s{sT0}, s{sId}, 10")
e(f"s_add_u32 s{sT0}, s{sT0}, {hex(WS_YA)}")
e(f"v_cndmask_b32 v{vT}, v{vT+3}, v{vT}, vcc")
nop(4)
yb = 34
for i in range(4):
    e(f"v_mov_b32 v{yb+2*i}, v{yacc+i}")
    e(f"v_mov_b32 v{yb+2*i+1}, s{sNonce}")
e(f"buffer_store_dwordx4 {vr(yb,4)}, v{vT}, {sr(sWS,4)}, s{sT0} offen sc1")
e(f"buffer_store_dwordx4 {vr(yb+4,4)}, v{vT}, {sr(sWS,4)}, s{sT0} offen offset:32 sc1")
e(f"v_and_b32 v{vT}, 31, v{vLane}")
e(f"v_lshlrev_b32 v{vT}, 13, v{vT}")
e(f"v_lshrrev_b32 v{vT+1}, 5, v{vLane}")
e(f"v_lshl_or_b32 v{vT}, v{vT+1}, 4, v{vT}")
e(f"s_lshl_b32 s{sT0}, s{sS}, 10")
e(f"s_lshl_b32 s{sT1}, s{sH}, 5")
e(f"s_add_u32 s{sT0}, s{sT0}, s{sT1}")
e(f"s_add_u32 s{sT0}, s{sT0}, {hex(WS_YA)}")
gy = 44
lab("A_YPOLL")
e(f"buffer_load_dwordx4 {vr(gy,4)}, v{vT}, {sr(sWS,4)}, s{sT0} offen sc1")
e("s_waitcnt vmcnt(0)")
tag_check([gy + 1, gy + 3], vT + 2, vT + 3)
e("s_cbranch_vccz A_YDONE")
e(f"s_add_u32 s{sCnt}, s{sCnt}, 1")
e(f"s_cmp_gt_u32 s{sCnt}, {hex(P.SPIN)}")
e("s_cbranch_scc1 A_YDONE")
e(f"s_sleep {P.SLEEP}")
e("s_branch A_YPOLL")
lab("A_YDONE")
for r in [1, 2, 4, 8]:
    nop(1)
    e(f"v_add_f32_dpp v{gy}, v{gy}, v{gy} row_ror:{r} {DPPM}")
    e(f"v_add_f32_dpp v{gy+2}, v{gy+2}, v{gy+2} row_ror:{r} {DPPM}")
allreduce_rows("v_add_f32", gy, vT + 2, vT + 3)
allreduce_rows("v_add_f32", gy + 2, vT + 2, vT + 3)
e(f"v_cvt_pk_bf16_f32 v{gy}, v{gy}, v{gy+2}")
srd(sW, pOut, 2048)
e(f"v_mov_b32 v{vT+3}, {hex(OOB)}")
e(f"v_cmp_eq_u32 vcc, 0, v{vLane}")
e(f"s_lshl_b32 s{sT0}, s{sS}, 7")
e(f"s_lshl_b32 s{sT1}, s{sH}, 2")
e(f"s_add_u32 s{sT0}, s{sT0}, s{sT1}")
e(f"v_cndmask_b32 v{vT+2}, v{vT+3}, 0, vcc")
e(f"buffer_store_dword v{gy}, v{vT+2}, {sr(sW,4)}, s{sT0} offen")
if P.STAMP:
    e(f"s_memrealtime s[{sTm}:{sTm+1}]")
    e("s_waitcnt lgkmcnt(0)")
    for i in range(4):
        e(f"v_mov_b32 v{34+i}, s{sStampA+2*i}")
    e(f"v_mov_b32 v{38}, s{sTm}")
    e(f"s_getreg_b32 s{sT1}, hwreg(HW_REG_XCC_ID)")
    e(f"v_mov_b32 v{39}, s{sT1}")
    e(f"v_mov_b32 v{40}, s{sJ}")
    e(f"v_mov_b32 v{41}, 0")
    e(f"s_lshl_b32 s{sT0}, s2, 5")
    e(f"s_add_u32 s{sT0}, s{sT0}, {hex(WS_STAMP)}")
    e(f"buffer_store_dwordx4 {vr(34,4)}, v{vT+2}, {sr(sWS,4)}, s{sT0} offen")
    e(f"buffer_store_dwordx4 {vr(38,4)}, v{vT+2}, {sr(sWS,4)}, s{sT0} offen offset:16")
e("s_branch END")

lab("B_PATH")
NBf = P.NBUFB
e(f"s_lshr_b32 s{sH}, s2, 2")
e(f"s_and_b32 s{sS}, s2, 3")
e(f"s_lshl_b32 s{sT0}, s{sH}, 23")
e(f"s_lshl_b32 s{sT1}, s{sS}, 18")
e(f"s_add_u32 s{sT0}, s{sT0}, s{sT1}")
e(f"s_add_u32 s{sT0}, s{sT0}, {hex((32768-4096)*256)}")
BLIM = 1024 * 256
srd(sK, pBk, BLIM, sT0)
srd(sV, pBv, BLIM, sT0)
e(f"s_cmp_lg_u32 s{sWave}, 0")
e("s_cbranch_scc1 B_NONONCE")
e(f"v_mov_b32 v{vT}, 0")
e(f"buffer_load_dword v{vTag}, v{vT}, {sr(sX,4)}, 0 offen sc1")
lab("B_NONONCE")
srd(sW, pBx, 1024)
e(f"v_lshrrev_b32 v{vT}, 2, v{vN}")
e(f"v_lshlrev_b32 v{vT}, 4, v{vT}")
e(f"v_lshl_or_b32 v{vT}, v{vG}, 6, v{vT}")
e(f"s_lshl_b32 s{sT0}, s{sWave}, 8")
e(f"buffer_load_dwordx4 {vr(34,4)}, v{vT}, {sr(sW,4)}, s{sT0} offen")
nop(1)

def rowsum128(xd, rowstride_log2, label):
    ppb = 38
    first = True
    for half in range(2):
        for Tq in range(4):
            T = half * 4 + Tq
            for tt in range(4):
                idx = Tq * 4 + tt
                e(f"s_add_u32 s{sT1}, s{sT0}, {hex((8*tt+T) << rowstride_log2)}")
                e(f"buffer_load_dwordx4 {vr(vBuf+4*idx,4)}, v{vT+1}, {sr(sW,4)}, s{sT1} offen nt")
        if half == 0:
            yield "loads_issued"
            for T in range(8):
                e(f"v_perm_b32 v{ppb+T}, v{xd+T//2}, v{xd+T//2}, s{sDupHi if T&1 else sDupLo}")
            nop(2)
        for Tq in range(4):
            T = half * 4 + Tq
            for tt in range(4):
                idx = Tq * 4 + tt
                a = rowsum_mfma(ppb + T, tt, idx & 1, None, None, None)
                e(f"s_waitcnt vmcnt({15-idx})")
                nop(1)
                c = "0" if first else vr(B_vO, 4)
                first = False
                e(f"v_mfma_f32_16x16x32_bf16 {vr(B_vO,4)}, {vr(a,4)}, {vr(vBuf+4*idx,4)}, {c}")

srd(sW, pBwq, 512 * 8192)
e(f"v_lshlrev_b32 v{vT+1}, 18, v{vG}")
e(f"v_lshl_or_b32 v{vT+1}, v{vN}, 4, v{vT+1}")
e(f"s_lshl_b32 s{sT0}, s{sWave}, 20")
e(f"s_lshl_b32 s{sT1}, s2, 8")
e(f"s_add_u32 s{sT0}, s{sT0}, s{sT1}")
gen = rowsum128(34, 13, "BQ")
next(gen)
e("s_waitcnt vmcnt(16)")
for _ in gen: pass
e(f"v_lshlrev_b32 v{vT}, 5, v{vN}")
e(f"v_lshl_or_b32 v{vT}, v{vG}, 4, v{vT}")
e(f"s_lshl_b32 s{sT0}, s{sWave}, 9")
e(f"v_add_u32 v{vT}, s{sT0}, v{vT}")
nop(8)
e("s_mov_b32 exec_hi, 0")
e(f"ds_write_b128 v{vT}, {vr(B_vO,4)} offset:{LDS_O}")
e("s_mov_b64 exec, -1")
e("s_waitcnt lgkmcnt(0)")
e("s_barrier")

def B_issueK(b):
    for t in range(4):
        e(f"buffer_load_dwordx4 {vr(vBuf+32*b+4*t,4)}, v{vOffK}, {sr(sK,4)}, s{sOff+b} offen offset:{1024*t} nt")
def B_issueV(b, ts=range(4)):
    for t in ts:
        e(f"buffer_load_dwordx4 {vr(vBuf+32*b+16+4*t,4)}, v{vOffV}, {sr(sV,4)}, s{sOff+b} offen offset:{1024*t} nt")
def B_prefetch():
    e(f"s_lshl_b32 s{sStat}, s{sWave}, 12")
    for b in range(NBf):
        e(f"s_mov_b32 s{sOff+b}, s{sStat}")
        e(f"s_add_u32 s{sStat}, s{sStat}, 0x4000")
        B_issueK(b)
        B_issueV(b)

e(f"s_cmp_lg_u32 s{sWave}, 0")
e("s_cbranch_scc1 B_NONLEADER")
e(f"v_lshlrev_b32 v{vT+1}, 3, v{vLane}")
for w in range(4):
    e(f"ds_read_b64 {vr(34+2*w,2)}, v{vT+1} offset:{LDS_O+512*w}")
get_nonce("B")
e("s_waitcnt lgkmcnt(0)")
for i in range(2):
    e(f"v_add_f32 v{34+i}, v{34+i}, v{36+i}")
    e(f"v_add_f32 v{34+i}, v{34+i}, v{38+i}")
    e(f"v_add_f32 v{34+i}, v{34+i}, v{40+i}")
e(f"v_cvt_pk_bf16_f32 v{34}, v{34}, v{35}")
e(f"v_mov_b32 v{35}, s{sNonce}")
e(f"s_lshl_b32 s{sT0}, s2, 10")
e(f"s_add_u32 s{sT0}, s{sT0}, {hex(WS_QB)}")
e(f"buffer_store_dwordx2 {vr(34,2)}, v{vT+1}, {sr(sWS,4)}, s{sT0} offen sc1")
e(f"s_lshl_b32 s{sT0}, s{sH}, 12")
e(f"s_add_u32 s{sT0}, s{sT0}, {hex(WS_QB)}")
lab("B_QPOLL")
for j in range(4):
    e(f"buffer_load_dwordx2 {vr(36+2*j,2)}, v{vT+1}, {sr(sWS,4)}, s{sT0} offen offset:{1024*j} sc1")
e("s_waitcnt vmcnt(0)")
tag_check([37, 39, 41, 43], vT + 2, vT + 3)
e("s_cbranch_vccz B_QDONE")
e(f"s_add_u32 s{sCnt}, s{sCnt}, 1")
e(f"s_cmp_gt_u32 s{sCnt}, {hex(P.SPIN)}")
e("s_cbranch_scc1 B_QDONE")
e(f"s_sleep {P.SLEEP*4}")
e("s_branch B_QPOLL")
lab("B_QDONE")
e(f"v_lshlrev_b32 v{vT}, 2, v{vLane}")
for j in range(4):
    e(f"ds_write_b32 v{vT}, v{36+2*j} offset:{LDS_Q+256*j}")
e(f"v_mov_b32 v{vT+2}, 0")
e(f"ds_write_b32 v{vT+2}, v{35} offset:{LDS_NONCE}")
B_prefetch()
e("s_waitcnt lgkmcnt(0)")
e("s_branch B_QBAR")
lab("B_NONLEADER")
B_prefetch()
lab("B_QBAR")
e("s_barrier")
e(f"ds_read_b128 {vr(B_vQ,4)}, v{vOffK} offset:{LDS_Q}")
e(f"v_mov_b32 v{vT+2}, 0")
e(f"ds_read_b32 v{vTag}, v{vT+2} offset:{LDS_NONCE}")
vMa, vMb = 62, 63
e(f"v_and_b32 v{vT}, 1, v{vN}")
e(f"v_cmp_eq_u32 vcc, 1, v{vT}")
e(f"v_mov_b32 v{vT+1}, 0xffff")
e(f"v_mov_b32 v{vT+2}, 0xffff0000")
e(f"v_cndmask_b32 v{vT+1}, v{vT+1}, v{vT+2}, vcc")
e(f"v_and_b32 v{vT}, 2, v{vN}")
e(f"v_cmp_eq_u32 vcc, 0, v{vT}")
nop(2)
e(f"v_cndmask_b32 v{vMa}, 0, v{vT+1}, vcc")
e(f"v_cndmask_b32 v{vMb}, v{vT+1}, 0, vcc")
for i in range(12):
    e(f"v_mov_b32 v{vAop+i}, 0")
for i in range(8):
    e(f"v_mov_b32 v{B_vO+i}, 0")
e("s_waitcnt lgkmcnt(0)")
e(f"v_readfirstlane_b32 s{sNonce}, v{vTag}")
nop(2)
lab("B_LOOP")
rareB = []
for b in range(NBf):
    kb = vBuf + 32 * b
    vb = kb + 16
    cm(f"--- B body {b}")
    e(f"s_cmp_ge_u32 s{sOff+b}, {hex(BLIM)}")
    e("s_cbranch_scc1 B_EXIT")
    e(f"s_waitcnt vmcnt({8*NBf-4})")
    for t in range(4):
        e(f"v_mfma_f32_16x16x32_bf16 {vr(B_vS+4*t,4)}, {vr(kb+4*t,4)}, {vr(B_vQ,4)}, 0")
    e(f"s_mov_b32 s{sOff+b}, s{sStat}")
    e(f"s_add_u32 s{sStat}, s{sStat}, 0x4000")
    B_issueK(b)
    nop(2)
    s = vT
    for t in range(4):
        e(f"v_mov_b32_dpp v{s+t}, v{B_vS+4*t} quad_perm:[0,0,0,0] {DPPM}")
        for i in range(1, 4):
            e(f"v_add_f32_dpp v{s+t}, v{B_vS+4*t+i}, v{s+t} quad_perm:[{i},{i},{i},{i}] {DPPM}")
    for t in range(4):
        if P.MIMIC:
            e(f"v_cvt_pk_bf16_f32 v{s+t}, v{s+t}, v{s+t}")
            e(f"v_and_b32 v{s+t}, 0xffff0000, v{s+t}")
            e(f"v_mul_f32 v{s+t}, s{sScale}, v{s+t}")
            e(f"v_cvt_pk_bf16_f32 v{s+t}, v{s+t}, v{s+t}")
            e(f"v_and_b32 v{s+t}, 0xffff0000, v{s+t}")
        else:
            e(f"v_mul_f32 v{s+t}, s{sScale}, v{s+t}")
    e(f"v_max3_f32 v{s+4}, v{s}, v{s+1}, v{s+2}")
    e(f"v_max_f32 v{s+4}, v{s+4}, v{s+3}")
    e(f"v_cmp_gt_f32 vcc, v{s+4}, v{vM}")
    e(f"s_cbranch_vccnz B_RARE{b}")
    lab(f"B_BACK{b}")
    for t in range(4):
        e(f"v_fma_f32 v{s+t}, v{s+t}, s{sLog2e}, -v{vML}")
        e(f"v_exp_f32 v{s+t}, v{s+t}")
    nop(1)
    for t in range(4):
        e(f"v_add_f32 v{vL}, v{vL}, v{s+t}")
        e(f"v_cvt_pk_bf16_f32 v{s+t}, v{s+t}, v{s+t}")
    e(f"s_waitcnt vmcnt({8*NBf-4})")
    for t in range(4):
        sx = vAop + 6 * (t & 1)
        e(f"v_and_b32 v{sx+2}, v{s+t}, v{vMa}")
        e(f"v_and_b32 v{sx+3}, v{s+t}, v{vMb}")
        nop(2)
        e(f"v_mfma_f32_16x16x32_bf16 {vr(B_vO,4)}, {vr(sx+2,4)}, {vr(vb+4*t,4)}, {vr(B_vO,4)}")
        e(f"v_mfma_f32_16x16x32_bf16 {vr(B_vO+4,4)}, {vr(sx,4)}, {vr(vb+4*t,4)}, {vr(B_vO+4,4)}")
    B_issueV(b)
    rareB.append(b)
e("s_branch B_LOOP")
for b in rareB:
    s = vT
    lab(f"B_RARE{b}")
    x = s + 4
    allreduce_rows("v_max_f32", x, s + 5, s + 6)
    e(f"v_max_f32 v{x}, v{x}, v{vM}")
    e(f"v_mul_f32 v{s+5}, s{sLog2e}, v{x}")
    e(f"v_sub_f32 v{s+6}, v{vML}, v{s+5}")
    e(f"v_exp_f32 v{s+6}, v{s+6}")
    e(f"v_mov_b32 v{vM}, v{x}")
    e(f"v_mov_b32 v{vML}, v{s+5}")
    e(f"v_lshlrev_b32 v{s+5}, 4, v{vG}")
    e(f"ds_bpermute_b32 v{s+4}, v{s+5}, v{s+6}")
    e(f"v_mul_f32 v{vL}, v{vL}, v{s+6}")
    e("s_waitcnt lgkmcnt(0)")
    nop(8)
    for i in range(8):
        e(f"v_mul_f32 v{B_vO+i}, v{B_vO+i}, v{s+4}")
    e(f"s_branch B_BACK{b}")
lab("B_EXIT")
e("s_waitcnt vmcnt(0)")
allreduce_rows("v_add_f32", vL, vT, vT + 1)
e(f"v_lshlrev_b32 v{vT}, 5, v{vN}")
e(f"v_lshl_or_b32 v{vT}, v{vG}, 9, v{vT}")
e(f"s_lshl_b32 s{sT0}, s{sWave}, 11")
e(f"v_add_u32 v{vT}, s{sT0}, v{vT}")
e(f"ds_write_b128 v{vT}, {vr(B_vO,4)} offset:{LDS_O}")
e(f"ds_write_b128 v{vT}, {vr(B_vO+4,4)} offset:{LDS_O+16}")
e(f"v_lshrrev_b32 v{vT+1}, 2, v{vN}")
e(f"v_lshlrev_b32 v{vT+1}, 5, v{vT+1}")
e(f"s_lshl_b32 s{sT0}, s{sWave}, 3")
e(f"v_add_u32 v{vT+1}, s{sT0}, v{vT+1}")
e(f"v_mov_b32 v{vT+3}, v{vML}")
e(f"v_mov_b32 v{vT+4}, v{vL}")
e(f"ds_write_b64 v{vT+1}, {vr(vT+3,2)} offset:{LDS_ML}")
e("s_waitcnt lgkmcnt(0)")
e("s_barrier")
cm("wave j combines head j")
c0 = 34
e(f"s_lshl_b32 s{sT0}, s{sWave}, 5")
e(f"v_mov_b32 v{vT}, s{sT0}")
e(f"ds_read_b128 {vr(c0,4)}, v{vT} offset:{LDS_ML}")
e(f"ds_read_b128 {vr(c0+4,4)}, v{vT} offset:{LDS_ML+16}")
e(f"v_lshlrev_b32 v{vT+1}, 3, v{vLane}")
e(f"s_lshl_b32 s{sT0}, s{sWave}, 9")
e(f"v_add_u32 v{vT+1}, s{sT0}, v{vT+1}")
for w in range(4):
    e(f"ds_read_b64 {vr(c0+8+2*w,2)}, v{vT+1} offset:{LDS_O+2048*w}")
e("s_waitcnt lgkmcnt(0)")
e(f"v_max3_f32 v{vML}, v{c0}, v{c0+2}, v{c0+4}")
e(f"v_max_f32 v{vML}, v{vML}, v{c0+6}")
for w in range(4):
    e(f"v_sub_f32 v{c0+2*w}, v{c0+2*w}, v{vML}")
    e(f"v_exp_f32 v{c0+2*w}, v{c0+2*w}")
nop(1)
pb = c0 + 16
e(f"v_mul_f32 v{vL}, v{c0}, v{c0+1}")
e(f"v_mul_f32 v{pb}, v{c0}, v{c0+8}")
e(f"v_mul_f32 v{pb+2}, v{c0}, v{c0+9}")
for w in range(1, 4):
    e(f"v_fmac_f32 v{vL}, v{c0+2*w}, v{c0+2*w+1}")
    e(f"v_fmac_f32 v{pb}, v{c0+2*w}, v{c0+8+2*w}")
    e(f"v_fmac_f32 v{pb+2}, v{c0+2*w}, v{c0+9+2*w}")
e(f"v_mov_b32 v{pb+1}, s{sNonce}")
e(f"v_mov_b32 v{pb+3}, s{sNonce}")
e(f"v_mov_b32 v{pb+4}, v{vML}")
e(f"v_mov_b32 v{pb+5}, s{sNonce}")
e(f"v_mov_b32 v{pb+6}, v{vL}")
e(f"v_mov_b32 v{pb+7}, s{sNonce}")
e(f"s_lshl_b32 s{sT0}, s{sH}, 2")
e(f"s_add_u32 s{sT0}, s{sT0}, s{sWave}")
e(f"s_lshl_b32 s{sT0}, s{sT0}, 2")
e(f"s_add_u32 s{sT0}, s{sT0}, s{sS}")
e(f"s_lshl_b32 s{sT0}, s{sT0}, 11")
e(f"s_add_u32 s{sT0}, s{sT0}, {hex(WS_PB)}")
e(f"v_mov_b32 v{vT+3}, {hex(OOB)}")
e(f"v_cmp_eq_u32 vcc, 0, v{vLane}")
e(f"buffer_store_dwordx4 {vr(pb,4)}, v{vOffV}, {sr(sWS,4)}, s{sT0} offen sc1")
nop(1)
e(f"v_cndmask_b32 v{vT+2}, v{vT+3}, 0, vcc")
e(f"buffer_store_dwordx4 {vr(pb+4,4)}, v{vT+2}, {sr(sWS,4)}, s{sT0} offen offset:1024 sc1")
e(f"s_cmp_lg_u32 s{sWave}, 0")
e("s_cbranch_scc1 B_OBAR")
go = 22
gm = 38
e(f"s_lshl_b32 s{sT0}, s2, 13")
e(f"s_add_u32 s{sT0}, s{sT0}, {hex(WS_PB)}")
e(f"v_and_b32 v{vT}, 3, v{vLane}")
e(f"v_lshlrev_b32 v{vT}, 11, v{vT}")
e(f"v_add_u32 v{vT+1}, 4096, v{vOffV}")
nop(2)
lab("B_PPOLL")
for p in range(4):
    vo = vOffV if p < 2 else vT + 1
    e(f"buffer_load_dwordx4 {vr(go+4*p,4)}, v{vo}, {sr(sWS,4)}, s{sT0} offen offset:{2048*(p%2)} sc1")
e(f"buffer_load_dwordx4 {vr(gm,4)}, v{vT}, {sr(sWS,4)}, s{sT0} offen offset:1024 sc1")
e("s_waitcnt vmcnt(0)")
tag_check([go + 2 * i + 1 for i in range(8)] + [gm + 1, gm + 3], vT + 2, vT + 3)
e("s_cbranch_vccz B_PDONE")
e(f"s_add_u32 s{sCnt}, s{sCnt}, 1")
e(f"s_cmp_gt_u32 s{sCnt}, {hex(P.SPIN)}")
e("s_cbranch_scc1 B_PDONE")
e(f"s_sleep {P.SLEEP*4}")
e("s_branch B_PPOLL")
lab("B_PDONE")
e(f"v_mov_b32 v{vT+2}, v{gm}")
ror_reduce("v_max_f32", vT + 2, [1, 2])
e(f"v_sub_f32 v{vT+3}, v{gm}, v{vT+2}")
e(f"v_exp_f32 v{vT+3}, v{vT+3}")
nop(1)
e(f"v_mul_f32 v{vT+4}, v{vT+3}, v{gm+2}")
ror_reduce("v_add_f32", vT + 4, [1, 2])
e(f"v_rcp_f32 v{vT+4}, v{vT+4}")
e(f"v_mov_b32 v{vT+5}, 0")
e(f"v_mov_b32 v{vT+6}, 0")
for p in range(4):
    e(f"v_fmac_f32_dpp v{vT+5}, v{vT+3}, v{go+4*p} row_newbcast:{p} {DPPM}")
    e(f"v_fmac_f32_dpp v{vT+6}, v{vT+3}, v{go+4*p+2} row_newbcast:{p} {DPPM}")
e(f"v_mul_f32 v{vT+5}, v{vT+5}, v{vT+4}")
e(f"v_mul_f32 v{vT+6}, v{vT+6}, v{vT+4}")
e(f"v_cvt_pk_bf16_f32 v{vT+5}, v{vT+5}, v{vT+6}")
e(f"v_lshlrev_b32 v{vT}, 2, v{vLane}")
e(f"ds_write_b32 v{vT}, v{vT+5} offset:{LDS_OB}")
e("s_waitcnt lgkmcnt(0)")
lab("B_OBAR")
e("s_barrier")
e(f"v_lshrrev_b32 v{vT}, 2, v{vN}")
e(f"v_lshlrev_b32 v{vT}, 4, v{vT}")
e(f"v_lshl_or_b32 v{vT}, v{vG}, 6, v{vT}")
e(f"ds_read_b128 {vr(34,4)}, v{vT} offset:{LDS_OB}")
srd(sW, pBwo, 4096 * 1024)
e(f"v_lshlrev_b32 v{vT+1}, 15, v{vG}")
e(f"v_lshl_or_b32 v{vT+1}, v{vN}, 4, v{vT+1}")
e(f"s_lshl_b32 s{sT0}, s2, 17")
e(f"s_lshl_b32 s{sT1}, s{sWave}, 8")
e(f"s_add_u32 s{sT0}, s{sT0}, s{sT1}")
e("s_waitcnt vmcnt(0)")
gen = rowsum128(34, 10, "BW")
next(gen)
e("s_waitcnt lgkmcnt(0)")
for _ in gen: pass
e(f"v_lshlrev_b32 v{vT}, 6, v{vN}")
e(f"v_lshl_or_b32 v{vT}, v{vG}, 5, v{vT}")
e(f"v_mov_b32 v{vT+1}, {hex(OOB)}")
e(f"v_cmp_gt_u32 vcc, 32, v{vLane}")
e(f"s_lshl_b32 s{sT0}, s2, 12")
e(f"s_lshl_b32 s{sT1}, s{sWave}, 10")
e(f"s_add_u32 s{sT0}, s{sT0}, s{sT1}")
e(f"s_add_u32 s{sT0}, s{sT0}, {hex(WS_YB)}")
e(f"v_cndmask_b32 v{vT}, v{vT+1}, v{vT}, vcc")
nop(8)
yb = 34
for i in range(4):
    e(f"v_mov_b32 v{yb+2*i}, v{B_vO+i}")
    e(f"v_mov_b32 v{yb+2*i+1}, s{sNonce}")
e(f"buffer_store_dwordx4 {vr(yb,4)}, v{vT}, {sr(sWS,4)}, s{sT0} offen sc1")
e(f"buffer_store_dwordx4 {vr(yb+4,4)}, v{vT}, {sr(sWS,4)}, s{sT0} offen offset:16 sc1")
e(f"s_cmp_lg_u32 s{sWave}, 0")
e("s_cbranch_scc1 END")
e(f"v_and_b32 v{vT}, 7, v{vLane}")
e(f"v_lshlrev_b32 v{vT}, 4, v{vT}")
e(f"v_lshrrev_b32 v{vT+1}, 3, v{vLane}")
e(f"v_lshl_or_b32 v{vT}, v{vT+1}, 12, v{vT}")
e(f"s_lshl_b32 s{sT0}, s2, 7")
e(f"s_add_u32 s{sT0}, s{sT0}, {hex(WS_YB)}")
gy = 44
lab("B_YPOLL")
e(f"s_mov_b32 s{sT1}, s{sT0}")
for i in range(4):
    e(f"buffer_load_dwordx4 {vr(gy+4*i,4)}, v{vT}, {sr(sWS,4)}, s{sT1} offen sc1")
    if i < 3:
        e(f"s_add_u32 s{sT1}, s{sT1}, 0x8000")
e("s_waitcnt vmcnt(0)")
tag_check([gy + 2 * i + 1 for i in range(8)], vT + 2, vT + 3)
e("s_cbranch_vccz B_YDONE")
e(f"s_add_u32 s{sCnt}, s{sCnt}, 1")
e(f"s_cmp_gt_u32 s{sCnt}, {hex(P.SPIN)}")
e("s_cbranch_scc1 B_YDONE")
e(f"s_sleep {P.SLEEP*4}")
e("s_branch B_YPOLL")
lab("B_YDONE")
for c in (0, 2):
    e(f"v_add_f32 v{gy+c}, v{gy+c}, v{gy+4+c}")
    e(f"v_add_f32 v{gy+c}, v{gy+c}, v{gy+8+c}")
    e(f"v_add_f32 v{gy+c}, v{gy+c}, v{gy+12+c}")
ror_reduce("v_add_f32", gy, [8])
ror_reduce("v_add_f32", gy + 2, [8])
allreduce_rows("v_add_f32", gy, vT + 2, vT + 3)
allreduce_rows("v_add_f32", gy + 2, vT + 2, vT + 3)
e(f"v_cvt_pk_bf16_f32 v{gy}, v{gy}, v{gy+2}")
srd(sW, pOut, 2048)
e(f"v_mov_b32 v{vT+3}, {hex(OOB)}")
e(f"v_cmp_gt_u32 vcc, 8, v{vLane}")
e(f"v_lshlrev_b32 v{vT+2}, 2, v{vLane}")
e(f"s_lshl_b32 s{sT0}, s2, 5")
e(f"s_add_u32 s{sT0}, s{sT0}, 1024")
e(f"v_cndmask_b32 v{vT+2}, v{vT+3}, v{vT+2}, vcc")
e(f"buffer_store_dword v{gy}, v{vT+2}, {sr(sW,4)}, s{sT0} offen")
lab("END")
e("s_endpgm")

nvgpr = vBuf + 32 * max(P.NBUF, P.NBUFB, 2)
out += "\n".join(L) + "\n"
out += f""".section .rodata,"a"
.p2align 6
.amdhsa_kernel {KNAME}
  .amdhsa_next_free_vgpr {nvgpr}
  .amdhsa_next_free_sgpr 96
  .amdhsa_accum_offset {nvgpr}
  .amdhsa_group_segment_fixed_size 0
  .amdhsa_kernarg_size 104
  .amdhsa_user_sgpr_count 2
  .amdhsa_user_sgpr_kernarg_segment_ptr 1
  .amdhsa_system_sgpr_workgroup_id_x 1
.end_amdhsa_kernel
"""
open(sys.argv[1], "w").write(out)
print("wrote", sys.argv[1], "lines", len(L), "vgpr", nvgpr)
```

```python
import sys, struct

KNAME = "concat_heads__mha_block_cached__sliding_block_cached__decode_kernel"

class P:
    NBUF = 2
    NBUFB = 2
    J = 54
    NB = 32
    NA = 256
    MIMIC = 1
    STAMP = 0
    SLEEP = 1
    BWAIT = 1
    SPIN = 0x40000

for a in sys.argv[2:]:
    k, v = a.split("=")
    setattr(P, k, int(v))

L = []
def e(s): L.append("    " + s)
def lab(s): L.append(s + ":")
def cm(s): L.append("    ; " + s)
def nop(n):
    while n > 0:
        k = min(n, 16)
        e(f"s_nop {k-1}")
        n -= k
def f32(x): return "0x%08x" % struct.unpack("<I", struct.pack("<f", x))[0]
def vr(b, n): return f"v[{b}:{b+n-1}]"
def sr(b, n): return f"s[{b}:{b+n-1}]"
DPPM = "row_mask:0xf bank_mask:0xf"

WS_CTR = 0x0
WS_QA = 0x10000
WS_PA = 0x80000
WS_YA = 0x100000
WS_QB = 0x180000
WS_PB = 0x1A0000
WS_YB = 0x200000
WS_STAMP = 0x300000
WS_SIZE = 0x400000
OOB = 0x40000000

sK, sV, sWS, sW, sX = 4, 8, 12, 16, 20
pAx, pAk, pAv, pAwq, pAwo, pBx, pBk, pBv, pBwq, pBwo, pOut, pDbg, pWs = [24 + 2 * i for i in range(13)]
sWave = 50; sH = 51; sS = 52; sT0 = 53; sT1 = 54; sNonce = 55; sJ = 56; sStat = 57
sScale = 58; sLog2e = 59; sOff = 60
sId = 68; sT2 = 69; sTm = 70
sDupLo = 74; sDupHi = 75; sCnt = 76; sMask = 78
sStampA = 80

vLane, vOffK, vOffV, vCtr = 0, 1, 2, 3
vN, vG = 4, 5
vMask = 6
vM, vML, vL = 10, 11, 12
vT = 13
vTag = 20
vZ = 21
vAop = 22
vS = 34
vO = 50
vQ = 34 + 4
A_vS, A_vQ, A_vO, A_vClaim = 34, 38, 54, 58
B_vS, B_vQ, B_vO = 34, 50, 54
vBuf = 64

LDS_Q = 0
LDS_NONCE = 1024
LDS_O = 2048
LDS_ML = 10240
LDS_OB = 10496
LDS_BYTES = 12288

def srd(dst, ptr, nrec, add_lo=None):
    if add_lo is None:
        e(f"s_mov_b32 s{dst}, s{ptr}")
        e(f"s_mov_b32 s{dst+1}, s{ptr+1}")
    else:
        e(f"s_add_u32 s{dst}, s{ptr}, s{add_lo}")
        e(f"s_addc_u32 s{dst+1}, s{ptr+1}, 0")
    e(f"s_mov_b32 s{dst+2}, {hex(nrec)}")
    e(f"s_mov_b32 s{dst+3}, 0x00020000")

def stamp(idx):
    if P.STAMP:
        e(f"s_memrealtime s[{sStampA+2*idx}:{sStampA+2*idx+1}]")

def allreduce_rows(op, x, a, b):
    e(f"v_mov_b32 v{a}, v{x}")
    e(f"v_mov_b32 v{b}, v{x}")
    nop(2)
    e(f"v_permlane16_swap_b32 v{a}, v{b}")
    nop(1)
    e(f"{op} v{x}, v{a}, v{b}")
    e(f"v_mov_b32 v{a}, v{x}")
    e(f"v_mov_b32 v{b}, v{x}")
    nop(2)
    e(f"v_permlane32_swap_b32 v{a}, v{b}")
    nop(1)
    e(f"{op} v{x}, v{a}, v{b}")

def ror_reduce(op, x, rors):
    for r in rors:
        nop(2)
        e(f"{op}_dpp v{x}, v{x}, v{x} row_ror:{r} {DPPM}")

def tag_check(tags, t0, t1):
    tags = list(tags)
    if len(tags) == 1:
        e(f"v_cmp_ne_u32 vcc, s{sNonce}, v{tags[0]}")
        return
    e(f"v_min_u32 v{t0}, v{tags[0]}, v{tags[1]}")
    e(f"v_max_u32 v{t1}, v{tags[0]}, v{tags[1]}")
    rest = tags[2:]
    while len(rest) >= 2:
        e(f"v_min3_u32 v{t0}, v{t0}, v{rest[0]}, v{rest[1]}")
        e(f"v_max3_u32 v{t1}, v{t1}, v{rest[0]}, v{rest[1]}")
        rest = rest[2:]
    if rest:
        e(f"v_min_u32 v{t0}, v{t0}, v{rest[0]}")
        e(f"v_max_u32 v{t1}, v{t1}, v{rest[0]}")
    e(f"v_cmp_ne_u32 vcc, s{sNonce}, v{t0}")
    e(f"v_cmp_ne_u32 s[{sMask}:{sMask+1}], s{sNonce}, v{t1}")
    e(f"s_or_b64 vcc, vcc, s[{sMask}:{sMask+1}]")

def get_nonce(tag):
    lab(f"NONCE_{tag}")
    e("s_waitcnt vmcnt(0)")
    e(f"v_readfirstlane_b32 s{sNonce}, v{vTag}")
    e(f"s_cmp_lg_u32 s{sNonce}, 0")
    e(f"s_cbranch_scc1 NONCE_OK_{tag}")
    e(f"s_add_u32 s{sCnt}, s{sCnt}, 1")
    e(f"s_cmp_gt_u32 s{sCnt}, {hex(P.SPIN)}")
    e(f"s_cbranch_scc1 NONCE_OK_{tag}")
    e(f"s_sleep {P.SLEEP}")
    e(f"v_mov_b32 v{vT}, 0")
    e(f"buffer_load_dword v{vTag}, v{vT}, {sr(sX,4)}, 0 offen sc1")
    e(f"s_branch NONCE_{tag}")
    lab(f"NONCE_OK_{tag}")

def rowsum_mfma(pp, tt, setidx, breg, acc, first, masks=vMask):
    a = vAop + 4 * setidx
    for i in range(4):
        e(f"v_and_b32_dpp v{a+i}, v{pp}, v{masks+i} row_newbcast:{4*tt} {DPPM}")
    return a

hdr = open("concat_heads__mha_block_cached__sliding_block_cached__decode.s.ref").read().split("; Override launch")[0]
out = hdr
NWG = P.NB + P.NA
out += "; Override launch geometry by editing the next line (default: block=256,\n"
out += f"; @launch grid=({NWG},1,1) block=(256,1,1) lds={LDS_BYTES}\n"
out += '.amdgcn_target "amdgcn-amd-amdhsa--gfx950"\n.text\n'
out += f".globl {KNAME}\n.p2align 8\n.type {KNAME},@function\n{KNAME}:\n"

e(f"s_cmp_ge_u32 s2, {NWG}")
e("s_cbranch_scc1 END")
e("s_load_dwordx16 s[24:39], s[0:1], 0")
e("s_load_dwordx8 s[40:47], s[0:1], 64")
e("s_load_dwordx2 s[48:49], s[0:1], 96")
stamp(0)
e(f"v_lshrrev_b32 v{vT}, 6, v0")
e(f"v_and_b32 v{vLane}, 63, v0")
e(f"v_readfirstlane_b32 s{sWave}, v{vT}")
e(f"v_and_b32 v{vN}, 15, v{vLane}")
e(f"v_lshrrev_b32 v{vG}, 4, v{vLane}")
e(f"v_lshrrev_b32 v{vT}, 2, v{vN}")
e(f"v_lshlrev_b32 v{vOffK}, 8, v{vT}")
e(f"v_lshl_or_b32 v{vOffK}, v{vG}, 6, v{vOffK}")
e(f"v_and_b32 v{vT}, 3, v{vN}")
e(f"v_lshl_or_b32 v{vOffK}, v{vT}, 4, v{vOffK}")
e(f"v_lshlrev_b32 v{vOffV}, 4, v{vLane}")
e(f"v_mov_b32 v{vT}, {hex(OOB)}")
e(f"v_cmp_eq_u32 vcc, 0, v{vLane}")
nop(2)
e(f"v_cndmask_b32 v{vCtr}, v{vT}, 0, vcc")
def lane_consts():
    e(f"v_and_b32 v{vT}, 1, v{vN}")
    e(f"v_cmp_eq_u32 vcc, 1, v{vT}")
    e(f"v_mov_b32 v{vT+1}, 0xffff")
    e(f"v_mov_b32 v{vT+2}, 0xffff0000")
    e(f"v_cndmask_b32 v{vT+1}, v{vT+1}, v{vT+2}, vcc")
    e(f"v_lshrrev_b32 v{vT}, 1, v{vN}")
    for i in range(4):
        e(f"v_cmp_eq_u32 vcc, {i}, v{vT}")
        nop(2)
        e(f"v_cndmask_b32 v{vMask+i}, 0, v{vT+1}, vcc")
    e(f"s_mov_b32 s{sScale}, {f32(128 ** -0.5)}")
    e(f"s_mov_b32 s{sLog2e}, {f32(1.4426950408889634)}")
    e(f"s_mov_b32 s{sCnt}, 0")
    e(f"s_mov_b32 s{sDupLo}, 0x01000100")
    e(f"s_mov_b32 s{sDupHi}, 0x03020302")
    e(f"v_mov_b32 v{vM}, 0xff800000")
    e(f"v_mov_b32 v{vML}, 0xff800000")
    e(f"v_mov_b32 v{vL}, 0")
e("s_waitcnt lgkmcnt(0)")
stamp(1)
srd(sWS, pWs, WS_SIZE)
srd(sX, pDbg, 256)
e("s_cmp_lg_u32 s2, 0")
e("s_cbranch_scc1 NO_NONCE_WRITE")
e(f"s_cmp_lg_u32 s{sWave}, 0")
e("s_cbranch_scc1 NO_NONCE_WRITE")
e(f"s_memrealtime s[{sTm}:{sTm+1}]")
e("s_waitcnt lgkmcnt(0)")
e(f"s_or_b32 s{sT0}, s{sTm}, 1")
e(f"v_mov_b32 v{vT}, s{sT0}")
e(f"buffer_store_dword v{vT}, v{vCtr}, {sr(sX,4)}, 0 offen sc1")
lab("NO_NONCE_WRITE")
e(f"s_cmp_lt_u32 s2, {P.NB}")
e("s_cbranch_scc1 B_PATH")

N = P.NBUF
J = P.J
LIMIT = 0x800000
e(f"s_sub_u32 s{sId}, s2, {P.NB}")
e(f"s_lshr_b32 s{sH}, s{sId}, 3")
e(f"s_and_b32 s{sS}, s{sId}, 7")
e(f"s_lshl_b32 s{sT0}, s{sS}, 2")
e(f"s_add_u32 s{sH}, s{sH}, s{sT0}")
e(f"s_and_b32 s{sH}, s{sH}, 31")
e(f"s_lshl_b32 s{sId}, s{sH}, 3")
e(f"s_add_u32 s{sId}, s{sId}, s{sS}")
e(f"s_lshl_b32 s{sT0}, s{sH}, 23")
srd(sK, pAk, LIMIT, sT0)
srd(sV, pAv, LIMIT, sT0)
e(f"s_lshl_b32 s{sT0}, s{sH}, 8")
e(f"v_add_u32 v{vCtr}, s{sT0}, v{vCtr}")
e(f"s_lshl_b32 s{sT0}, s{sS}, 2")
e(f"s_add_u32 s{sT0}, s{sT0}, s{sWave}")
e(f"s_lshl_b32 s{sStat}, s{sT0}, 12")
e(f"s_mov_b32 s{sJ}, 0")

def A_issueK(b):
    for t in range(4):
        e(f"buffer_load_dwordx4 {vr(vBuf+32*b+4*t,4)}, v{vOffK}, {sr(sK,4)}, s{sOff+b} offen offset:{1024*t} nt")
def A_issueV(b, ts=range(4)):
    for t in ts:
        e(f"buffer_load_dwordx4 {vr(vBuf+32*b+16+4*t,4)}, v{vOffV}, {sr(sV,4)}, s{sOff+b} offen offset:{1024*t} nt")
def A_prefetch():
    for b in range(N):
        e(f"s_mov_b32 s{sOff+b}, s{sStat}")
        e(f"s_add_u32 s{sStat}, s{sStat}, 0x20000")
        A_issueK(b)
        A_issueV(b)
    e(f"s_mov_b32 s{sJ}, {N}")

cm("x (ushort) + 4 wq loads per wave, issued before anything else")
srd(sW, pAx, 1024)
e(f"v_lshrrev_b32 v{vT}, 2, v{vN}")
e(f"v_lshlrev_b32 v{vT}, 3, v{vT}")
e(f"v_lshl_or_b32 v{vT}, v{vG}, 1, v{vT}")
e(f"s_lshl_b32 s{sT0}, s{sS}, 7")
e(f"s_lshl_b32 s{sT1}, s{sWave}, 5")
e(f"s_add_u32 s{sT0}, s{sT0}, s{sT1}")
e(f"buffer_load_ushort v{vZ}, v{vT}, {sr(sW,4)}, s{sT0} offen")
e(f"v_lshlrev_b32 v{vT+1}, 13, v{vG}")
e(f"v_lshl_or_b32 v{vT+1}, v{vN}, 4, v{vT+1}")
srd(sW, pAwq, 512 * 8192)
e(f"s_lshl_b32 s{sT0}, s{sT0}, 12")
e(f"s_lshl_b32 s{sT1}, s{sH}, 8")
e(f"s_add_u32 s{sT0}, s{sT0}, s{sT1}")
wqb = A_vS
for tt in range(4):
    e(f"buffer_load_dwordx4 {vr(wqb+4*tt,4)}, v{vT+1}, {sr(sW,4)}, s{sT0} offen nt")
    if tt < 3:
        e(f"s_add_u32 s{sT0}, s{sT0}, 0x8000")
stamp(2)
e(f"s_cmp_lg_u32 s{sWave}, 0")
e("s_cbranch_scc1 A_NONLEADER0")
cm("leader: nonce load, counter init")
e(f"v_mov_b32 v{vT}, 0")
e(f"buffer_load_dword v{vTag}, v{vT}, {sr(sX,4)}, 0 offen sc1")
e(f"s_cmp_lg_u32 s{sS}, 0")
e("s_cbranch_scc1 A_NOCTR")
e(f"buffer_store_dword v{vT}, v{vCtr}, {sr(sWS,4)}, 0 offen sc1")
lab("A_NOCTR")
e("s_branch A_COMMON0")
lab("A_NONLEADER0")
A_prefetch()
lab("A_COMMON0")
lane_consts()
e(f"s_cmp_eq_u32 s{sWave}, 0")
e("s_cbranch_scc1 A_LW")
e(f"s_waitcnt vmcnt({8*N})")
e("s_branch A_QMFMA")
lab("A_LW")
e("s_waitcnt vmcnt(1)")
lab("A_QMFMA")
e(f"v_lshl_or_b32 v{vZ}, v{vZ}, 16, v{vZ}")
nop(2)
a0 = rowsum_mfma(vZ, 0, 0, None, None, None)
a1 = rowsum_mfma(vZ, 1, 1, None, None, None)
e(f"v_mfma_f32_16x16x32_bf16 {vr(A_vO,4)}, {vr(a0,4)}, {vr(wqb,4)}, 0")
rowsum_mfma(vZ, 2, 0, None, None, None)
e(f"v_mfma_f32_16x16x32_bf16 {vr(A_vO,4)}, {vr(a1,4)}, {vr(wqb+4,4)}, {vr(A_vO,4)}")
rowsum_mfma(vZ, 3, 1, None, None, None)
e(f"v_mfma_f32_16x16x32_bf16 {vr(A_vO,4)}, {vr(a0,4)}, {vr(wqb+8,4)}, {vr(A_vO,4)}")
nop(1)
e(f"v_mfma_f32_16x16x32_bf16 {vr(A_vO,4)}, {vr(a1,4)}, {vr(wqb+12,4)}, {vr(A_vO,4)}")
e(f"v_lshlrev_b32 v{vT}, 5, v{vN}")
e(f"v_lshl_or_b32 v{vT}, v{vG}, 4, v{vT}")
e(f"s_lshl_b32 s{sT0}, s{sWave}, 9")
e(f"v_add_u32 v{vT+1}, s{sT0}, v{vT}")
e(f"s_cmp_eq_u32 s{sWave}, 0")
e("s_cbranch_scc1 A_LEADER1")
nop(3)
e("s_mov_b32 exec_hi, 0")
e(f"ds_write_b128 v{vT+1}, {vr(A_vO,4)} offset:{LDS_O}")
e("s_mov_b64 exec, -1")
e("s_waitcnt lgkmcnt(0)")
e("s_barrier")
e("s_branch A_QBAR")
lab("A_LEADER1")
e("s_barrier")
for w in range(1, 4):
    e(f"ds_read_b128 {vr(wqb+4*w,4)}, v{vT} offset:{LDS_O+512*w}")
stamp(3)
get_nonce("A")
e("s_waitcnt lgkmcnt(0)")
for w in range(1, 4):
    for i in range(4):
        e(f"v_add_f32 v{A_vO+i}, v{A_vO+i}, v{wqb+4*w+i}")
e(f"v_lshlrev_b32 v{vT}, 6, v{vN}")
e(f"v_lshl_or_b32 v{vT}, v{vG}, 5, v{vT}")
e(f"v_mov_b32 v{vT+1}, {hex(OOB)}")
e(f"v_cmp_gt_u32 vcc, 32, v{vLane}")
e(f"s_lshl_b32 s{sT0}, s{sId}, 10")
e(f"s_add_u32 s{sT0}, s{sT0}, {hex(WS_QA)}")
e(f"v_cndmask_b32 v{vT}, v{vT+1}, v{vT}, vcc")
b0 = vBuf
for i in range(4):
    e(f"v_mov_b32 v{b0+2*i}, v{A_vO+i}")
    e(f"v_mov_b32 v{b0+2*i+1}, s{sNonce}")
e(f"buffer_store_dwordx4 {vr(b0,4)}, v{vT}, {sr(sWS,4)}, s{sT0} offen sc1")
e(f"buffer_store_dwordx4 {vr(b0+4,4)}, v{vT}, {sr(sWS,4)}, s{sT0} offen offset:16 sc1")
stamp(4)
e(f"v_and_b32 v{vT}, 1, v{vG}")
e(f"v_lshlrev_b32 v{vT}, 5, v{vT}")
e(f"v_lshl_or_b32 v{vT}, v{vN}, 6, v{vT}")
e(f"v_lshrrev_b32 v{vT+1}, 5, v{vLane}")
e(f"v_lshl_or_b32 v{vT}, v{vT+1}, 12, v{vT}")
e(f"s_lshl_b32 s{sT0}, s{sH}, 13")
e(f"s_add_u32 s{sT0}, s{sT0}, {hex(WS_QA)}")
g0 = vBuf + 8
lab("A_QPOLL")
for k in range(4):
    e(f"buffer_load_dwordx4 {vr(g0+8*k,4)}, v{vT}, {sr(sWS,4)}, s{sT0} offen offset:{1024*k} sc1")
    e(f"buffer_load_dwordx4 {vr(g0+8*k+4,4)}, v{vT}, {sr(sWS,4)}, s{sT0} offen offset:{1024*k+16} sc1")
e("s_waitcnt vmcnt(0)")
tag_check([g0 + 2 * i + 1 for i in range(16)], vT + 1, vT + 2)
e("s_cbranch_vccz A_QDONE")
e(f"s_add_u32 s{sCnt}, s{sCnt}, 1")
e(f"s_cmp_gt_u32 s{sCnt}, {hex(P.SPIN)}")
e("s_cbranch_scc1 A_QDONE")
e(f"s_sleep {P.SLEEP}")
e("s_branch A_QPOLL")
lab("A_QDONE")
stamp(5)
for i in range(4):
    e(f"v_add_f32 v{A_vO+i}, v{g0+2*i}, v{g0+8+2*i}")
    e(f"v_add_f32 v{A_vO+i}, v{A_vO+i}, v{g0+16+2*i}")
    e(f"v_add_f32 v{A_vO+i}, v{A_vO+i}, v{g0+24+2*i}")
A_prefetch()
for i in range(4):
    e(f"v_mov_b32 v{A_vS+i}, v{A_vO+i}")
nop(2)
for i in range(4):
    e(f"v_permlane32_swap_b32 v{A_vS+i}, v{A_vO+i}")
nop(1)
for i in range(4):
    e(f"v_add_f32 v{A_vO+i}, v{A_vS+i}, v{A_vO+i}")
e(f"v_cvt_pk_bf16_f32 v{A_vS}, v{A_vO}, v{A_vO+1}")
e(f"v_cvt_pk_bf16_f32 v{A_vS+1}, v{A_vO+2}, v{A_vO+3}")
e(f"v_and_b32 v{vT}, 1, v{vG}")
e(f"v_lshlrev_b32 v{vT}, 3, v{vT}")
e(f"v_lshl_or_b32 v{vT}, v{vN}, 4, v{vT}")
e(f"ds_write_b64 v{vT}, {vr(A_vS,2)} offset:{LDS_Q}")
e("s_waitcnt lgkmcnt(0)")
lab("A_QBAR")
e("s_barrier")
e(f"v_and_b32 v{vT}, 3, v{vN}")
e(f"v_lshlrev_b32 v{vT}, 4, v{vT}")
e(f"v_lshl_or_b32 v{vT}, v{vG}, 6, v{vT}")
e(f"ds_read_b128 {vr(A_vS,4)}, v{vT} offset:{LDS_Q}")
e(f"v_lshrrev_b32 v{vT+1}, 2, v{vN}")
for i in range(4):
    e(f"v_mov_b32 v{A_vO+i}, 0")
e("s_waitcnt lgkmcnt(0)")
for t in range(4):
    e(f"v_cmp_eq_u32 vcc, {t}, v{vT+1}")
    nop(2)
    for i in range(4):
        e(f"v_cndmask_b32 v{A_vQ+4*t+i}, 0, v{A_vS+i}, vcc")
nop(2)

lab("A_LOOP")
rare = []
for b in range(N):
    kb = vBuf + 32 * b
    vb = kb + 16
    cm(f"--- A body {b}")
    e(f"s_cmp_ge_u32 s{sOff+b}, {hex(LIMIT)}")
    e("s_cbranch_scc1 A_EXIT")
    e(f"s_waitcnt vmcnt({8*N-4})")
    for t in range(4):
        c = "0" if t == 0 else vr(A_vS, 4)
        e(f"v_mfma_f32_16x16x32_bf16 {vr(A_vS,4)}, {vr(kb+4*t,4)}, {vr(A_vQ+4*t,4)}, {c}")
    e(f"s_cmp_lt_u32 s{sJ}, {J}")
    e(f"s_cbranch_scc1 A_STAT{b}")
    e(f"v_readfirstlane_b32 s{sT0}, v{A_vClaim+b}")
    e(f"s_lshl_b32 s{sT0}, s{sT0}, 12")
    e(f"s_add_u32 s{sT0}, s{sT0}, {hex(J*0x20000)}")
    e(f"s_cmp_lt_u32 s{sT0}, {hex(LIMIT)}")
    e(f"s_cselect_b32 s{sOff+b}, s{sT0}, {hex(OOB)}")
    e(f"s_branch A_JOIN{b}")
    lab(f"A_STAT{b}")
    e(f"s_mov_b32 s{sOff+b}, s{sStat}")
    e(f"s_add_u32 s{sStat}, s{sStat}, 0x20000")
    lab(f"A_JOIN{b}")
    e(f"s_add_u32 s{sJ}, s{sJ}, 1")
    e(f"s_cmp_lt_u32 s{sJ}, {J-N+1}")
    e(f"s_cbranch_scc1 A_NOCLAIM{b}")
    e(f"v_mov_b32 v{A_vClaim+b}, 1")
    e(f"buffer_atomic_add v{A_vClaim+b}, v{vCtr}, {sr(sWS,4)}, 0 offen sc0")
    lab(f"A_NOCLAIM{b}")
    A_issueK(b)
    nop(2)
    s = vT
    e(f"v_mov_b32_dpp v{s}, v{A_vS} quad_perm:[0,0,0,0] {DPPM}")
    for i in range(1, 4):
        e(f"v_add_f32_dpp v{s}, v{A_vS+i}, v{s} quad_perm:[{i},{i},{i},{i}] {DPPM}")
    if P.MIMIC:
        e(f"v_cvt_pk_bf16_f32 v{s}, v{s}, v{s}")
        e(f"v_and_b32 v{s}, 0xffff0000, v{s}")
        e(f"v_mul_f32 v{s}, s{sScale}, v{s}")
        e(f"v_cvt_pk_bf16_f32 v{s}, v{s}, v{s}")
        e(f"v_and_b32 v{s}, 0xffff0000, v{s}")
    else:
        e(f"v_mul_f32 v{s}, s{sScale}, v{s}")
    e(f"v_cmp_gt_f32 vcc, v{s}, v{vM}")
    e(f"s_cbranch_vccnz A_RARE{b}")
    lab(f"A_BACK{b}")
    e(f"v_fma_f32 v{s+1}, v{s}, s{sLog2e}, -v{vML}")
    e(f"v_exp_f32 v{s+1}, v{s+1}")
    nop(1)
    e(f"v_cvt_pk_bf16_f32 v{s+2}, v{s+1}, v{s+1}")
    e(f"v_add_f32 v{vL}, v{vL}, v{s+1}")
    e(f"s_waitcnt vmcnt({8*N-4})")
    pp = s + 2
    a0 = rowsum_mfma(pp, 0, 0, None, None, None)
    a1 = rowsum_mfma(pp, 1, 1, None, None, None)
    e(f"v_mfma_f32_16x16x32_bf16 {vr(A_vO,4)}, {vr(a0,4)}, {vr(vb,4)}, {vr(A_vO,4)}")
    rowsum_mfma(pp, 2, 0, None, None, None)
    e(f"v_mfma_f32_16x16x32_bf16 {vr(A_vO,4)}, {vr(a1,4)}, {vr(vb+4,4)}, {vr(A_vO,4)}")
    rowsum_mfma(pp, 3, 1, None, None, None)
    e(f"v_mfma_f32_16x16x32_bf16 {vr(A_vO,4)}, {vr(a0,4)}, {vr(vb+8,4)}, {vr(A_vO,4)}")
    A_issueV(b, [0, 1])
    e(f"v_mfma_f32_16x16x32_bf16 {vr(A_vO,4)}, {vr(a1,4)}, {vr(vb+12,4)}, {vr(A_vO,4)}")
    A_issueV(b, [2, 3])
    rare.append(b)
e("s_branch A_LOOP")
for b in rare:
    s = vT
    lab(f"A_RARE{b}")
    x = s + 3
    e(f"v_mov_b32 v{x}, v{s}")
    ror_reduce("v_max_f32", x, [4, 8])
    allreduce_rows("v_max_f32", x, s + 4, s + 5)
    e(f"v_mul_f32 v{s+4}, s{sLog2e}, v{x}")
    e(f"v_sub_f32 v{s+5}, v{vML}, v{s+4}")
    e(f"v_exp_f32 v{s+5}, v{s+5}")
    e(f"v_mov_b32 v{vM}, v{x}")
    e(f"v_mov_b32 v{vML}, v{s+4}")
    nop(8)
    e(f"v_mul_f32 v{vL}, v{vL}, v{s+5}")
    for i in range(4):
        e(f"v_mul_f32 v{A_vO+i}, v{A_vO+i}, v{s+5}")
    e(f"s_branch A_BACK{b}")

lab("A_EXIT")
e("s_waitcnt vmcnt(0)")
stamp(6)
e(f"s_cmp_lg_u32 s{sWave}, 0")
e("s_cbranch_scc1 A_NOWO")
cm("leader: issue wo slice loads: load t': lane (n,g) row 16(2g+(n>>3)) + t', cols 64s + 8(n&7)")
srd(sW, pAwo, 4096 * 1024)
e(f"v_lshrrev_b32 v{vT}, 3, v{vN}")
e(f"v_lshl_or_b32 v{vT}, v{vG}, 1, v{vT}")
e(f"v_lshlrev_b32 v{vT}, 14, v{vT}")
e(f"v_and_b32 v{vT+1}, 7, v{vN}")
e(f"v_lshl_or_b32 v{vT}, v{vT+1}, 4, v{vT}")
e(f"s_lshl_b32 s{sT0}, s{sH}, 17")
e(f"s_lshl_b32 s{sT1}, s{sS}, 7")
e(f"s_add_u32 s{sT0}, s{sT0}, s{sT1}")
for t in range(16):
    if t % 4 == 0 and t > 0:
        e(f"s_add_u32 s{sT0}, s{sT0}, 4096")
    e(f"buffer_load_dwordx4 {vr(vBuf+4*t,4)}, v{vT}, {sr(sW,4)}, s{sT0} offen offset:{1024*(t%4)} nt")
lab("A_NOWO")
ror_reduce("v_add_f32", vL, [4, 8])
allreduce_rows("v_add_f32", vL, vT, vT + 1)
e(f"v_lshlrev_b32 v{vT}, 5, v{vN}")
e(f"v_lshl_or_b32 v{vT}, v{vG}, 4, v{vT}")
e(f"s_lshl_b32 s{sT0}, s{sWave}, 9")
e(f"v_add_u32 v{vT}, s{sT0}, v{vT}")
e(f"s_lshl_b32 s{sT0}, s{sWave}, 3")
e(f"v_mov_b32 v{vT+1}, s{sT0}")
e("s_mov_b32 exec_hi, 0")
e(f"ds_write_b128 v{vT}, {vr(A_vO,4)} offset:{LDS_O}")
e("s_mov_b64 exec, -1")
assert (vT + 3) % 2 == 0
e(f"v_mov_b32 v{vT+3}, v{vML}")
e(f"v_mov_b32 v{vT+4}, v{vL}")
e(f"ds_write_b64 v{vT+1}, {vr(vT+3,2)} offset:{LDS_ML}")
e("s_waitcnt lgkmcnt(0)")
e("s_barrier")
e(f"s_cmp_lg_u32 s{sWave}, 0")
e("s_cbranch_scc1 END")
cm("leader: combine 4 waves")
c0 = A_vS
e(f"v_mov_b32 v{vT}, 0")
e(f"ds_read_b128 {vr(c0,4)}, v{vT} offset:{LDS_ML}")
e(f"ds_read_b128 {vr(c0+4,4)}, v{vT} offset:{LDS_ML+16}")
e(f"v_lshlrev_b32 v{vT+1}, 3, v{vLane}")
for w in range(4):
    e(f"ds_read_b64 {vr(c0+8+2*w,2)}, v{vT+1} offset:{LDS_O+512*w}")
e("s_waitcnt lgkmcnt(0)")
e(f"v_max3_f32 v{vML}, v{c0}, v{c0+2}, v{c0+4}")
e(f"v_max_f32 v{vML}, v{vML}, v{c0+6}")
for w in range(4):
    e(f"v_sub_f32 v{c0+2*w}, v{c0+2*w}, v{vML}")
    e(f"v_exp_f32 v{c0+2*w}, v{c0+2*w}")
nop(1)
pb = c0 + 16
e(f"v_mul_f32 v{vL}, v{c0}, v{c0+1}")
e(f"v_mul_f32 v{pb}, v{c0}, v{c0+8}")
e(f"v_mul_f32 v{pb+2}, v{c0}, v{c0+9}")
for w in range(1, 4):
    e(f"v_fmac_f32 v{vL}, v{c0+2*w}, v{c0+2*w+1}")
    e(f"v_fmac_f32 v{pb}, v{c0+2*w}, v{c0+8+2*w}")
    e(f"v_fmac_f32 v{pb+2}, v{c0+2*w}, v{c0+9+2*w}")
e(f"v_mov_b32 v{pb+1}, s{sNonce}")
e(f"v_mov_b32 v{pb+3}, s{sNonce}")
e(f"v_mov_b32 v{pb+4}, v{vML}")
e(f"v_mov_b32 v{pb+5}, s{sNonce}")
e(f"v_mov_b32 v{pb+6}, v{vL}")
e(f"v_mov_b32 v{pb+7}, s{sNonce}")
e(f"s_lshl_b32 s{sT0}, s{sId}, 11")
e(f"s_add_u32 s{sT0}, s{sT0}, {hex(WS_PA)}")
e(f"v_mov_b32 v{vT+3}, {hex(OOB)}")
e(f"v_cmp_eq_u32 vcc, 0, v{vLane}")
e(f"buffer_store_dwordx4 {vr(pb,4)}, v{vOffV}, {sr(sWS,4)}, s{sT0} offen sc1")
nop(1)
e(f"v_cndmask_b32 v{vT+2}, v{vT+3}, 0, vcc")
e(f"buffer_store_dwordx4 {vr(pb+4,4)}, v{vT+2}, {sr(sWS,4)}, s{sT0} offen offset:1024 sc1")
go = 22
gm = 54
e(f"s_lshl_b32 s{sT0}, s{sH}, 14")
e(f"s_add_u32 s{sT0}, s{sT0}, {hex(WS_PA)}")
e(f"s_add_u32 s{sT1}, s{sT0}, 8192")
e(f"v_and_b32 v{vT}, 7, v{vLane}")
e(f"v_lshlrev_b32 v{vT}, 11, v{vT}")
nop(2)
lab("A_PPOLL")
e(f"v_add_u32 v{vT+1}, 4096, v{vOffV}")
for p in range(8):
    so = sT0 if p < 4 else sT1
    vo = vOffV if (p % 4) < 2 else vT + 1
    e(f"buffer_load_dwordx4 {vr(go+4*p,4)}, v{vo}, {sr(sWS,4)}, s{so} offen offset:{2048*(p%2)} sc1")
e(f"buffer_load_dwordx4 {vr(gm,4)}, v{vT}, {sr(sWS,4)}, s{sT0} offen offset:1024 sc1")
e("s_waitcnt vmcnt(0)")
tag_check([go + 2 * i + 1 for i in range(16)] + [gm + 1, gm + 3], vT + 2, vT + 3)
e("s_cbranch_vccz A_PDONE")
e(f"s_add_u32 s{sCnt}, s{sCnt}, 1")
e(f"s_cmp_gt_u32 s{sCnt}, {hex(P.SPIN)}")
e("s_cbranch_scc1 A_PDONE")
e(f"s_sleep {P.SLEEP}")
e("s_branch A_PPOLL")
lab("A_PDONE")
stamp(7)
e(f"v_mov_b32 v{vT+2}, v{gm}")
ror_reduce("v_max_f32", vT + 2, [1, 2, 4])
e(f"v_sub_f32 v{vT+3}, v{gm}, v{vT+2}")
e(f"v_exp_f32 v{vT+3}, v{vT+3}")
nop(1)
e(f"v_mul_f32 v{vT+4}, v{vT+3}, v{gm+2}")
ror_reduce("v_add_f32", vT + 4, [1, 2, 4])
e(f"v_rcp_f32 v{vT+4}, v{vT+4}")
e(f"v_mov_b32 v{vT+5}, 0")
e(f"v_mov_b32 v{vT+6}, 0")
for p in range(8):
    e(f"v_fmac_f32_dpp v{vT+5}, v{vT+3}, v{go+4*p} row_newbcast:{p} {DPPM}")
    e(f"v_fmac_f32_dpp v{vT+6}, v{vT+3}, v{go+4*p+2} row_newbcast:{p} {DPPM}")
e(f"v_mul_f32 v{vT+5}, v{vT+5}, v{vT+4}")
e(f"v_mul_f32 v{vT+6}, v{vT+6}, v{vT+4}")
e(f"v_cvt_pk_bf16_f32 v{vT+5}, v{vT+5}, v{vT+6}")
e(f"v_lshlrev_b32 v{vT}, 2, v{vLane}")
e(f"ds_write_b32 v{vT}, v{vT+5} offset:{LDS_OB}")
e(f"v_lshrrev_b32 v{vT}, 3, v{vN}")
e(f"v_lshl_or_b32 v{vT}, v{vG}, 1, v{vT}")
e(f"v_lshlrev_b32 v{vT}, 5, v{vT}")
e("s_waitcnt lgkmcnt(0)")
od = 34
e(f"ds_read_b128 {vr(od,4)}, v{vT} offset:{LDS_OB}")
e(f"ds_read_b128 {vr(od+4,4)}, v{vT} offset:{LDS_OB+16}")
e(f"v_and_b32 v{vT}, 1, v{vN}")
e(f"v_cmp_eq_u32 vcc, 1, v{vT}")
e(f"v_mov_b32 v{vT+1}, 0xffff")
e(f"v_mov_b32 v{vT+2}, 0xffff0000")
e(f"v_cndmask_b32 v{vT+1}, v{vT+1}, v{vT+2}, vcc")
e(f"v_bfe_u32 v{vT}, v{vN}, 1, 2")
for i in range(4):
    e(f"v_cmp_eq_u32 vcc, {i}, v{vT}")
    nop(2)
    e(f"v_cndmask_b32 v{vMask+i}, 0, v{vT+1}, vcc")
e("s_waitcnt lgkmcnt(0)")
yacc = 54
for t in range(16):
    a = vAop + 4 * (t & 1)
    e(f"v_perm_b32 v{vT}, v{od+t//2}, v{od+t//2}, s{sDupHi if t&1 else sDupLo}")
    for i in range(4):
        e(f"v_and_b32 v{a+i}, v{vT}, v{vMask+i}")
    nop(2)
    c = "0" if t == 0 else vr(yacc, 4)
    e(f"v_mfma_f32_16x16x32_bf16 {vr(yacc,4)}, {vr(a,4)}, {vr(vBuf+4*t,4)}, {c}")
e(f"v_and_b32 v{vT}, 7, v{vN}")
e(f"v_lshlrev_b32 v{vT}, 7, v{vT}")
e(f"v_and_b32 v{vT+1}, 1, v{vG}")
e(f"v_lshl_or_b32 v{vT}, v{vT+1}, 6, v{vT}")
e(f"v_lshrrev_b32 v{vT+1}, 3, v{vN}")
e(f"v_lshl_or_b32 v{vT}, v{vT+1}, 4, v{vT}")
e(f"v_lshrrev_b32 v{vT+2}, 1, v{vG}")
e(f"v_cmp_eq_u32 vcc, v{vT+1}, v{vT+2}")
e(f"v_mov_b32 v{vT+3}, {hex(OOB)}")
e(f"s_lshl_b32 s{sT0}, s{sId}, 10")
e(f"s_add_u32 s{sT0}, s{sT0}, {hex(WS_YA)}")
e(f"v_cndmask_b32 v{vT}, v{vT+3}, v{vT}, vcc")
nop(4)
yb = 34
for i in range(4):
    e(f"v_mov_b32 v{yb+2*i}, v{yacc+i}")
    e(f"v_mov_b32 v{yb+2*i+1}, s{sNonce}")
e(f"buffer_store_dwordx4 {vr(yb,4)}, v{vT}, {sr(sWS,4)}, s{sT0} offen sc1")
e(f"buffer_store_dwordx4 {vr(yb+4,4)}, v{vT}, {sr(sWS,4)}, s{sT0} offen offset:32 sc1")
e(f"v_and_b32 v{vT}, 31, v{vLane}")
e(f"v_lshlrev_b32 v{vT}, 13, v{vT}")
e(f"v_lshrrev_b32 v{vT+1}, 5, v{vLane}")
e(f"v_lshl_or_b32 v{vT}, v{vT+1}, 4, v{vT}")
e(f"s_lshl_b32 s{sT0}, s{sS}, 10")
e(f"s_lshl_b32 s{sT1}, s{sH}, 5")
e(f"s_add_u32 s{sT0}, s{sT0}, s{sT1}")
e(f"s_add_u32 s{sT0}, s{sT0}, {hex(WS_YA)}")
gy = 44
lab("A_YPOLL")
e(f"buffer_load_dwordx4 {vr(gy,4)}, v{vT}, {sr(sWS,4)}, s{sT0} offen sc1")
e("s_waitcnt vmcnt(0)")
tag_check([gy + 1, gy + 3], vT + 2, vT + 3)
e("s_cbranch_vccz A_YDONE")
e(f"s_add_u32 s{sCnt}, s{sCnt}, 1")
e(f"s_cmp_gt_u32 s{sCnt}, {hex(P.SPIN)}")
e("s_cbranch_scc1 A_YDONE")
e(f"s_sleep {P.SLEEP}")
e("s_branch A_YPOLL")
lab("A_YDONE")
for r in [1, 2, 4, 8]:
    nop(1)
    e(f"v_add_f32_dpp v{gy}, v{gy}, v{gy} row_ror:{r} {DPPM}")
    e(f"v_add_f32_dpp v{gy+2}, v{gy+2}, v{gy+2} row_ror:{r} {DPPM}")
allreduce_rows("v_add_f32", gy, vT + 2, vT + 3)
allreduce_rows("v_add_f32", gy + 2, vT + 2, vT + 3)
e(f"v_cvt_pk_bf16_f32 v{gy}, v{gy}, v{gy+2}")
srd(sW, pOut, 2048)
e(f"v_mov_b32 v{vT+3}, {hex(OOB)}")
e(f"v_cmp_eq_u32 vcc, 0, v{vLane}")
e(f"s_lshl_b32 s{sT0}, s{sS}, 7")
e(f"s_lshl_b32 s{sT1}, s{sH}, 2")
e(f"s_add_u32 s{sT0}, s{sT0}, s{sT1}")
e(f"v_cndmask_b32 v{vT+2}, v{vT+3}, 0, vcc")
e(f"buffer_store_dword v{gy}, v{vT+2}, {sr(sW,4)}, s{sT0} offen")
if P.STAMP:
    e(f"s_memrealtime s[{sTm}:{sTm+1}]")
    e("s_waitcnt lgkmcnt(0)")
    for i in range(8):
        e(f"v_mov_b32 v{34+i}, s{sStampA+2*i}")
    e(f"v_mov_b32 v{42}, s{sTm}")
    e(f"s_getreg_b32 s{sT1}, hwreg(HW_REG_XCC_ID)")
    e(f"v_mov_b32 v{43}, s{sT1}")
    e(f"v_mov_b32 v{44}, s{sJ}")
    e(f"v_mov_b32 v{45}, s{sCnt}")
    e(f"s_lshl_b32 s{sT0}, s2, 6")
    e(f"s_add_u32 s{sT0}, s{sT0}, {hex(WS_STAMP)}")
    e(f"buffer_store_dwordx4 {vr(34,4)}, v{vT+2}, {sr(sWS,4)}, s{sT0} offen")
    e(f"buffer_store_dwordx4 {vr(38,4)}, v{vT+2}, {sr(sWS,4)}, s{sT0} offen offset:16")
    e(f"buffer_store_dwordx4 {vr(42,4)}, v{vT+2}, {sr(sWS,4)}, s{sT0} offen offset:32")
e("s_branch END")

lab("B_PATH")
NBf = P.NBUFB
lane_consts()
e(f"s_lshr_b32 s{sH}, s2, 2")
e(f"s_and_b32 s{sS}, s2, 3")
e(f"s_lshl_b32 s{sT0}, s{sH}, 23")
e(f"s_lshl_b32 s{sT1}, s{sS}, 18")
e(f"s_add_u32 s{sT0}, s{sT0}, s{sT1}")
e(f"s_add_u32 s{sT0}, s{sT0}, {hex((32768-4096)*256)}")
BLIM = 1024 * 256
srd(sK, pBk, BLIM, sT0)
srd(sV, pBv, BLIM, sT0)
e(f"s_cmp_lg_u32 s{sWave}, 0")
e("s_cbranch_scc1 B_NONONCE")
e(f"v_mov_b32 v{vT}, 0")
e(f"buffer_load_dword v{vTag}, v{vT}, {sr(sX,4)}, 0 offen sc1")
get_nonce("B")
if P.BWAIT:
    cm("B starts its heavy loads only after the A q-exchange of head s2 has been published")
    e(f"s_lshl_b32 s{sT0}, s2, 13")
    e(f"s_add_u32 s{sT0}, s{sT0}, {hex(WS_QA)}")
    e(f"v_and_b32 v{vT}, 7, v{vLane}")
    e(f"v_lshlrev_b32 v{vT}, 10, v{vT}")
    lab("B_WPOLL")
    e(f"buffer_load_dwordx2 {vr(34,2)}, v{vT}, {sr(sWS,4)}, s{sT0} offen sc1")
    e("s_waitcnt vmcnt(0)")
    tag_check([35], vT + 2, vT + 3)
    e("s_cbranch_vccz B_WDONE")
    e(f"s_add_u32 s{sCnt}, s{sCnt}, 1")
    e(f"s_cmp_gt_u32 s{sCnt}, {hex(P.SPIN)}")
    e("s_cbranch_scc1 B_WDONE")
    e(f"s_sleep {P.SLEEP*8}")
    e("s_branch B_WPOLL")
    lab("B_WDONE")
lab("B_NONONCE")
e("s_barrier")
srd(sW, pBx, 1024)
e(f"v_lshrrev_b32 v{vT}, 2, v{vN}")
e(f"v_lshlrev_b32 v{vT}, 4, v{vT}")
e(f"v_lshl_or_b32 v{vT}, v{vG}, 6, v{vT}")
e(f"s_lshl_b32 s{sT0}, s{sWave}, 8")
e(f"buffer_load_dwordx4 {vr(34,4)}, v{vT}, {sr(sW,4)}, s{sT0} offen")
nop(1)

def rowsum128(xd, rowstride_log2, label):
    ppb = 38
    first = True
    for half in range(2):
        for Tq in range(4):
            T = half * 4 + Tq
            for tt in range(4):
                idx = Tq * 4 + tt
                e(f"s_add_u32 s{sT1}, s{sT0}, {hex((8*tt+T) << rowstride_log2)}")
                e(f"buffer_load_dwordx4 {vr(vBuf+4*idx,4)}, v{vT+1}, {sr(sW,4)}, s{sT1} offen nt")
        if half == 0:
            yield "loads_issued"
            for T in range(8):
                e(f"v_perm_b32 v{ppb+T}, v{xd+T//2}, v{xd+T//2}, s{sDupHi if T&1 else sDupLo}")
            nop(2)
        for Tq in range(4):
            T = half * 4 + Tq
            for tt in range(4):
                idx = Tq * 4 + tt
                a = rowsum_mfma(ppb + T, tt, idx & 1, None, None, None)
                e(f"s_waitcnt vmcnt({15-idx})")
                nop(1)
                c = "0" if first else vr(B_vO, 4)
                first = False
                e(f"v_mfma_f32_16x16x32_bf16 {vr(B_vO,4)}, {vr(a,4)}, {vr(vBuf+4*idx,4)}, {c}")

srd(sW, pBwq, 512 * 8192)
e(f"v_lshlrev_b32 v{vT+1}, 18, v{vG}")
e(f"v_lshl_or_b32 v{vT+1}, v{vN}, 4, v{vT+1}")
e(f"s_lshl_b32 s{sT0}, s{sWave}, 20")
e(f"s_lshl_b32 s{sT1}, s2, 8")
e(f"s_add_u32 s{sT0}, s{sT0}, s{sT1}")
gen = rowsum128(34, 13, "BQ")
next(gen)
e("s_waitcnt vmcnt(16)")
for _ in gen: pass
e(f"v_lshlrev_b32 v{vT}, 5, v{vN}")
e(f"v_lshl_or_b32 v{vT}, v{vG}, 4, v{vT}")
e(f"s_lshl_b32 s{sT0}, s{sWave}, 9")
e(f"v_add_u32 v{vT}, s{sT0}, v{vT}")
nop(8)
e("s_mov_b32 exec_hi, 0")
e(f"ds_write_b128 v{vT}, {vr(B_vO,4)} offset:{LDS_O}")
e("s_mov_b64 exec, -1")
e("s_waitcnt lgkmcnt(0)")
e("s_barrier")

def B_issueK(b):
    for t in range(4):
        e(f"buffer_load_dwordx4 {vr(vBuf+32*b+4*t,4)}, v{vOffK}, {sr(sK,4)}, s{sOff+b} offen offset:{1024*t} nt")
def B_issueV(b, ts=range(4)):
    for t in ts:
        e(f"buffer_load_dwordx4 {vr(vBuf+32*b+16+4*t,4)}, v{vOffV}, {sr(sV,4)}, s{sOff+b} offen offset:{1024*t} nt")
def B_prefetch():
    e(f"s_lshl_b32 s{sStat}, s{sWave}, 12")
    for b in range(NBf):
        e(f"s_mov_b32 s{sOff+b}, s{sStat}")
        e(f"s_add_u32 s{sStat}, s{sStat}, 0x4000")
        B_issueK(b)
        B_issueV(b)

e(f"s_cmp_lg_u32 s{sWave}, 0")
e("s_cbranch_scc1 B_NONLEADER")
e(f"v_lshlrev_b32 v{vT+1}, 3, v{vLane}")
for w in range(4):
    e(f"ds_read_b64 {vr(34+2*w,2)}, v{vT+1} offset:{LDS_O+512*w}")
e("s_waitcnt lgkmcnt(0)")
for i in range(2):
    e(f"v_add_f32 v{34+i}, v{34+i}, v{36+i}")
    e(f"v_add_f32 v{34+i}, v{34+i}, v{38+i}")
    e(f"v_add_f32 v{34+i}, v{34+i}, v{40+i}")
e(f"v_cvt_pk_bf16_f32 v{34}, v{34}, v{35}")
e(f"v_mov_b32 v{35}, s{sNonce}")
e(f"s_lshl_b32 s{sT0}, s2, 10")
e(f"s_add_u32 s{sT0}, s{sT0}, {hex(WS_QB)}")
e(f"buffer_store_dwordx2 {vr(34,2)}, v{vT+1}, {sr(sWS,4)}, s{sT0} offen sc1")
e(f"s_lshl_b32 s{sT0}, s{sH}, 12")
e(f"s_add_u32 s{sT0}, s{sT0}, {hex(WS_QB)}")
lab("B_QPOLL")
for j in range(4):
    e(f"buffer_load_dwordx2 {vr(36+2*j,2)}, v{vT+1}, {sr(sWS,4)}, s{sT0} offen offset:{1024*j} sc1")
e("s_waitcnt vmcnt(0)")
tag_check([37, 39, 41, 43], vT + 2, vT + 3)
e("s_cbranch_vccz B_QDONE")
e(f"s_add_u32 s{sCnt}, s{sCnt}, 1")
e(f"s_cmp_gt_u32 s{sCnt}, {hex(P.SPIN)}")
e("s_cbranch_scc1 B_QDONE")
e(f"s_sleep {P.SLEEP*4}")
e("s_branch B_QPOLL")
lab("B_QDONE")
e(f"v_lshlrev_b32 v{vT}, 2, v{vLane}")
for j in range(4):
    e(f"ds_write_b32 v{vT}, v{36+2*j} offset:{LDS_Q+256*j}")
e(f"v_mov_b32 v{vT+2}, 0")
e(f"ds_write_b32 v{vT+2}, v{35} offset:{LDS_NONCE}")
B_prefetch()
e("s_waitcnt lgkmcnt(0)")
e("s_branch B_QBAR")
lab("B_NONLEADER")
B_prefetch()
lab("B_QBAR")
e("s_barrier")
e(f"ds_read_b128 {vr(B_vQ,4)}, v{vOffK} offset:{LDS_Q}")
e(f"v_mov_b32 v{vT+2}, 0")
e(f"ds_read_b32 v{vTag}, v{vT+2} offset:{LDS_NONCE}")
vMa, vMb = 62, 63
e(f"v_and_b32 v{vT}, 1, v{vN}")
e(f"v_cmp_eq_u32 vcc, 1, v{vT}")
e(f"v_mov_b32 v{vT+1}, 0xffff")
e(f"v_mov_b32 v{vT+2}, 0xffff0000")
e(f"v_cndmask_b32 v{vT+1}, v{vT+1}, v{vT+2}, vcc")
e(f"v_and_b32 v{vT}, 2, v{vN}")
e(f"v_cmp_eq_u32 vcc, 0, v{vT}")
nop(2)
e(f"v_cndmask_b32 v{vMa}, 0, v{vT+1}, vcc")
e(f"v_cndmask_b32 v{vMb}, v{vT+1}, 0, vcc")
for i in range(12):
    e(f"v_mov_b32 v{vAop+i}, 0")
for i in range(8):
    e(f"v_mov_b32 v{B_vO+i}, 0")
e("s_waitcnt lgkmcnt(0)")
e(f"v_readfirstlane_b32 s{sNonce}, v{vTag}")
nop(2)
lab("B_LOOP")
rareB = []
for b in range(NBf):
    kb = vBuf + 32 * b
    vb = kb + 16
    cm(f"--- B body {b}")
    e(f"s_cmp_ge_u32 s{sOff+b}, {hex(BLIM)}")
    e("s_cbranch_scc1 B_EXIT")
    e(f"s_waitcnt vmcnt({8*NBf-4})")
    for t in range(4):
        e(f"v_mfma_f32_16x16x32_bf16 {vr(B_vS+4*t,4)}, {vr(kb+4*t,4)}, {vr(B_vQ,4)}, 0")
    e(f"s_mov_b32 s{sOff+b}, s{sStat}")
    e(f"s_add_u32 s{sStat}, s{sStat}, 0x4000")
    B_issueK(b)
    nop(2)
    s = vT
    for t in range(4):
        e(f"v_mov_b32_dpp v{s+t}, v{B_vS+4*t} quad_perm:[0,0,0,0] {DPPM}")
        for i in range(1, 4):
            e(f"v_add_f32_dpp v{s+t}, v{B_vS+4*t+i}, v{s+t} quad_perm:[{i},{i},{i},{i}] {DPPM}")
    for t in range(4):
        if P.MIMIC:
            e(f"v_cvt_pk_bf16_f32 v{s+t}, v{s+t}, v{s+t}")
            e(f"v_and_b32 v{s+t}, 0xffff0000, v{s+t}")
            e(f"v_mul_f32 v{s+t}, s{sScale}, v{s+t}")
            e(f"v_cvt_pk_bf16_f32 v{s+t}, v{s+t}, v{s+t}")
            e(f"v_and_b32 v{s+t}, 0xffff0000, v{s+t}")
        else:
            e(f"v_mul_f32 v{s+t}, s{sScale}, v{s+t}")
    e(f"v_max3_f32 v{s+4}, v{s}, v{s+1}, v{s+2}")
    e(f"v_max_f32 v{s+4}, v{s+4}, v{s+3}")
    e(f"v_cmp_gt_f32 vcc, v{s+4}, v{vM}")
    e(f"s_cbranch_vccnz B_RARE{b}")
    lab(f"B_BACK{b}")
    for t in range(4):
        e(f"v_fma_f32 v{s+t}, v{s+t}, s{sLog2e}, -v{vML}")
        e(f"v_exp_f32 v{s+t}, v{s+t}")
    nop(1)
    for t in range(4):
        e(f"v_add_f32 v{vL}, v{vL}, v{s+t}")
        e(f"v_cvt_pk_bf16_f32 v{s+t}, v{s+t}, v{s+t}")
    e(f"s_waitcnt vmcnt({8*NBf-4})")
    for t in range(4):
        sx = vAop + 6 * (t & 1)
        e(f"v_and_b32 v{sx+2}, v{s+t}, v{vMa}")
        e(f"v_and_b32 v{sx+3}, v{s+t}, v{vMb}")
        nop(2)
        e(f"v_mfma_f32_16x16x32_bf16 {vr(B_vO,4)}, {vr(sx+2,4)}, {vr(vb+4*t,4)}, {vr(B_vO,4)}")
        e(f"v_mfma_f32_16x16x32_bf16 {vr(B_vO+4,4)}, {vr(sx,4)}, {vr(vb+4*t,4)}, {vr(B_vO+4,4)}")
    B_issueV(b)
    rareB.append(b)
e("s_branch B_LOOP")
for b in rareB:
    s = vT
    lab(f"B_RARE{b}")
    x = s + 4
    allreduce_rows("v_max_f32", x, s + 5, s + 6)
    e(f"v_max_f32 v{x}, v{x}, v{vM}")
    e(f"v_mul_f32 v{s+5}, s{sLog2e}, v{x}")
    e(f"v_sub_f32 v{s+6}, v{vML}, v{s+5}")
    e(f"v_exp_f32 v{s+6}, v{s+6}")
    e(f"v_mov_b32 v{vM}, v{x}")
    e(f"v_mov_b32 v{vML}, v{s+5}")
    e(f"v_lshlrev_b32 v{s+5}, 4, v{vG}")
    e(f"ds_bpermute_b32 v{s+4}, v{s+5}, v{s+6}")
    e(f"v_mul_f32 v{vL}, v{vL}, v{s+6}")
    e("s_waitcnt lgkmcnt(0)")
    nop(8)
    for i in range(8):
        e(f"v_mul_f32 v{B_vO+i}, v{B_vO+i}, v{s+4}")
    e(f"s_branch B_BACK{b}")
lab("B_EXIT")
e("s_waitcnt vmcnt(0)")
allreduce_rows("v_add_f32", vL, vT, vT + 1)
e(f"v_lshlrev_b32 v{vT}, 5, v{vN}")
e(f"v_lshl_or_b32 v{vT}, v{vG}, 9, v{vT}")
e(f"s_lshl_b32 s{sT0}, s{sWave}, 11")
e(f"v_add_u32 v{vT}, s{sT0}, v{vT}")
e(f"ds_write_b128 v{vT}, {vr(B_vO,4)} offset:{LDS_O}")
e(f"ds_write_b128 v{vT}, {vr(B_vO+4,4)} offset:{LDS_O+16}")
e(f"v_lshrrev_b32 v{vT+1}, 2, v{vN}")
e(f"v_lshlrev_b32 v{vT+1}, 5, v{vT+1}")
e(f"s_lshl_b32 s{sT0}, s{sWave}, 3")
e(f"v_add_u32 v{vT+1}, s{sT0}, v{vT+1}")
e(f"v_mov_b32 v{vT+3}, v{vML}")
e(f"v_mov_b32 v{vT+4}, v{vL}")
e(f"ds_write_b64 v{vT+1}, {vr(vT+3,2)} offset:{LDS_ML}")
e("s_waitcnt lgkmcnt(0)")
e("s_barrier")
cm("wave j combines head j")
c0 = 34
e(f"s_lshl_b32 s{sT0}, s{sWave}, 5")
e(f"v_mov_b32 v{vT}, s{sT0}")
e(f"ds_read_b128 {vr(c0,4)}, v{vT} offset:{LDS_ML}")
e(f"ds_read_b128 {vr(c0+4,4)}, v{vT} offset:{LDS_ML+16}")
e(f"v_lshlrev_b32 v{vT+1}, 3, v{vLane}")
e(f"s_lshl_b32 s{sT0}, s{sWave}, 9")
e(f"v_add_u32 v{vT+1}, s{sT0}, v{vT+1}")
for w in range(4):
    e(f"ds_read_b64 {vr(c0+8+2*w,2)}, v{vT+1} offset:{LDS_O+2048*w}")
e("s_waitcnt lgkmcnt(0)")
e(f"v_max3_f32 v{vML}, v{c0}, v{c0+2}, v{c0+4}")
e(f"v_max_f32 v{vML}, v{vML}, v{c0+6}")
for w in range(4):
    e(f"v_sub_f32 v{c0+2*w}, v{c0+2*w}, v{vML}")
    e(f"v_exp_f32 v{c0+2*w}, v{c0+2*w}")
nop(1)
pb = c0 + 16
e(f"v_mul_f32 v{vL}, v{c0}, v{c0+1}")
e(f"v_mul_f32 v{pb}, v{c0}, v{c0+8}")
e(f"v_mul_f32 v{pb+2}, v{c0}, v{c0+9}")
for w in range(1, 4):
    e(f"v_fmac_f32 v{vL}, v{c0+2*w}, v{c0+2*w+1}")
    e(f"v_fmac_f32 v{pb}, v{c0+2*w}, v{c0+8+2*w}")
    e(f"v_fmac_f32 v{pb+2}, v{c0+2*w}, v{c0+9+2*w}")
e(f"v_mov_b32 v{pb+1}, s{sNonce}")
e(f"v_mov_b32 v{pb+3}, s{sNonce}")
e(f"v_mov_b32 v{pb+4}, v{vML}")
e(f"v_mov_b32 v{pb+5}, s{sNonce}")
e(f"v_mov_b32 v{pb+6}, v{vL}")
e(f"v_mov_b32 v{pb+7}, s{sNonce}")
e(f"s_lshl_b32 s{sT0}, s{sH}, 2")
e(f"s_add_u32 s{sT0}, s{sT0}, s{sWave}")
e(f"s_lshl_b32 s{sT0}, s{sT0}, 2")
e(f"s_add_u32 s{sT0}, s{sT0}, s{sS}")
e(f"s_lshl_b32 s{sT0}, s{sT0}, 11")
e(f"s_add_u32 s{sT0}, s{sT0}, {hex(WS_PB)}")
e(f"v_mov_b32 v{vT+3}, {hex(OOB)}")
e(f"v_cmp_eq_u32 vcc, 0, v{vLane}")
e(f"buffer_store_dwordx4 {vr(pb,4)}, v{vOffV}, {sr(sWS,4)}, s{sT0} offen sc1")
nop(1)
e(f"v_cndmask_b32 v{vT+2}, v{vT+3}, 0, vcc")
e(f"buffer_store_dwordx4 {vr(pb+4,4)}, v{vT+2}, {sr(sWS,4)}, s{sT0} offen offset:1024 sc1")
e(f"s_cmp_lg_u32 s{sWave}, 0")
e("s_cbranch_scc1 B_OBAR")
go = 22
gm = 38
e(f"s_lshl_b32 s{sT0}, s2, 13")
e(f"s_add_u32 s{sT0}, s{sT0}, {hex(WS_PB)}")
e(f"v_and_b32 v{vT}, 3, v{vLane}")
e(f"v_lshlrev_b32 v{vT}, 11, v{vT}")
e(f"v_add_u32 v{vT+1}, 4096, v{vOffV}")
nop(2)
lab("B_PPOLL")
for p in range(4):
    vo = vOffV if p < 2 else vT + 1
    e(f"buffer_load_dwordx4 {vr(go+4*p,4)}, v{vo}, {sr(sWS,4)}, s{sT0} offen offset:{2048*(p%2)} sc1")
e(f"buffer_load_dwordx4 {vr(gm,4)}, v{vT}, {sr(sWS,4)}, s{sT0} offen offset:1024 sc1")
e("s_waitcnt vmcnt(0)")
tag_check([go + 2 * i + 1 for i in range(8)] + [gm + 1, gm + 3], vT + 2, vT + 3)
e("s_cbranch_vccz B_PDONE")
e(f"s_add_u32 s{sCnt}, s{sCnt}, 1")
e(f"s_cmp_gt_u32 s{sCnt}, {hex(P.SPIN)}")
e("s_cbranch_scc1 B_PDONE")
e(f"s_sleep {P.SLEEP*4}")
e("s_branch B_PPOLL")
lab("B_PDONE")
e(f"v_mov_b32 v{vT+2}, v{gm}")
ror_reduce("v_max_f32", vT + 2, [1, 2])
e(f"v_sub_f32 v{vT+3}, v{gm}, v{vT+2}")
e(f"v_exp_f32 v{vT+3}, v{vT+3}")
nop(1)
e(f"v_mul_f32 v{vT+4}, v{vT+3}, v{gm+2}")
ror_reduce("v_add_f32", vT + 4, [1, 2])
e(f"v_rcp_f32 v{vT+4}, v{vT+4}")
e(f"v_mov_b32 v{vT+5}, 0")
e(f"v_mov_b32 v{vT+6}, 0")
for p in range(4):
    e(f"v_fmac_f32_dpp v{vT+5}, v{vT+3}, v{go+4*p} row_newbcast:{p} {DPPM}")
    e(f"v_fmac_f32_dpp v{vT+6}, v{vT+3}, v{go+4*p+2} row_newbcast:{p} {DPPM}")
e(f"v_mul_f32 v{vT+5}, v{vT+5}, v{vT+4}")
e(f"v_mul_f32 v{vT+6}, v{vT+6}, v{vT+4}")
e(f"v_cvt_pk_bf16_f32 v{vT+5}, v{vT+5}, v{vT+6}")
e(f"v_lshlrev_b32 v{vT}, 2, v{vLane}")
e(f"ds_write_b32 v{vT}, v{vT+5} offset:{LDS_OB}")
e("s_waitcnt lgkmcnt(0)")
lab("B_OBAR")
e("s_barrier")
e(f"v_lshrrev_b32 v{vT}, 2, v{vN}")
e(f"v_lshlrev_b32 v{vT}, 4, v{vT}")
e(f"v_lshl_or_b32 v{vT}, v{vG}, 6, v{vT}")
e(f"ds_read_b128 {vr(34,4)}, v{vT} offset:{LDS_OB}")
srd(sW, pBwo, 4096 * 1024)
e(f"v_lshlrev_b32 v{vT+1}, 15, v{vG}")
e(f"v_lshl_or_b32 v{vT+1}, v{vN}, 4, v{vT+1}")
e(f"s_lshl_b32 s{sT0}, s2, 17")
e(f"s_lshl_b32 s{sT1}, s{sWave}, 8")
e(f"s_add_u32 s{sT0}, s{sT0}, s{sT1}")
e("s_waitcnt vmcnt(0)")
gen = rowsum128(34, 10, "BW")
next(gen)
e("s_waitcnt lgkmcnt(0)")
for _ in gen: pass
e(f"v_lshlrev_b32 v{vT}, 6, v{vN}")
e(f"v_lshl_or_b32 v{vT}, v{vG}, 5, v{vT}")
e(f"v_mov_b32 v{vT+1}, {hex(OOB)}")
e(f"v_cmp_gt_u32 vcc, 32, v{vLane}")
e(f"s_lshl_b32 s{sT0}, s2, 12")
e(f"s_lshl_b32 s{sT1}, s{sWave}, 10")
e(f"s_add_u32 s{sT0}, s{sT0}, s{sT1}")
e(f"s_add_u32 s{sT0}, s{sT0}, {hex(WS_YB)}")
e(f"v_cndmask_b32 v{vT}, v{vT+1}, v{vT}, vcc")
nop(8)
yb = 34
for i in range(4):
    e(f"v_mov_b32 v{yb+2*i}, v{B_vO+i}")
    e(f"v_mov_b32 v{yb+2*i+1}, s{sNonce}")
e(f"buffer_store_dwordx4 {vr(yb,4)}, v{vT}, {sr(sWS,4)}, s{sT0} offen sc1")
e(f"buffer_store_dwordx4 {vr(yb+4,4)}, v{vT}, {sr(sWS,4)}, s{sT0} offen offset:16 sc1")
e(f"s_cmp_lg_u32 s{sWave}, 0")
e("s_cbranch_scc1 END")
e(f"v_and_b32 v{vT}, 7, v{vLane}")
e(f"v_lshlrev_b32 v{vT}, 4, v{vT}")
e(f"v_lshrrev_b32 v{vT+1}, 3, v{vLane}")
e(f"v_lshl_or_b32 v{vT}, v{vT+1}, 12, v{vT}")
e(f"s_lshl_b32 s{sT0}, s2, 7")
e(f"s_add_u32 s{sT0}, s{sT0}, {hex(WS_YB)}")
gy = 44
lab("B_YPOLL")
e(f"s_mov_b32 s{sT1}, s{sT0}")
for i in range(4):
    e(f"buffer_load_dwordx4 {vr(gy+4*i,4)}, v{vT}, {sr(sWS,4)}, s{sT1} offen sc1")
    if i < 3:
        e(f"s_add_u32 s{sT1}, s{sT1}, 0x8000")
e("s_waitcnt vmcnt(0)")
tag_check([gy + 2 * i + 1 for i in range(8)], vT + 2, vT + 3)
e("s_cbranch_vccz B_YDONE")
e(f"s_add_u32 s{sCnt}, s{sCnt}, 1")
e(f"s_cmp_gt_u32 s{sCnt}, {hex(P.SPIN)}")
e("s_cbranch_scc1 B_YDONE")
e(f"s_sleep {P.SLEEP*4}")
e("s_branch B_YPOLL")
lab("B_YDONE")
for c in (0, 2):
    e(f"v_add_f32 v{gy+c}, v{gy+c}, v{gy+4+c}")
    e(f"v_add_f32 v{gy+c}, v{gy+c}, v{gy+8+c}")
    e(f"v_add_f32 v{gy+c}, v{gy+c}, v{gy+12+c}")
ror_reduce("v_add_f32", gy, [8])
ror_reduce("v_add_f32", gy + 2, [8])
allreduce_rows("v_add_f32", gy, vT + 2, vT + 3)
allreduce_rows("v_add_f32", gy + 2, vT + 2, vT + 3)
e(f"v_cvt_pk_bf16_f32 v{gy}, v{gy}, v{gy+2}")
srd(sW, pOut, 2048)
e(f"v_mov_b32 v{vT+3}, {hex(OOB)}")
e(f"v_cmp_gt_u32 vcc, 8, v{vLane}")
e(f"v_lshlrev_b32 v{vT+2}, 2, v{vLane}")
e(f"s_lshl_b32 s{sT0}, s2, 5")
e(f"s_add_u32 s{sT0}, s{sT0}, 1024")
e(f"v_cndmask_b32 v{vT+2}, v{vT+3}, v{vT+2}, vcc")
e(f"buffer_store_dword v{gy}, v{vT+2}, {sr(sW,4)}, s{sT0} offen")
lab("END")
e("s_endpgm")

nvgpr = vBuf + 32 * max(P.NBUF, P.NBUFB, 2)
out += "\n".join(L) + "\n"
out += f""".section .rodata,"a"
.p2align 6
.amdhsa_kernel {KNAME}
  .amdhsa_next_free_vgpr {nvgpr}
  .amdhsa_next_free_sgpr 100
  .amdhsa_accum_offset {nvgpr}
  .amdhsa_group_segment_fixed_size 0
  .amdhsa_kernarg_size 104
  .amdhsa_user_sgpr_count 2
  .amdhsa_user_sgpr_kernarg_segment_ptr 1
  .amdhsa_system_sgpr_workgroup_id_x 1
.end_amdhsa_kernel
"""
open(sys.argv[1], "w").write(out)
print("wrote", sys.argv[1], "lines", len(L), "vgpr", nvgpr)
```

```python
import sys, struct

KNAME = "concat_heads__mha_block_cached__sliding_block_cached__decode_kernel"

class P:
    NBUF = 2
    NBUFB = 2
    J = 54
    NB = 32
    NA = 256
    MIMIC = 1
    STAMP = 0
    SLEEP = 1
    BWAIT = 1
    ROT = 0
    WARM = 0
    WOEARLY = 0
    NPRO = 1
    SLEEPQ = 1
    SLEEPP = 1
    SLEEPY = 1
    PW = 1
    SPIN = 0x40000

for a in sys.argv[2:]:
    k, v = a.split("=")
    setattr(P, k, int(v))

L = []
def e(s): L.append("    " + s)
def lab(s): L.append(s + ":")
def cm(s): L.append("    ; " + s)
def nop(n):
    while n > 0:
        k = min(n, 16)
        e(f"s_nop {k-1}")
        n -= k
def f32(x): return "0x%08x" % struct.unpack("<I", struct.pack("<f", x))[0]
def vr(b, n): return f"v[{b}:{b+n-1}]"
def sr(b, n): return f"s[{b}:{b+n-1}]"
DPPM = "row_mask:0xf bank_mask:0xf"

WS_CTR = 0x0
WS_QA = 0x10000
WS_PA = 0x80000
WS_YA = 0x100000
WS_QB = 0x180000
WS_PB = 0x1A0000
WS_YB = 0x200000
WS_STAMP = 0x300000
WS_SIZE = 0x400000
OOB = 0x40000000
CBASE = 16

sK, sV, sWS, sW, sX = 4, 8, 12, 16, 20
pAx, pAk, pAv, pAwq, pAwo, pBx, pBk, pBv, pBwq, pBwo, pOut, pDbg, pWs = [24 + 2 * i for i in range(13)]
sWave = 50; sH = 51; sS = 52; sT0 = 53; sT1 = 54; sNonce = 55; sJ = 56; sStat = 57
sScale = 58; sLog2e = 59; sOff = 60
sId = 68; sT2 = 69; sTm = 70
sDupLo = 74; sDupHi = 75; sCnt = 76; sMask = 78
sStampA = 80
sFlag = 77
sRot = 3

vLane, vOffK, vOffV, vCtr = 0, 1, 2, 3
vN, vG = 4, 5
vMask = 6
vM, vML, vL = 10, 11, 12
vT = 13
vTag = 20
vZ = 21
vAop = 22
vS = 34
vO = 50
vQ = 34 + 4
A_vS, A_vQ, A_vO, A_vClaim = 34, 38, 54, 58
B_vS, B_vQ, B_vO = 34, 50, 54
vBuf = 64

LDS_Q = 0
LDS_NONCE = 1024
LDS_FLAG = 1028
LDS_O = 2048
LDS_ML = 10240
LDS_OB = 10496
LDS_BYTES = 12288

def srd(dst, ptr, nrec, add_lo=None):
    if add_lo is None:
        e(f"s_mov_b32 s{dst}, s{ptr}")
        e(f"s_mov_b32 s{dst+1}, s{ptr+1}")
    else:
        e(f"s_add_u32 s{dst}, s{ptr}, s{add_lo}")
        e(f"s_addc_u32 s{dst+1}, s{ptr+1}, 0")
    e(f"s_mov_b32 s{dst+2}, {hex(nrec)}")
    e(f"s_mov_b32 s{dst+3}, 0x00020000")

def stamp(idx):
    if P.STAMP == 1 or (P.STAMP == 2 and idx == 0):
        e(f"s_memrealtime s[{sStampA+2*idx}:{sStampA+2*idx+1}]")

def stamp_store():
    e(f"v_mov_b32 v{vT+3}, {hex(OOB)}")
    e(f"v_cmp_eq_u32 vcc, 0, v{vLane}")
    nop(2)
    e(f"v_cndmask_b32 v{vT+2}, v{vT+3}, 0, vcc")
    e(f"s_memrealtime s[{sTm}:{sTm+1}]")
    e("s_waitcnt lgkmcnt(0)")
    for i in range(8):
        e(f"v_mov_b32 v{34+i}, s{sStampA+2*i}")
    e(f"v_mov_b32 v{42}, s{sTm}")
    e(f"s_getreg_b32 s{sT1}, hwreg(HW_REG_XCC_ID)")
    e(f"v_mov_b32 v{43}, s{sT1}")
    e(f"v_mov_b32 v{44}, s{sJ}")
    e(f"v_mov_b32 v{45}, s{sCnt}")
    e(f"s_lshl_b32 s{sT0}, s2, 6")
    e(f"s_add_u32 s{sT0}, s{sT0}, {hex(WS_STAMP)}")
    e(f"buffer_store_dwordx4 {vr(34,4)}, v{vT+2}, {sr(sWS,4)}, s{sT0} offen")
    e(f"buffer_store_dwordx4 {vr(38,4)}, v{vT+2}, {sr(sWS,4)}, s{sT0} offen offset:16")
    e(f"buffer_store_dwordx4 {vr(42,4)}, v{vT+2}, {sr(sWS,4)}, s{sT0} offen offset:32")

def stampw(idx):
    if P.STAMP == 2:
        e(f"s_memrealtime s[{sStampA+2*idx}:{sStampA+2*idx+1}]")

def allreduce_rows(op, x, a, b):
    e(f"v_mov_b32 v{a}, v{x}")
    e(f"v_mov_b32 v{b}, v{x}")
    nop(2)
    e(f"v_permlane16_swap_b32 v{a}, v{b}")
    nop(1)
    e(f"{op} v{x}, v{a}, v{b}")
    e(f"v_mov_b32 v{a}, v{x}")
    e(f"v_mov_b32 v{b}, v{x}")
    nop(2)
    e(f"v_permlane32_swap_b32 v{a}, v{b}")
    nop(1)
    e(f"{op} v{x}, v{a}, v{b}")

def ror_reduce(op, x, rors):
    for r in rors:
        nop(2)
        e(f"{op}_dpp v{x}, v{x}, v{x} row_ror:{r} {DPPM}")

def tag_check(tags, t0, t1):
    tags = list(tags)
    if len(tags) == 1:
        e(f"v_cmp_ne_u32 vcc, s{sNonce}, v{tags[0]}")
        return
    e(f"v_min_u32 v{t0}, v{tags[0]}, v{tags[1]}")
    e(f"v_max_u32 v{t1}, v{tags[0]}, v{tags[1]}")
    rest = tags[2:]
    while len(rest) >= 2:
        e(f"v_min3_u32 v{t0}, v{t0}, v{rest[0]}, v{rest[1]}")
        e(f"v_max3_u32 v{t1}, v{t1}, v{rest[0]}, v{rest[1]}")
        rest = rest[2:]
    if rest:
        e(f"v_min_u32 v{t0}, v{t0}, v{rest[0]}")
        e(f"v_max_u32 v{t1}, v{t1}, v{rest[0]}")
    e(f"v_cmp_ne_u32 vcc, s{sNonce}, v{t0}")
    e(f"v_cmp_ne_u32 s[{sMask}:{sMask+1}], s{sNonce}, v{t1}")
    e(f"s_or_b64 vcc, vcc, s[{sMask}:{sMask+1}]")

def masked_poll(name, loads, sleep):
    for (lt, tags, pre) in loads:
        if pre: e(pre)
        e(lt)
    lab(f"{name}_POLL")
    e("s_waitcnt vmcnt(0)")
    e(f"s_mov_b32 s{sT2}, 0")
    for k, (lt, tags, pre) in enumerate(loads):
        if pre: e(pre)
        e(f"v_cmp_ne_u32 vcc, s{sNonce}, v{tags[0]}")
        for t in tags[1:]:
            e(f"v_cmp_ne_u32 s[{sMask}:{sMask+1}], s{sNonce}, v{t}")
            e(f"s_or_b64 vcc, vcc, s[{sMask}:{sMask+1}]")
        e(f"s_cbranch_vccz {name}_S{k}")
        e("s_mov_b64 exec, vcc")
        e(lt)
        e("s_mov_b64 exec, -1")
        e(f"s_mov_b32 s{sT2}, 1")
        lab(f"{name}_S{k}")
    e(f"s_cmp_eq_u32 s{sT2}, 0")
    e(f"s_cbranch_scc1 {name}_DONE")
    e(f"s_add_u32 s{sCnt}, s{sCnt}, 1")
    e(f"s_cmp_gt_u32 s{sCnt}, {hex(P.SPIN)}")
    e(f"s_cbranch_scc1 {name}_DONE")
    if sleep: e(f"s_sleep {sleep}")
    e(f"s_branch {name}_POLL")
    lab(f"{name}_DONE")
    e("s_waitcnt vmcnt(0)")

def get_nonce(tag):
    lab(f"NONCE_{tag}")
    e("s_waitcnt vmcnt(0)")
    e(f"v_readfirstlane_b32 s{sNonce}, v{vTag}")
    e(f"s_cmp_lg_u32 s{sNonce}, 0")
    e(f"s_cbranch_scc1 NONCE_OK_{tag}")
    e(f"s_add_u32 s{sCnt}, s{sCnt}, 1")
    e(f"s_cmp_gt_u32 s{sCnt}, {hex(P.SPIN)}")
    e(f"s_cbranch_scc1 NONCE_OK_{tag}")
    e(f"s_sleep {P.SLEEP}")
    e(f"v_mov_b32 v{vT}, 0")
    e(f"buffer_load_dword v{vTag}, v{vT}, {sr(sX,4)}, 0 offen sc1")
    e(f"s_branch NONCE_{tag}")
    lab(f"NONCE_OK_{tag}")

def rowsum_mfma(pp, tt, setidx, breg, acc, first, masks=vMask):
    a = vAop + 4 * setidx
    for i in range(4):
        e(f"v_and_b32_dpp v{a+i}, v{pp}, v{masks+i} row_newbcast:{4*tt} {DPPM}")
    return a

hdr = open("concat_heads__mha_block_cached__sliding_block_cached__decode.s.ref").read().split("; Override launch")[0]
out = hdr
NWG = P.NB + P.NA
out += "; Override launch geometry by editing the next line (default: block=256,\n"
out += f"; @launch grid=({NWG},1,1) block=(256,1,1) lds={LDS_BYTES}\n"
out += '.amdgcn_target "amdgcn-amd-amdhsa--gfx950"\n.text\n'
out += f".globl {KNAME}\n.p2align 8\n.type {KNAME},@function\n{KNAME}:\n"

e(f"s_cmp_ge_u32 s2, {NWG}")
e("s_cbranch_scc1 END")
e("s_load_dwordx16 s[24:39], s[0:1], 0")
e("s_load_dwordx8 s[40:47], s[0:1], 64")
e("s_load_dwordx2 s[48:49], s[0:1], 96")
stamp(0)
e(f"v_lshrrev_b32 v{vT}, 6, v0")
e(f"v_and_b32 v{vLane}, 63, v0")
e(f"v_readfirstlane_b32 s{sWave}, v{vT}")
e(f"v_and_b32 v{vN}, 15, v{vLane}")
e(f"v_lshrrev_b32 v{vG}, 4, v{vLane}")
e(f"v_lshrrev_b32 v{vT}, 2, v{vN}")
e(f"v_lshlrev_b32 v{vOffK}, 8, v{vT}")
e(f"v_lshl_or_b32 v{vOffK}, v{vG}, 6, v{vOffK}")
e(f"v_and_b32 v{vT}, 3, v{vN}")
e(f"v_lshl_or_b32 v{vOffK}, v{vT}, 4, v{vOffK}")
e(f"v_lshlrev_b32 v{vOffV}, 4, v{vLane}")
e(f"v_mov_b32 v{vT}, {hex(OOB)}")
e(f"v_cmp_eq_u32 vcc, 0, v{vLane}")
nop(2)
e(f"v_cndmask_b32 v{vCtr}, v{vT}, 0, vcc")
def lane_consts():
    e(f"v_and_b32 v{vT}, 1, v{vN}")
    e(f"v_cmp_eq_u32 vcc, 1, v{vT}")
    e(f"v_mov_b32 v{vT+1}, 0xffff")
    e(f"v_mov_b32 v{vT+2}, 0xffff0000")
    e(f"v_cndmask_b32 v{vT+1}, v{vT+1}, v{vT+2}, vcc")
    e(f"v_lshrrev_b32 v{vT}, 1, v{vN}")
    for i in range(4):
        e(f"v_cmp_eq_u32 vcc, {i}, v{vT}")
        nop(2)
        e(f"v_cndmask_b32 v{vMask+i}, 0, v{vT+1}, vcc")
    e(f"s_mov_b32 s{sScale}, {f32(128 ** -0.5)}")
    e(f"s_mov_b32 s{sLog2e}, {f32(1.4426950408889634)}")
    e(f"s_mov_b32 s{sCnt}, 0")
    e(f"s_mov_b32 s{sDupLo}, 0x01000100")
    e(f"s_mov_b32 s{sDupHi}, 0x03020302")
    e(f"v_mov_b32 v{vM}, 0xff800000")
    e(f"v_mov_b32 v{vML}, 0xff800000")
    e(f"v_mov_b32 v{vL}, 0")
e("s_waitcnt lgkmcnt(0)")
srd(sWS, pWs, WS_SIZE)
srd(sX, pDbg, 256)
e("s_cmp_lg_u32 s2, 0")
e("s_cbranch_scc1 NO_NONCE_WRITE")
e(f"s_cmp_lg_u32 s{sWave}, 0")
e("s_cbranch_scc1 NO_NONCE_WRITE")
e(f"s_memrealtime s[{sTm}:{sTm+1}]")
e("s_waitcnt lgkmcnt(0)")
e(f"s_or_b32 s{sT0}, s{sTm}, 1")
e(f"v_mov_b32 v{vT}, s{sT0}")
e(f"buffer_store_dword v{vT}, v{vCtr}, {sr(sX,4)}, 0 offen sc1")
lab("NO_NONCE_WRITE")
e(f"s_cmp_lt_u32 s2, {P.NB}")
e("s_cbranch_scc1 B_PATH")

N = P.NBUF
NPRO = max(P.NPRO, N)
J = P.J
assert J > NPRO + 2 * N + 2 and P.PW <= NPRO
LIMIT = 0x800000
e(f"s_sub_u32 s{sId}, s2, {P.NB}")
e(f"s_lshr_b32 s{sH}, s{sId}, 3")
e(f"s_and_b32 s{sS}, s{sId}, 7")
e(f"s_lshl_b32 s{sT0}, s{sS}, 2")
e(f"s_add_u32 s{sH}, s{sH}, s{sT0}")
e(f"s_and_b32 s{sH}, s{sH}, 31")
e(f"s_lshl_b32 s{sId}, s{sH}, 3")
e(f"s_add_u32 s{sId}, s{sId}, s{sS}")
e(f"s_lshl_b32 s{sT0}, s{sH}, 23")
srd(sK, pAk, LIMIT, sT0)
srd(sV, pAv, LIMIT, sT0)
e(f"s_lshl_b32 s{sT0}, s{sH}, 8")
e(f"v_add_u32 v{vCtr}, s{sT0}, v{vCtr}")
e(f"s_lshl_b32 s{sT0}, s{sS}, 2")
e(f"s_add_u32 s{sT0}, s{sT0}, s{sWave}")
e(f"s_lshl_b32 s{sStat}, s{sT0}, 12")
e(f"s_mov_b32 s{sJ}, 0")
e(f"s_mul_i32 s{sRot}, s{sH}, {hex(P.ROT*4096)}")

def A_issueK(b):
    for t in range(4):
        e(f"buffer_load_dwordx4 {vr(vBuf+32*b+4*t,4)}, v{vOffK}, {sr(sK,4)}, s{sOff+b} offen offset:{1024*t} nt")
def A_issueV(b, ts=range(4)):
    for t in ts:
        e(f"buffer_load_dwordx4 {vr(vBuf+32*b+16+4*t,4)}, v{vOffV}, {sr(sV,4)}, s{sOff+b} offen offset:{1024*t} nt")
vWo = (vBuf + 32 * max(N, NPRO)) if P.WOEARLY else vBuf
def A_wo_loads():
    cm("leader: issue wo slice loads: load t': lane (n,g) row 16(2g+(n>>3)) + t', cols 64s + 8(n&7)")
    srd(sW, pAwo, 4096 * 1024)
    e(f"v_lshrrev_b32 v{vT}, 3, v{vN}")
    e(f"v_lshl_or_b32 v{vT}, v{vG}, 1, v{vT}")
    e(f"v_lshlrev_b32 v{vT}, 14, v{vT}")
    e(f"v_and_b32 v{vT+1}, 7, v{vN}")
    e(f"v_lshl_or_b32 v{vT}, v{vT+1}, 4, v{vT}")
    e(f"s_lshl_b32 s{sT0}, s{sH}, 17")
    e(f"s_lshl_b32 s{sT1}, s{sS}, 7")
    e(f"s_add_u32 s{sT0}, s{sT0}, s{sT1}")
    for t in range(16):
        if t % 4 == 0 and t > 0:
            e(f"s_add_u32 s{sT0}, s{sT0}, 4096")
        e(f"buffer_load_dwordx4 {vr(vWo+4*t,4)}, v{vT}, {sr(sW,4)}, s{sT0} offen offset:{1024*(t%4)} nt")
def stat_off(b):
    if P.ROT:
        e(f"s_add_u32 s{sOff+b}, s{sStat}, s{sRot}")
        e(f"s_and_b32 s{sOff+b}, s{sOff+b}, {hex(LIMIT-1)}")
    else:
        e(f"s_mov_b32 s{sOff+b}, s{sStat}")
def A_slot(b):
    stat_off(b)
    e(f"s_add_u32 s{sStat}, s{sStat}, 0x20000")
    A_issueK(b)
    A_issueV(b)
def read_flag():
    e(f"v_mov_b32 v{vT}, 0")
    e(f"ds_read_b32 v{vT+1}, v{vT} offset:{LDS_FLAG}")
    e("s_waitcnt lgkmcnt(0)")
    e(f"v_readfirstlane_b32 s{sFlag}, v{vT+1}")

cm("x (ushort) + 4 wq loads per wave, issued before anything else")
srd(sW, pAx, 1024)
e(f"v_lshrrev_b32 v{vT}, 2, v{vN}")
e(f"v_lshlrev_b32 v{vT}, 3, v{vT}")
e(f"v_lshl_or_b32 v{vT}, v{vG}, 1, v{vT}")
e(f"s_lshl_b32 s{sT0}, s{sS}, 7")
e(f"s_lshl_b32 s{sT1}, s{sWave}, 5")
e(f"s_add_u32 s{sT0}, s{sT0}, s{sT1}")
e(f"buffer_load_ushort v{vZ}, v{vT}, {sr(sW,4)}, s{sT0} offen")
e(f"v_lshlrev_b32 v{vT+1}, 13, v{vG}")
e(f"v_lshl_or_b32 v{vT+1}, v{vN}, 4, v{vT+1}")
srd(sW, pAwq, 512 * 8192)
e(f"s_lshl_b32 s{sT0}, s{sT0}, 12")
e(f"s_lshl_b32 s{sT1}, s{sH}, 8")
e(f"s_add_u32 s{sT0}, s{sT0}, s{sT1}")
wqb = A_vS
for tt in range(4):
    e(f"buffer_load_dwordx4 {vr(wqb+4*tt,4)}, v{vT+1}, {sr(sW,4)}, s{sT0} offen nt")
    if tt < 3:
        e(f"s_add_u32 s{sT0}, s{sT0}, 0x8000")
e(f"s_cmp_lg_u32 s{sWave}, 0")
e("s_cbranch_scc1 A_NONLEADER0")
cm("leader: nonce load, counter init")
e(f"v_mov_b32 v{vT}, 0")
e(f"buffer_load_dword v{vTag}, v{vT}, {sr(sX,4)}, 0 offen sc1")
if P.WARM:
    e(f"buffer_load_dword v{vT+6}, v{vCtr}, {sr(sWS,4)}, 0 offen offset:128 sc1")
e(f"s_cmp_lg_u32 s{sS}, 0")
e("s_cbranch_scc1 A_NOCTR")
e(f"v_mov_b32 v{vT+5}, {CBASE}")
e(f"buffer_store_dword v{vT+5}, v{vCtr}, {sr(sWS,4)}, 0 offen sc1")
lab("A_NOCTR")
e("s_branch A_COMMON0")
lab("A_NONLEADER0")
for b in range(P.PW):
    A_slot(b)
e(f"v_mov_b32 v{vT}, 0")
e(f"ds_write_b32 v{vT}, v{vT} offset:{LDS_FLAG}")
lab("A_COMMON0")
lane_consts()
e(f"s_mov_b32 s{sFlag}, 0")
e(f"s_cmp_eq_u32 s{sWave}, 0")
e("s_cbranch_scc1 A_LW")
e(f"s_waitcnt vmcnt({8*P.PW})")
e("s_branch A_QMFMA")
lab("A_LW")
e(f"s_waitcnt vmcnt({2 if P.WARM else 1})")
lab("A_QMFMA")
e(f"v_lshl_or_b32 v{vZ}, v{vZ}, 16, v{vZ}")
nop(2)
a0 = rowsum_mfma(vZ, 0, 0, None, None, None)
a1 = rowsum_mfma(vZ, 1, 1, None, None, None)
e(f"v_mfma_f32_16x16x32_bf16 {vr(A_vO,4)}, {vr(a0,4)}, {vr(wqb,4)}, 0")
rowsum_mfma(vZ, 2, 0, None, None, None)
e(f"v_mfma_f32_16x16x32_bf16 {vr(A_vO,4)}, {vr(a1,4)}, {vr(wqb+4,4)}, {vr(A_vO,4)}")
rowsum_mfma(vZ, 3, 1, None, None, None)
e(f"v_mfma_f32_16x16x32_bf16 {vr(A_vO,4)}, {vr(a0,4)}, {vr(wqb+8,4)}, {vr(A_vO,4)}")
nop(1)
e(f"v_mfma_f32_16x16x32_bf16 {vr(A_vO,4)}, {vr(a1,4)}, {vr(wqb+12,4)}, {vr(A_vO,4)}")
e(f"v_lshlrev_b32 v{vT}, 5, v{vN}")
e(f"v_lshl_or_b32 v{vT}, v{vG}, 4, v{vT}")
e(f"s_lshl_b32 s{sT0}, s{sWave}, 9")
e(f"v_add_u32 v{vT+1}, s{sT0}, v{vT}")
e(f"s_cmp_eq_u32 s{sWave}, 0")
e("s_cbranch_scc1 A_LEADER1")
nop(3)
e("s_mov_b32 exec_hi, 0")
e(f"ds_write_b128 v{vT+1}, {vr(A_vO,4)} offset:{LDS_O}")
e("s_mov_b64 exec, -1")
e("s_waitcnt lgkmcnt(0)")
e("s_barrier")
e("s_branch A_PACE")
lab("A_LEADER1")
e("s_barrier")
for w in range(1, 4):
    e(f"ds_read_b128 {vr(wqb+4*w,4)}, v{vT} offset:{LDS_O+512*w}")
stamp(3)
get_nonce("A")
e("s_waitcnt lgkmcnt(0)")
for w in range(1, 4):
    for i in range(4):
        e(f"v_add_f32 v{A_vO+i}, v{A_vO+i}, v{wqb+4*w+i}")
e(f"v_lshlrev_b32 v{vT}, 6, v{vN}")
e(f"v_lshl_or_b32 v{vT}, v{vG}, 5, v{vT}")
e(f"v_mov_b32 v{vT+1}, {hex(OOB)}")
e(f"v_cmp_gt_u32 vcc, 32, v{vLane}")
e(f"s_lshl_b32 s{sT0}, s{sId}, 10")
e(f"s_add_u32 s{sT0}, s{sT0}, {hex(WS_QA)}")
e(f"v_cndmask_b32 v{vT}, v{vT+1}, v{vT}, vcc")
b0 = vBuf
for i in range(4):
    e(f"v_mov_b32 v{b0+2*i}, v{A_vO+i}")
    e(f"v_mov_b32 v{b0+2*i+1}, s{sNonce}")
e(f"buffer_store_dwordx4 {vr(b0,4)}, v{vT}, {sr(sWS,4)}, s{sT0} offen sc1")
e(f"buffer_store_dwordx4 {vr(b0+4,4)}, v{vT}, {sr(sWS,4)}, s{sT0} offen offset:16 sc1")
e(f"v_and_b32 v{vT}, 1, v{vG}")
e(f"v_lshlrev_b32 v{vT}, 5, v{vT}")
e(f"v_lshl_or_b32 v{vT}, v{vN}, 6, v{vT}")
e(f"v_lshrrev_b32 v{vT+1}, 5, v{vLane}")
e(f"v_lshl_or_b32 v{vT}, v{vT+1}, 12, v{vT}")
e(f"s_lshl_b32 s{sT0}, s{sH}, 13")
e(f"s_add_u32 s{sT0}, s{sT0}, {hex(WS_QA)}")
g0 = vBuf + 8
lds_ = []
for k in range(4):
    lds_.append((f"buffer_load_dwordx4 {vr(g0+8*k,4)}, v{vT}, {sr(sWS,4)}, s{sT0} offen offset:{1024*k} sc1", [g0+8*k+1, g0+8*k+3], None))
    lds_.append((f"buffer_load_dwordx4 {vr(g0+8*k+4,4)}, v{vT}, {sr(sWS,4)}, s{sT0} offen offset:{1024*k+16} sc1", [g0+8*k+5, g0+8*k+7], None))
masked_poll("A_Q", lds_, P.SLEEPQ)
stamp(5)
for i in range(4):
    e(f"v_add_f32 v{A_vO+i}, v{g0+2*i}, v{g0+8+2*i}")
    e(f"v_add_f32 v{A_vO+i}, v{A_vO+i}, v{g0+16+2*i}")
    e(f"v_add_f32 v{A_vO+i}, v{A_vO+i}, v{g0+24+2*i}")
for b in range(N):
    A_slot(b)
e(f"s_mov_b32 s{sJ}, {N}")
for i in range(4):
    e(f"v_mov_b32 v{A_vS+i}, v{A_vO+i}")
nop(2)
for i in range(4):
    e(f"v_permlane32_swap_b32 v{A_vS+i}, v{A_vO+i}")
nop(1)
for i in range(4):
    e(f"v_add_f32 v{A_vO+i}, v{A_vS+i}, v{A_vO+i}")
e(f"v_cvt_pk_bf16_f32 v{A_vS}, v{A_vO}, v{A_vO+1}")
e(f"v_cvt_pk_bf16_f32 v{A_vS+1}, v{A_vO+2}, v{A_vO+3}")
e(f"v_and_b32 v{vT}, 1, v{vG}")
e(f"v_lshlrev_b32 v{vT}, 3, v{vT}")
e(f"v_lshl_or_b32 v{vT}, v{vN}, 4, v{vT}")
e(f"ds_write_b64 v{vT}, {vr(A_vS,2)} offset:{LDS_Q}")
e(f"v_mov_b32 v{vT}, 0")
e(f"v_mov_b32 v{vT+1}, 1")
e("s_waitcnt lgkmcnt(0)")
e(f"ds_write_b32 v{vT}, v{vT+1} offset:{LDS_FLAG}")
if P.WOEARLY == 1:
    A_wo_loads()
    e("s_waitcnt vmcnt(0)")
e("s_branch A_QGO")
lab("A_PACE")
cm("paced prefetch of the remaining slots while q is being exchanged")
if P.PW == 0:
    lab("A_QSPIN0")
    read_flag()
    e(f"s_cmp_eq_u32 s{sFlag}, 0")
    e("s_cbranch_scc1 A_QSPIN0")
for b in range(P.PW, NPRO):
    e(f"s_cmp_lg_u32 s{sFlag}, 0")
    e(f"s_cbranch_scc1 A_PGO{b}")
    e(f"s_waitcnt vmcnt({8*max(P.PW-1,0)})")
    stampw(b)
    read_flag()
    lab(f"A_PGO{b}")
    A_slot(b)
e(f"s_mov_b32 s{sJ}, {NPRO}")
lab("A_QSPIN")
e(f"s_cmp_lg_u32 s{sFlag}, 0")
e("s_cbranch_scc1 A_QGO")
read_flag()
e(f"s_add_u32 s{sCnt}, s{sCnt}, 1")
e(f"s_cmp_gt_u32 s{sCnt}, {hex(0x4000000)}")
e("s_cbranch_scc1 A_QGO")
e("s_branch A_QSPIN")
lab("A_QGO")
stampw(4)
e(f"s_mov_b32 s{sCnt}, 0")
e(f"v_and_b32 v{vT}, 3, v{vN}")
e(f"v_lshlrev_b32 v{vT}, 4, v{vT}")
e(f"v_lshl_or_b32 v{vT}, v{vG}, 6, v{vT}")
e(f"ds_read_b128 {vr(A_vS,4)}, v{vT} offset:{LDS_Q}")
e(f"v_lshrrev_b32 v{vT+1}, 2, v{vN}")
for i in range(4):
    e(f"v_mov_b32 v{A_vO+i}, 0")
e("s_waitcnt lgkmcnt(0)")
for t in range(4):
    e(f"v_cmp_eq_u32 vcc, {t}, v{vT+1}")
    nop(2)
    for i in range(4):
        e(f"v_cndmask_b32 v{A_vQ+4*t+i}, 0, v{A_vS+i}, vcc")
nop(2)

rare = []
def A_body(b, tag, kwait, vwait, refill, exitcheck, cl=0):
    kb = vBuf + 32 * b
    vb = kb + 16
    cm(f"--- A body {tag}")
    if exitcheck:
        e(f"s_cmp_ge_u32 s{sOff+b}, {hex(LIMIT)}")
        e("s_cbranch_scc1 A_EXIT")
    e(f"s_waitcnt vmcnt({kwait})")
    for t in range(4):
        c = "0" if t == 0 else vr(A_vS, 4)
        e(f"v_mfma_f32_16x16x32_bf16 {vr(A_vS,4)}, {vr(kb+4*t,4)}, {vr(A_vQ+4*t,4)}, {c}")
    if refill:
        e(f"s_cmp_lt_u32 s{sJ}, {J}")
        e(f"s_cbranch_scc1 A_STAT{tag}")
        e(f"v_readfirstlane_b32 s{sT0}, v{A_vClaim+cl}")
        e(f"s_cmp_lg_u32 s{sT0}, 1")
        e(f"s_cbranch_scc1 A_CLOK{tag}")
        e("s_waitcnt vmcnt(0)")
        e(f"v_readfirstlane_b32 s{sT0}, v{A_vClaim+cl}")
        lab(f"A_CLOK{tag}")
        e(f"s_min_u32 s{sT0}, s{sT0}, 0x10000")
        e(f"s_lshl_b32 s{sT0}, s{sT0}, 12")
        e(f"s_add_u32 s{sT0}, s{sT0}, {hex(J*0x20000 - CBASE*4096)}")
        if P.ROT:
            e(f"s_add_u32 s{sT1}, s{sT0}, s{sRot}")
            e(f"s_and_b32 s{sT1}, s{sT1}, {hex(LIMIT-1)}")
            e(f"s_cmp_lt_u32 s{sT0}, {hex(LIMIT)}")
            e(f"s_cselect_b32 s{sOff+b}, s{sT1}, {hex(OOB)}")
        else:
            e(f"s_cmp_lt_u32 s{sT0}, {hex(LIMIT)}")
            e(f"s_cselect_b32 s{sOff+b}, s{sT0}, {hex(OOB)}")
        e(f"s_cmp_lt_u32 s{sJ}, 0x1000")
        e(f"s_cselect_b32 s{sOff+b}, s{sOff+b}, {hex(OOB)}")
        e(f"s_branch A_JOIN{tag}")
        lab(f"A_STAT{tag}")
        stat_off(b)
        e(f"s_add_u32 s{sStat}, s{sStat}, 0x20000")
        lab(f"A_JOIN{tag}")
        e(f"s_add_u32 s{sJ}, s{sJ}, 1")
        A_issueK(b)
        nop(2)
    else:
        nop(8)
    s = vT
    e(f"v_mov_b32_dpp v{s}, v{A_vS} quad_perm:[0,0,0,0] {DPPM}")
    for i in range(1, 4):
        e(f"v_add_f32_dpp v{s}, v{A_vS+i}, v{s} quad_perm:[{i},{i},{i},{i}] {DPPM}")
    if P.MIMIC:
        e(f"v_cvt_pk_bf16_f32 v{s}, v{s}, v{s}")
        e(f"v_and_b32 v{s}, 0xffff0000, v{s}")
        e(f"v_mul_f32 v{s}, s{sScale}, v{s}")
        e(f"v_cvt_pk_bf16_f32 v{s}, v{s}, v{s}")
        e(f"v_and_b32 v{s}, 0xffff0000, v{s}")
    else:
        e(f"v_mul_f32 v{s}, s{sScale}, v{s}")
    e(f"v_cmp_gt_f32 vcc, v{s}, v{vM}")
    e(f"s_cbranch_vccnz A_RARE{tag}")
    lab(f"A_BACK{tag}")
    e(f"v_fma_f32 v{s+1}, v{s}, s{sLog2e}, -v{vML}")
    e(f"v_exp_f32 v{s+1}, v{s+1}")
    nop(1)
    e(f"v_cvt_pk_bf16_f32 v{s+2}, v{s+1}, v{s+1}")
    e(f"v_add_f32 v{vL}, v{vL}, v{s+1}")
    e(f"s_waitcnt vmcnt({vwait})")
    pp = s + 2
    a0 = rowsum_mfma(pp, 0, 0, None, None, None)
    a1 = rowsum_mfma(pp, 1, 1, None, None, None)
    e(f"v_mfma_f32_16x16x32_bf16 {vr(A_vO,4)}, {vr(a0,4)}, {vr(vb,4)}, {vr(A_vO,4)}")
    rowsum_mfma(pp, 2, 0, None, None, None)
    e(f"v_mfma_f32_16x16x32_bf16 {vr(A_vO,4)}, {vr(a1,4)}, {vr(vb+4,4)}, {vr(A_vO,4)}")
    rowsum_mfma(pp, 3, 1, None, None, None)
    e(f"v_mfma_f32_16x16x32_bf16 {vr(A_vO,4)}, {vr(a0,4)}, {vr(vb+8,4)}, {vr(A_vO,4)}")
    if refill: A_issueV(b, [0, 1])
    else: nop(2)
    e(f"v_mfma_f32_16x16x32_bf16 {vr(A_vO,4)}, {vr(a1,4)}, {vr(vb+12,4)}, {vr(A_vO,4)}")
    if refill:
        A_issueV(b, [2, 3])
        e(f"s_cmp_lt_u32 s{sJ}, {J-1}")
        e(f"s_cbranch_scc1 A_NOCLAIM{tag}")
        e(f"v_mov_b32 v{A_vClaim+cl}, 1")
        e(f"buffer_atomic_add v{A_vClaim+cl}, v{vCtr}, {sr(sWS,4)}, 0 offen sc0")
        lab(f"A_NOCLAIM{tag}")
    rare.append(tag)

if NPRO > N:
    e(f"s_cmp_eq_u32 s{sWave}, 0")
    e("s_cbranch_scc1 A_LOOP")
    for b in range(NPRO):
        base = 8 * (NPRO - 1 - b) + 8 * min(b, N)
        A_body(b, f"P{b}", 4 + base, base + (4 if b < N else 0), b < N, False, 0)
lab("A_LOOP")
if P.STAMP == 2:
    for k, jj in ((5, 8), (6, 12), (7, 20)):
        e(f"s_cmp_lg_u32 s{sJ}, {jj}")
        e(f"s_cbranch_scc1 A_ST{k}")
        stampw(k)
        lab(f"A_ST{k}")
U = N if N % 2 == 0 else 2 * N
for k in range(U):
    A_body(k % N, f"L{k}", 8 * N - 4, 8 * N - 4, True, True, k % 2)
e("s_branch A_LOOP")
for tag in rare:
    s = vT
    lab(f"A_RARE{tag}")
    x = s + 3
    e(f"v_mov_b32 v{x}, v{s}")
    ror_reduce("v_max_f32", x, [4, 8])
    allreduce_rows("v_max_f32", x, s + 4, s + 5)
    e(f"v_mul_f32 v{s+4}, s{sLog2e}, v{x}")
    e(f"v_sub_f32 v{s+5}, v{vML}, v{s+4}")
    e(f"v_exp_f32 v{s+5}, v{s+5}")
    e(f"v_mov_b32 v{vM}, v{x}")
    e(f"v_mov_b32 v{vML}, v{s+4}")
    nop(8)
    e(f"v_mul_f32 v{vL}, v{vL}, v{s+5}")
    for i in range(4):
        e(f"v_mul_f32 v{A_vO+i}, v{A_vO+i}, v{s+5}")
    e(f"s_branch A_BACK{tag}")

lab("A_EXIT")
e("s_waitcnt vmcnt(0)")
stamp(6)
if not P.WOEARLY:
    e(f"s_cmp_lg_u32 s{sWave}, 0")
    e("s_cbranch_scc1 A_NOWO")
    A_wo_loads()
    lab("A_NOWO")
ror_reduce("v_add_f32", vL, [4, 8])
allreduce_rows("v_add_f32", vL, vT, vT + 1)
e(f"v_lshlrev_b32 v{vT}, 5, v{vN}")
e(f"v_lshl_or_b32 v{vT}, v{vG}, 4, v{vT}")
e(f"s_lshl_b32 s{sT0}, s{sWave}, 9")
e(f"v_add_u32 v{vT}, s{sT0}, v{vT}")
e(f"s_lshl_b32 s{sT0}, s{sWave}, 3")
e(f"v_mov_b32 v{vT+1}, s{sT0}")
e("s_mov_b32 exec_hi, 0")
e(f"ds_write_b128 v{vT}, {vr(A_vO,4)} offset:{LDS_O}")
e("s_mov_b64 exec, -1")
assert (vT + 3) % 2 == 0
e(f"v_mov_b32 v{vT+3}, v{vML}")
e(f"v_mov_b32 v{vT+4}, v{vL}")
e(f"ds_write_b64 v{vT+1}, {vr(vT+3,2)} offset:{LDS_ML}")
e("s_waitcnt lgkmcnt(0)")
e("s_barrier")
if P.STAMP == 2:
    e(f"s_cmp_lg_u32 s{sWave}, 1")
    e("s_cbranch_scc1 A_NS")
    stamp_store()
    lab("A_NS")
e(f"s_cmp_lg_u32 s{sWave}, 0")
e("s_cbranch_scc1 END")
cm("leader: combine 4 waves")
stamp(1)
c0 = A_vS
e(f"v_mov_b32 v{vT}, 0")
e(f"ds_read_b128 {vr(c0,4)}, v{vT} offset:{LDS_ML}")
e(f"ds_read_b128 {vr(c0+4,4)}, v{vT} offset:{LDS_ML+16}")
e(f"v_lshlrev_b32 v{vT+1}, 3, v{vLane}")
for w in range(4):
    e(f"ds_read_b64 {vr(c0+8+2*w,2)}, v{vT+1} offset:{LDS_O+512*w}")
e("s_waitcnt lgkmcnt(0)")
e(f"v_max3_f32 v{vML}, v{c0}, v{c0+2}, v{c0+4}")
e(f"v_max_f32 v{vML}, v{vML}, v{c0+6}")
for w in range(4):
    e(f"v_sub_f32 v{c0+2*w}, v{c0+2*w}, v{vML}")
    e(f"v_exp_f32 v{c0+2*w}, v{c0+2*w}")
nop(1)
pb = c0 + 16
e(f"v_mul_f32 v{vL}, v{c0}, v{c0+1}")
e(f"v_mul_f32 v{pb}, v{c0}, v{c0+8}")
e(f"v_mul_f32 v{pb+2}, v{c0}, v{c0+9}")
for w in range(1, 4):
    e(f"v_fmac_f32 v{vL}, v{c0+2*w}, v{c0+2*w+1}")
    e(f"v_fmac_f32 v{pb}, v{c0+2*w}, v{c0+8+2*w}")
    e(f"v_fmac_f32 v{pb+2}, v{c0+2*w}, v{c0+9+2*w}")
e(f"v_mov_b32 v{pb+1}, s{sNonce}")
e(f"v_mov_b32 v{pb+3}, s{sNonce}")
e(f"v_mov_b32 v{pb+4}, v{vML}")
e(f"v_mov_b32 v{pb+5}, s{sNonce}")
e(f"v_mov_b32 v{pb+6}, v{vL}")
e(f"v_mov_b32 v{pb+7}, s{sNonce}")
e(f"s_lshl_b32 s{sT0}, s{sId}, 11")
e(f"s_add_u32 s{sT0}, s{sT0}, {hex(WS_PA)}")
e(f"v_mov_b32 v{vT+3}, {hex(OOB)}")
e(f"v_cmp_eq_u32 vcc, 0, v{vLane}")
e(f"buffer_store_dwordx4 {vr(pb,4)}, v{vOffV}, {sr(sWS,4)}, s{sT0} offen sc1")
nop(1)
e(f"v_cndmask_b32 v{vT+2}, v{vT+3}, 0, vcc")
e(f"buffer_store_dwordx4 {vr(pb+4,4)}, v{vT+2}, {sr(sWS,4)}, s{sT0} offen offset:1024 sc1")
stamp(2)
go = 22
gm = 54
e(f"s_lshl_b32 s{sT0}, s{sH}, 14")
e(f"s_add_u32 s{sT0}, s{sT0}, {hex(WS_PA)}")
e(f"s_add_u32 s{sT1}, s{sT0}, 8192")
e(f"v_and_b32 v{vT}, 7, v{vLane}")
e(f"v_lshlrev_b32 v{vT}, 11, v{vT}")
nop(2)
e(f"v_add_u32 v{vT+1}, 4096, v{vOffV}")
lds_ = []
for p in range(8):
    so = sT0 if p < 4 else sT1
    vo = vOffV if (p % 4) < 2 else vT + 1
    lds_.append((f"buffer_load_dwordx4 {vr(go+4*p,4)}, v{vo}, {sr(sWS,4)}, s{so} offen offset:{2048*(p%2)} sc1", [go+4*p+1, go+4*p+3], None))
lds_.append((f"buffer_load_dwordx4 {vr(gm,4)}, v{vT}, {sr(sWS,4)}, s{sT0} offen offset:1024 sc1", [gm+1, gm+3], None))
masked_poll("A_P", lds_, P.SLEEPP)
stamp(7)
e(f"v_mov_b32 v{vT+2}, v{gm}")
ror_reduce("v_max_f32", vT + 2, [1, 2, 4])
e(f"v_sub_f32 v{vT+3}, v{gm}, v{vT+2}")
e(f"v_exp_f32 v{vT+3}, v{vT+3}")
nop(1)
e(f"v_mul_f32 v{vT+4}, v{vT+3}, v{gm+2}")
ror_reduce("v_add_f32", vT + 4, [1, 2, 4])
e(f"v_rcp_f32 v{vT+4}, v{vT+4}")
e(f"v_mov_b32 v{vT+5}, 0")
e(f"v_mov_b32 v{vT+6}, 0")
for p in range(8):
    e(f"v_fmac_f32_dpp v{vT+5}, v{vT+3}, v{go+4*p} row_newbcast:{p} {DPPM}")
    e(f"v_fmac_f32_dpp v{vT+6}, v{vT+3}, v{go+4*p+2} row_newbcast:{p} {DPPM}")
e(f"v_mul_f32 v{vT+5}, v{vT+5}, v{vT+4}")
e(f"v_mul_f32 v{vT+6}, v{vT+6}, v{vT+4}")
e(f"v_cvt_pk_bf16_f32 v{vT+5}, v{vT+5}, v{vT+6}")
e(f"v_lshlrev_b32 v{vT}, 2, v{vLane}")
e(f"ds_write_b32 v{vT}, v{vT+5} offset:{LDS_OB}")
e(f"v_lshrrev_b32 v{vT}, 3, v{vN}")
e(f"v_lshl_or_b32 v{vT}, v{vG}, 1, v{vT}")
e(f"v_lshlrev_b32 v{vT}, 5, v{vT}")
e("s_waitcnt lgkmcnt(0)")
od = 34
e(f"ds_read_b128 {vr(od,4)}, v{vT} offset:{LDS_OB}")
e(f"ds_read_b128 {vr(od+4,4)}, v{vT} offset:{LDS_OB+16}")
e(f"v_and_b32 v{vT}, 1, v{vN}")
e(f"v_cmp_eq_u32 vcc, 1, v{vT}")
e(f"v_mov_b32 v{vT+1}, 0xffff")
e(f"v_mov_b32 v{vT+2}, 0xffff0000")
e(f"v_cndmask_b32 v{vT+1}, v{vT+1}, v{vT+2}, vcc")
e(f"v_bfe_u32 v{vT}, v{vN}, 1, 2")
for i in range(4):
    e(f"v_cmp_eq_u32 vcc, {i}, v{vT}")
    nop(2)
    e(f"v_cndmask_b32 v{vMask+i}, 0, v{vT+1}, vcc")
e("s_waitcnt lgkmcnt(0)")
yacc = 54
for t in range(16):
    a = vAop + 4 * (t & 1)
    e(f"v_perm_b32 v{vT}, v{od+t//2}, v{od+t//2}, s{sDupHi if t&1 else sDupLo}")
    for i in range(4):
        e(f"v_and_b32 v{a+i}, v{vT}, v{vMask+i}")
    nop(2)
    c = "0" if t == 0 else vr(yacc, 4)
    e(f"v_mfma_f32_16x16x32_bf16 {vr(yacc,4)}, {vr(a,4)}, {vr(vWo+4*t,4)}, {c}")
e(f"v_and_b32 v{vT}, 7, v{vN}")
e(f"v_lshlrev_b32 v{vT}, 7, v{vT}")
e(f"v_and_b32 v{vT+1}, 1, v{vG}")
e(f"v_lshl_or_b32 v{vT}, v{vT+1}, 6, v{vT}")
e(f"v_lshrrev_b32 v{vT+1}, 3, v{vN}")
e(f"v_lshl_or_b32 v{vT}, v{vT+1}, 4, v{vT}")
e(f"v_lshrrev_b32 v{vT+2}, 1, v{vG}")
e(f"v_cmp_eq_u32 vcc, v{vT+1}, v{vT+2}")
e(f"v_mov_b32 v{vT+3}, {hex(OOB)}")
e(f"s_lshl_b32 s{sT0}, s{sId}, 10")
e(f"s_add_u32 s{sT0}, s{sT0}, {hex(WS_YA)}")
e(f"v_cndmask_b32 v{vT}, v{vT+3}, v{vT}, vcc")
nop(4)
yb = 34
for i in range(4):
    e(f"v_mov_b32 v{yb+2*i}, v{yacc+i}")
    e(f"v_mov_b32 v{yb+2*i+1}, s{sNonce}")
e(f"buffer_store_dwordx4 {vr(yb,4)}, v{vT}, {sr(sWS,4)}, s{sT0} offen sc1")
e(f"buffer_store_dwordx4 {vr(yb+4,4)}, v{vT}, {sr(sWS,4)}, s{sT0} offen offset:32 sc1")
stamp(4)
e(f"s_cmp_ge_u32 s{sH}, 4")
e("s_cbranch_scc1 A_FIN")
e(f"v_lshlrev_b32 v{vT}, 13, v{vG}")
e(f"v_lshl_or_b32 v{vT}, v{vN}, 4, v{vT}")
e(f"s_lshl_b32 s{sT0}, s{sS}, 10")
e(f"s_lshl_b32 s{sT1}, s{sH}, 8")
e(f"s_add_u32 s{sT0}, s{sT0}, s{sT1}")
e(f"s_add_u32 s{sT0}, s{sT0}, {hex(WS_YA)}")
gy = vBuf
lds_ = []
for k in range(8):
    lds_.append((f"buffer_load_dwordx4 {vr(gy+4*k,4)}, v{vT}, {sr(sWS,4)}, s{sT1} offen sc1", [gy+4*k+1, gy+4*k+3], f"s_add_u32 s{sT1}, s{sT0}, {hex(k*0x8000)}"))
masked_poll("A_Y", lds_, P.SLEEPY)
for k in range(1, 8):
    e(f"v_add_f32 v{gy}, v{gy}, v{gy+4*k}")
    e(f"v_add_f32 v{gy+2}, v{gy+2}, v{gy+4*k+2}")
nop(1)
e(f"v_add_f32_dpp v{gy}, v{gy}, v{gy} quad_perm:[1,0,3,2] {DPPM}")
e(f"v_add_f32_dpp v{gy+2}, v{gy+2}, v{gy+2} quad_perm:[1,0,3,2] {DPPM}")
allreduce_rows("v_add_f32", gy, vT + 2, vT + 3)
allreduce_rows("v_add_f32", gy + 2, vT + 2, vT + 3)
e(f"v_cvt_pk_bf16_f32 v{gy}, v{gy}, v{gy+2}")
srd(sW, pOut, 2048)
e(f"v_and_b32 v{vT+1}, 0x31, v{vLane}")
e(f"v_cmp_eq_u32 vcc, 0, v{vT+1}")
e(f"v_mov_b32 v{vT+3}, {hex(OOB)}")
e(f"v_lshlrev_b32 v{vT+2}, 1, v{vLane}")
e(f"s_lshl_b32 s{sT0}, s{sS}, 7")
e(f"s_lshl_b32 s{sT1}, s{sH}, 5")
e(f"s_add_u32 s{sT0}, s{sT0}, s{sT1}")
e(f"v_cndmask_b32 v{vT+2}, v{vT+3}, v{vT+2}, vcc")
e(f"buffer_store_dword v{gy}, v{vT+2}, {sr(sW,4)}, s{sT0} offen")
lab("A_FIN")
if P.STAMP == 1:
    stamp_store()
e("s_branch END")

lab("B_PATH")
NBf = P.NBUFB
lane_consts()
e(f"s_lshr_b32 s{sH}, s2, 2")
e(f"s_and_b32 s{sS}, s2, 3")
e(f"s_lshl_b32 s{sT0}, s{sH}, 23")
e(f"s_lshl_b32 s{sT1}, s{sS}, 18")
e(f"s_add_u32 s{sT0}, s{sT0}, s{sT1}")
e(f"s_add_u32 s{sT0}, s{sT0}, {hex((32768-4096)*256)}")
BLIM = 1024 * 256
srd(sK, pBk, BLIM, sT0)
srd(sV, pBv, BLIM, sT0)
e(f"s_cmp_lg_u32 s{sWave}, 0")
e("s_cbranch_scc1 B_NONONCE")
e(f"v_mov_b32 v{vT}, 0")
e(f"buffer_load_dword v{vTag}, v{vT}, {sr(sX,4)}, 0 offen sc1")
get_nonce("B")
if P.BWAIT:
    cm("B starts its heavy loads only after the A q-exchange of head s2 has been published")
    e(f"s_lshl_b32 s{sT0}, s2, 13")
    e(f"s_add_u32 s{sT0}, s{sT0}, {hex(WS_QA)}")
    e(f"v_and_b32 v{vT}, 7, v{vLane}")
    e(f"v_lshlrev_b32 v{vT}, 10, v{vT}")
    lab("B_WPOLL")
    e(f"buffer_load_dwordx2 {vr(34,2)}, v{vT}, {sr(sWS,4)}, s{sT0} offen sc1")
    e("s_waitcnt vmcnt(0)")
    tag_check([35], vT + 2, vT + 3)
    e("s_cbranch_vccz B_WDONE")
    e(f"s_add_u32 s{sCnt}, s{sCnt}, 1")
    e(f"s_cmp_gt_u32 s{sCnt}, {hex(P.SPIN)}")
    e("s_cbranch_scc1 B_WDONE")
    e(f"s_sleep {P.SLEEP*8}")
    e("s_branch B_WPOLL")
    lab("B_WDONE")
lab("B_NONONCE")
e("s_barrier")
srd(sW, pBx, 1024)
e(f"v_lshrrev_b32 v{vT}, 2, v{vN}")
e(f"v_lshlrev_b32 v{vT}, 4, v{vT}")
e(f"v_lshl_or_b32 v{vT}, v{vG}, 6, v{vT}")
e(f"s_lshl_b32 s{sT0}, s{sWave}, 8")
e(f"buffer_load_dwordx4 {vr(34,4)}, v{vT}, {sr(sW,4)}, s{sT0} offen")
nop(1)

def rowsum128(xd, rowstride_log2, label):
    ppb = 38
    first = True
    for half in range(2):
        for Tq in range(4):
            T = half * 4 + Tq
            for tt in range(4):
                idx = Tq * 4 + tt
                e(f"s_add_u32 s{sT1}, s{sT0}, {hex((8*tt+T) << rowstride_log2)}")
                e(f"buffer_load_dwordx4 {vr(vBuf+4*idx,4)}, v{vT+1}, {sr(sW,4)}, s{sT1} offen nt")
        if half == 0:
            yield "loads_issued"
            for T in range(8):
                e(f"v_perm_b32 v{ppb+T}, v{xd+T//2}, v{xd+T//2}, s{sDupHi if T&1 else sDupLo}")
            nop(2)
        for Tq in range(4):
            T = half * 4 + Tq
            for tt in range(4):
                idx = Tq * 4 + tt
                a = rowsum_mfma(ppb + T, tt, idx & 1, None, None, None)
                e(f"s_waitcnt vmcnt({15-idx})")
                nop(1)
                c = "0" if first else vr(B_vO, 4)
                first = False
                e(f"v_mfma_f32_16x16x32_bf16 {vr(B_vO,4)}, {vr(a,4)}, {vr(vBuf+4*idx,4)}, {c}")

srd(sW, pBwq, 512 * 8192)
e(f"v_lshlrev_b32 v{vT+1}, 18, v{vG}")
e(f"v_lshl_or_b32 v{vT+1}, v{vN}, 4, v{vT+1}")
e(f"s_lshl_b32 s{sT0}, s{sWave}, 20")
e(f"s_lshl_b32 s{sT1}, s2, 8")
e(f"s_add_u32 s{sT0}, s{sT0}, s{sT1}")
gen = rowsum128(34, 13, "BQ")
next(gen)
e("s_waitcnt vmcnt(16)")
for _ in gen: pass
e(f"v_lshlrev_b32 v{vT}, 5, v{vN}")
e(f"v_lshl_or_b32 v{vT}, v{vG}, 4, v{vT}")
e(f"s_lshl_b32 s{sT0}, s{sWave}, 9")
e(f"v_add_u32 v{vT}, s{sT0}, v{vT}")
nop(8)
e("s_mov_b32 exec_hi, 0")
e(f"ds_write_b128 v{vT}, {vr(B_vO,4)} offset:{LDS_O}")
e("s_mov_b64 exec, -1")
e("s_waitcnt lgkmcnt(0)")
e("s_barrier")

def B_issueK(b):
    for t in range(4):
        e(f"buffer_load_dwordx4 {vr(vBuf+32*b+4*t,4)}, v{vOffK}, {sr(sK,4)}, s{sOff+b} offen offset:{1024*t} nt")
def B_issueV(b, ts=range(4)):
    for t in ts:
        e(f"buffer_load_dwordx4 {vr(vBuf+32*b+16+4*t,4)}, v{vOffV}, {sr(sV,4)}, s{sOff+b} offen offset:{1024*t} nt")
def B_prefetch():
    e(f"s_lshl_b32 s{sStat}, s{sWave}, 12")
    for b in range(NBf):
        e(f"s_mov_b32 s{sOff+b}, s{sStat}")
        e(f"s_add_u32 s{sStat}, s{sStat}, 0x4000")
        B_issueK(b)
        B_issueV(b)

e(f"s_cmp_lg_u32 s{sWave}, 0")
e("s_cbranch_scc1 B_NONLEADER")
e(f"v_lshlrev_b32 v{vT+1}, 3, v{vLane}")
for w in range(4):
    e(f"ds_read_b64 {vr(34+2*w,2)}, v{vT+1} offset:{LDS_O+512*w}")
e("s_waitcnt lgkmcnt(0)")
for i in range(2):
    e(f"v_add_f32 v{34+i}, v{34+i}, v{36+i}")
    e(f"v_add_f32 v{34+i}, v{34+i}, v{38+i}")
    e(f"v_add_f32 v{34+i}, v{34+i}, v{40+i}")
e(f"v_cvt_pk_bf16_f32 v{34}, v{34}, v{35}")
e(f"v_mov_b32 v{35}, s{sNonce}")
e(f"s_lshl_b32 s{sT0}, s2, 10")
e(f"s_add_u32 s{sT0}, s{sT0}, {hex(WS_QB)}")
e(f"buffer_store_dwordx2 {vr(34,2)}, v{vT+1}, {sr(sWS,4)}, s{sT0} offen sc1")
e(f"s_lshl_b32 s{sT0}, s{sH}, 12")
e(f"s_add_u32 s{sT0}, s{sT0}, {hex(WS_QB)}")
lab("B_QPOLL")
for j in range(4):
    e(f"buffer_load_dwordx2 {vr(36+2*j,2)}, v{vT+1}, {sr(sWS,4)}, s{sT0} offen offset:{1024*j} sc1")
e("s_waitcnt vmcnt(0)")
tag_check([37, 39, 41, 43], vT + 2, vT + 3)
e("s_cbranch_vccz B_QDONE")
e(f"s_add_u32 s{sCnt}, s{sCnt}, 1")
e(f"s_cmp_gt_u32 s{sCnt}, {hex(P.SPIN)}")
e("s_cbranch_scc1 B_QDONE")
e(f"s_sleep {P.SLEEP*4}")
e("s_branch B_QPOLL")
lab("B_QDONE")
e(f"v_lshlrev_b32 v{vT}, 2, v{vLane}")
for j in range(4):
    e(f"ds_write_b32 v{vT}, v{36+2*j} offset:{LDS_Q+256*j}")
e(f"v_mov_b32 v{vT+2}, 0")
e(f"ds_write_b32 v{vT+2}, v{35} offset:{LDS_NONCE}")
B_prefetch()
e("s_waitcnt lgkmcnt(0)")
e("s_branch B_QBAR")
lab("B_NONLEADER")
B_prefetch()
lab("B_QBAR")
e("s_barrier")
e(f"ds_read_b128 {vr(B_vQ,4)}, v{vOffK} offset:{LDS_Q}")
e(f"v_mov_b32 v{vT+2}, 0")
e(f"ds_read_b32 v{vTag}, v{vT+2} offset:{LDS_NONCE}")
vMa, vMb = 62, 63
e(f"v_and_b32 v{vT}, 1, v{vN}")
e(f"v_cmp_eq_u32 vcc, 1, v{vT}")
e(f"v_mov_b32 v{vT+1}, 0xffff")
e(f"v_mov_b32 v{vT+2}, 0xffff0000")
e(f"v_cndmask_b32 v{vT+1}, v{vT+1}, v{vT+2}, vcc")
e(f"v_and_b32 v{vT}, 2, v{vN}")
e(f"v_cmp_eq_u32 vcc, 0, v{vT}")
nop(2)
e(f"v_cndmask_b32 v{vMa}, 0, v{vT+1}, vcc")
e(f"v_cndmask_b32 v{vMb}, v{vT+1}, 0, vcc")
for i in range(12):
    e(f"v_mov_b32 v{vAop+i}, 0")
for i in range(8):
    e(f"v_mov_b32 v{B_vO+i}, 0")
e("s_waitcnt lgkmcnt(0)")
e(f"v_readfirstlane_b32 s{sNonce}, v{vTag}")
nop(2)
lab("B_LOOP")
rareB = []
for b in range(NBf):
    kb = vBuf + 32 * b
    vb = kb + 16
    cm(f"--- B body {b}")
    e(f"s_cmp_ge_u32 s{sOff+b}, {hex(BLIM)}")
    e("s_cbranch_scc1 B_EXIT")
    e(f"s_waitcnt vmcnt({8*NBf-4})")
    for t in range(4):
        e(f"v_mfma_f32_16x16x32_bf16 {vr(B_vS+4*t,4)}, {vr(kb+4*t,4)}, {vr(B_vQ,4)}, 0")
    e(f"s_mov_b32 s{sOff+b}, s{sStat}")
    e(f"s_add_u32 s{sStat}, s{sStat}, 0x4000")
    B_issueK(b)
    nop(2)
    s = vT
    for t in range(4):
        e(f"v_mov_b32_dpp v{s+t}, v{B_vS+4*t} quad_perm:[0,0,0,0] {DPPM}")
        for i in range(1, 4):
            e(f"v_add_f32_dpp v{s+t}, v{B_vS+4*t+i}, v{s+t} quad_perm:[{i},{i},{i},{i}] {DPPM}")
    for t in range(4):
        if P.MIMIC:
            e(f"v_cvt_pk_bf16_f32 v{s+t}, v{s+t}, v{s+t}")
            e(f"v_and_b32 v{s+t}, 0xffff0000, v{s+t}")
            e(f"v_mul_f32 v{s+t}, s{sScale}, v{s+t}")
            e(f"v_cvt_pk_bf16_f32 v{s+t}, v{s+t}, v{s+t}")
            e(f"v_and_b32 v{s+t}, 0xffff0000, v{s+t}")
        else:
            e(f"v_mul_f32 v{s+t}, s{sScale}, v{s+t}")
    e(f"v_max3_f32 v{s+4}, v{s}, v{s+1}, v{s+2}")
    e(f"v_max_f32 v{s+4}, v{s+4}, v{s+3}")
    e(f"v_cmp_gt_f32 vcc, v{s+4}, v{vM}")
    e(f"s_cbranch_vccnz B_RARE{b}")
    lab(f"B_BACK{b}")
    for t in range(4):
        e(f"v_fma_f32 v{s+t}, v{s+t}, s{sLog2e}, -v{vML}")
        e(f"v_exp_f32 v{s+t}, v{s+t}")
    nop(1)
    for t in range(4):
        e(f"v_add_f32 v{vL}, v{vL}, v{s+t}")
        e(f"v_cvt_pk_bf16_f32 v{s+t}, v{s+t}, v{s+t}")
    e(f"s_waitcnt vmcnt({8*NBf-4})")
    for t in range(4):
        sx = vAop + 6 * (t & 1)
        e(f"v_and_b32 v{sx+2}, v{s+t}, v{vMa}")
        e(f"v_and_b32 v{sx+3}, v{s+t}, v{vMb}")
        nop(2)
        e(f"v_mfma_f32_16x16x32_bf16 {vr(B_vO,4)}, {vr(sx+2,4)}, {vr(vb+4*t,4)}, {vr(B_vO,4)}")
        e(f"v_mfma_f32_16x16x32_bf16 {vr(B_vO+4,4)}, {vr(sx,4)}, {vr(vb+4*t,4)}, {vr(B_vO+4,4)}")
    B_issueV(b)
    rareB.append(b)
e("s_branch B_LOOP")
for b in rareB:
    s = vT
    lab(f"B_RARE{b}")
    x = s + 4
    allreduce_rows("v_max_f32", x, s + 5, s + 6)
    e(f"v_max_f32 v{x}, v{x}, v{vM}")
    e(f"v_mul_f32 v{s+5}, s{sLog2e}, v{x}")
    e(f"v_sub_f32 v{s+6}, v{vML}, v{s+5}")
    e(f"v_exp_f32 v{s+6}, v{s+6}")
    e(f"v_mov_b32 v{vM}, v{x}")
    e(f"v_mov_b32 v{vML}, v{s+5}")
    e(f"v_lshlrev_b32 v{s+5}, 4, v{vG}")
    e(f"ds_bpermute_b32 v{s+4}, v{s+5}, v{s+6}")
    e(f"v_mul_f32 v{vL}, v{vL}, v{s+6}")
    e("s_waitcnt lgkmcnt(0)")
    nop(8)
    for i in range(8):
        e(f"v_mul_f32 v{B_vO+i}, v{B_vO+i}, v{s+4}")
    e(f"s_branch B_BACK{b}")
lab("B_EXIT")
e("s_waitcnt vmcnt(0)")
allreduce_rows("v_add_f32", vL, vT, vT + 1)
e(f"v_lshlrev_b32 v{vT}, 5, v{vN}")
e(f"v_lshl_or_b32 v{vT}, v{vG}, 9, v{vT}")
e(f"s_lshl_b32 s{sT0}, s{sWave}, 11")
e(f"v_add_u32 v{vT}, s{sT0}, v{vT}")
e(f"ds_write_b128 v{vT}, {vr(B_vO,4)} offset:{LDS_O}")
e(f"ds_write_b128 v{vT}, {vr(B_vO+4,4)} offset:{LDS_O+16}")
e(f"v_lshrrev_b32 v{vT+1}, 2, v{vN}")
e(f"v_lshlrev_b32 v{vT+1}, 5, v{vT+1}")
e(f"s_lshl_b32 s{sT0}, s{sWave}, 3")
e(f"v_add_u32 v{vT+1}, s{sT0}, v{vT+1}")
e(f"v_mov_b32 v{vT+3}, v{vML}")
e(f"v_mov_b32 v{vT+4}, v{vL}")
e(f"ds_write_b64 v{vT+1}, {vr(vT+3,2)} offset:{LDS_ML}")
e("s_waitcnt lgkmcnt(0)")
e("s_barrier")
cm("wave j combines head j")
c0 = 34
e(f"s_lshl_b32 s{sT0}, s{sWave}, 5")
e(f"v_mov_b32 v{vT}, s{sT0}")
e(f"ds_read_b128 {vr(c0,4)}, v{vT} offset:{LDS_ML}")
e(f"ds_read_b128 {vr(c0+4,4)}, v{vT} offset:{LDS_ML+16}")
e(f"v_lshlrev_b32 v{vT+1}, 3, v{vLane}")
e(f"s_lshl_b32 s{sT0}, s{sWave}, 9")
e(f"v_add_u32 v{vT+1}, s{sT0}, v{vT+1}")
for w in range(4):
    e(f"ds_read_b64 {vr(c0+8+2*w,2)}, v{vT+1} offset:{LDS_O+2048*w}")
e("s_waitcnt lgkmcnt(0)")
e(f"v_max3_f32 v{vML}, v{c0}, v{c0+2}, v{c0+4}")
e(f"v_max_f32 v{vML}, v{vML}, v{c0+6}")
for w in range(4):
    e(f"v_sub_f32 v{c0+2*w}, v{c0+2*w}, v{vML}")
    e(f"v_exp_f32 v{c0+2*w}, v{c0+2*w}")
nop(1)
pb = c0 + 16
e(f"v_mul_f32 v{vL}, v{c0}, v{c0+1}")
e(f"v_mul_f32 v{pb}, v{c0}, v{c0+8}")
e(f"v_mul_f32 v{pb+2}, v{c0}, v{c0+9}")
for w in range(1, 4):
    e(f"v_fmac_f32 v{vL}, v{c0+2*w}, v{c0+2*w+1}")
    e(f"v_fmac_f32 v{pb}, v{c0+2*w}, v{c0+8+2*w}")
    e(f"v_fmac_f32 v{pb+2}, v{c0+2*w}, v{c0+9+2*w}")
e(f"v_mov_b32 v{pb+1}, s{sNonce}")
e(f"v_mov_b32 v{pb+3}, s{sNonce}")
e(f"v_mov_b32 v{pb+4}, v{vML}")
e(f"v_mov_b32 v{pb+5}, s{sNonce}")
e(f"v_mov_b32 v{pb+6}, v{vL}")
e(f"v_mov_b32 v{pb+7}, s{sNonce}")
e(f"s_lshl_b32 s{sT0}, s{sH}, 2")
e(f"s_add_u32 s{sT0}, s{sT0}, s{sWave}")
e(f"s_lshl_b32 s{sT0}, s{sT0}, 2")
e(f"s_add_u32 s{sT0}, s{sT0}, s{sS}")
e(f"s_lshl_b32 s{sT0}, s{sT0}, 11")
e(f"s_add_u32 s{sT0}, s{sT0}, {hex(WS_PB)}")
e(f"v_mov_b32 v{vT+3}, {hex(OOB)}")
e(f"v_cmp_eq_u32 vcc, 0, v{vLane}")
e(f"buffer_store_dwordx4 {vr(pb,4)}, v{vOffV}, {sr(sWS,4)}, s{sT0} offen sc1")
nop(1)
e(f"v_cndmask_b32 v{vT+2}, v{vT+3}, 0, vcc")
e(f"buffer_store_dwordx4 {vr(pb+4,4)}, v{vT+2}, {sr(sWS,4)}, s{sT0} offen offset:1024 sc1")
e(f"s_cmp_lg_u32 s{sWave}, 0")
e("s_cbranch_scc1 B_OBAR")
go = 22
gm = 38
e(f"s_lshl_b32 s{sT0}, s2, 13")
e(f"s_add_u32 s{sT0}, s{sT0}, {hex(WS_PB)}")
e(f"v_and_b32 v{vT}, 3, v{vLane}")
e(f"v_lshlrev_b32 v{vT}, 11, v{vT}")
e(f"v_add_u32 v{vT+1}, 4096, v{vOffV}")
nop(2)
lab("B_PPOLL")
for p in range(4):
    vo = vOffV if p < 2 else vT + 1
    e(f"buffer_load_dwordx4 {vr(go+4*p,4)}, v{vo}, {sr(sWS,4)}, s{sT0} offen offset:{2048*(p%2)} sc1")
e(f"buffer_load_dwordx4 {vr(gm,4)}, v{vT}, {sr(sWS,4)}, s{sT0} offen offset:1024 sc1")
e("s_waitcnt vmcnt(0)")
tag_check([go + 2 * i + 1 for i in range(8)] + [gm + 1, gm + 3], vT + 2, vT + 3)
e("s_cbranch_vccz B_PDONE")
e(f"s_add_u32 s{sCnt}, s{sCnt}, 1")
e(f"s_cmp_gt_u32 s{sCnt}, {hex(P.SPIN)}")
e("s_cbranch_scc1 B_PDONE")
e(f"s_sleep {P.SLEEP*4}")
e("s_branch B_PPOLL")
lab("B_PDONE")
e(f"v_mov_b32 v{vT+2}, v{gm}")
ror_reduce("v_max_f32", vT + 2, [1, 2])
e(f"v_sub_f32 v{vT+3}, v{gm}, v{vT+2}")
e(f"v_exp_f32 v{vT+3}, v{vT+3}")
nop(1)
e(f"v_mul_f32 v{vT+4}, v{vT+3}, v{gm+2}")
ror_reduce("v_add_f32", vT + 4, [1, 2])
e(f"v_rcp_f32 v{vT+4}, v{vT+4}")
e(f"v_mov_b32 v{vT+5}, 0")
e(f"v_mov_b32 v{vT+6}, 0")
for p in range(4):
    e(f"v_fmac_f32_dpp v{vT+5}, v{vT+3}, v{go+4*p} row_newbcast:{p} {DPPM}")
    e(f"v_fmac_f32_dpp v{vT+6}, v{vT+3}, v{go+4*p+2} row_newbcast:{p} {DPPM}")
e(f"v_mul_f32 v{vT+5}, v{vT+5}, v{vT+4}")
e(f"v_mul_f32 v{vT+6}, v{vT+6}, v{vT+4}")
e(f"v_cvt_pk_bf16_f32 v{vT+5}, v{vT+5}, v{vT+6}")
e(f"v_lshlrev_b32 v{vT}, 2, v{vLane}")
e(f"ds_write_b32 v{vT}, v{vT+5} offset:{LDS_OB}")
e("s_waitcnt lgkmcnt(0)")
lab("B_OBAR")
e("s_barrier")
e(f"v_lshrrev_b32 v{vT}, 2, v{vN}")
e(f"v_lshlrev_b32 v{vT}, 4, v{vT}")
e(f"v_lshl_or_b32 v{vT}, v{vG}, 6, v{vT}")
e(f"ds_read_b128 {vr(34,4)}, v{vT} offset:{LDS_OB}")
srd(sW, pBwo, 4096 * 1024)
e(f"v_lshlrev_b32 v{vT+1}, 15, v{vG}")
e(f"v_lshl_or_b32 v{vT+1}, v{vN}, 4, v{vT+1}")
e(f"s_lshl_b32 s{sT0}, s2, 17")
e(f"s_lshl_b32 s{sT1}, s{sWave}, 8")
e(f"s_add_u32 s{sT0}, s{sT0}, s{sT1}")
e("s_waitcnt vmcnt(0)")
gen = rowsum128(34, 10, "BW")
next(gen)
e("s_waitcnt lgkmcnt(0)")
for _ in gen: pass
e(f"v_lshlrev_b32 v{vT}, 6, v{vN}")
e(f"v_lshl_or_b32 v{vT}, v{vG}, 5, v{vT}")
e(f"v_mov_b32 v{vT+1}, {hex(OOB)}")
e(f"v_cmp_gt_u32 vcc, 32, v{vLane}")
e(f"s_lshl_b32 s{sT0}, s2, 12")
e(f"s_lshl_b32 s{sT1}, s{sWave}, 10")
e(f"s_add_u32 s{sT0}, s{sT0}, s{sT1}")
e(f"s_add_u32 s{sT0}, s{sT0}, {hex(WS_YB)}")
e(f"v_cndmask_b32 v{vT}, v{vT+1}, v{vT}, vcc")
nop(8)
yb = 34
for i in range(4):
    e(f"v_mov_b32 v{yb+2*i}, v{B_vO+i}")
    e(f"v_mov_b32 v{yb+2*i+1}, s{sNonce}")
e(f"buffer_store_dwordx4 {vr(yb,4)}, v{vT}, {sr(sWS,4)}, s{sT0} offen sc1")
e(f"buffer_store_dwordx4 {vr(yb+4,4)}, v{vT}, {sr(sWS,4)}, s{sT0} offen offset:16 sc1")
e(f"s_cmp_lg_u32 s{sWave}, 0")
e("s_cbranch_scc1 END")
e(f"v_and_b32 v{vT}, 7, v{vLane}")
e(f"v_lshlrev_b32 v{vT}, 4, v{vT}")
e(f"v_lshrrev_b32 v{vT+1}, 3, v{vLane}")
e(f"v_lshl_or_b32 v{vT}, v{vT+1}, 12, v{vT}")
e(f"s_lshl_b32 s{sT0}, s2, 7")
e(f"s_add_u32 s{sT0}, s{sT0}, {hex(WS_YB)}")
gy = 44
lab("B_YPOLL")
e(f"s_mov_b32 s{sT1}, s{sT0}")
for i in range(4):
    e(f"buffer_load_dwordx4 {vr(gy+4*i,4)}, v{vT}, {sr(sWS,4)}, s{sT1} offen sc1")
    if i < 3:
        e(f"s_add_u32 s{sT1}, s{sT1}, 0x8000")
e("s_waitcnt vmcnt(0)")
tag_check([gy + 2 * i + 1 for i in range(8)], vT + 2, vT + 3)
e("s_cbranch_vccz B_YDONE")
e(f"s_add_u32 s{sCnt}, s{sCnt}, 1")
e(f"s_cmp_gt_u32 s{sCnt}, {hex(P.SPIN)}")
e("s_cbranch_scc1 B_YDONE")
e(f"s_sleep {P.SLEEP*4}")
e("s_branch B_YPOLL")
lab("B_YDONE")
for c in (0, 2):
    e(f"v_add_f32 v{gy+c}, v{gy+c}, v{gy+4+c}")
    e(f"v_add_f32 v{gy+c}, v{gy+c}, v{gy+8+c}")
    e(f"v_add_f32 v{gy+c}, v{gy+c}, v{gy+12+c}")
ror_reduce("v_add_f32", gy, [8])
ror_reduce("v_add_f32", gy + 2, [8])
allreduce_rows("v_add_f32", gy, vT + 2, vT + 3)
allreduce_rows("v_add_f32", gy + 2, vT + 2, vT + 3)
e(f"v_cvt_pk_bf16_f32 v{gy}, v{gy}, v{gy+2}")
srd(sW, pOut, 2048)
e(f"v_mov_b32 v{vT+3}, {hex(OOB)}")
e(f"v_cmp_gt_u32 vcc, 8, v{vLane}")
e(f"v_lshlrev_b32 v{vT+2}, 2, v{vLane}")
e(f"s_lshl_b32 s{sT0}, s2, 5")
e(f"s_add_u32 s{sT0}, s{sT0}, 1024")
e(f"v_cndmask_b32 v{vT+2}, v{vT+3}, v{vT+2}, vcc")
e(f"buffer_store_dword v{gy}, v{vT+2}, {sr(sW,4)}, s{sT0} offen")
lab("END")
e("s_endpgm")

nvgpr = max(vBuf + 32 * max(P.NBUF, P.NBUFB, 2, P.NPRO), vWo + 64)
out += "\n".join(L) + "\n"
out += f""".section .rodata,"a"
.p2align 6
.amdhsa_kernel {KNAME}
  .amdhsa_next_free_vgpr {nvgpr}
  .amdhsa_next_free_sgpr 100
  .amdhsa_accum_offset {nvgpr}
  .amdhsa_group_segment_fixed_size 0
  .amdhsa_kernarg_size 104
  .amdhsa_user_sgpr_count 2
  .amdhsa_user_sgpr_kernarg_segment_ptr 1
  .amdhsa_system_sgpr_workgroup_id_x 1
.end_amdhsa_kernel
"""
open(sys.argv[1], "w").write(out)
print("wrote", sys.argv[1], "lines", len(L), "vgpr", nvgpr)
```

```python
import sys, struct

KNAME = "concat_heads__mha_block_cached__sliding_block_cached__decode_kernel"

class P:
    NBUF = 2
    NBUFB = 2
    J = 54
    NB = 32
    NA = 256
    MIMIC = 1
    STAMP = 0
    SLEEP = 1
    BWAIT = 1
    ROT = 0
    RMASK = 0x7ff000
    BLAST = 0
    SAT = 1
    CLPOS = 0
    FAKEAT = 0
    LA = 2
    REV = 0
    WARM = 0
    WOEARLY = 0
    NPRO = 1
    SLEEPQ = 1
    SLEEPP = 1
    SLEEPY = 1
    PW = 1
    SPIN = 0x40000

for a in sys.argv[2:]:
    k, v = a.split("=")
    setattr(P, k, int(v, 0))

L = []
def e(s): L.append("    " + s)
def lab(s): L.append(s + ":")
def cm(s): L.append("    ; " + s)
def nop(n):
    while n > 0:
        k = min(n, 16)
        e(f"s_nop {k-1}")
        n -= k
def f32(x): return "0x%08x" % struct.unpack("<I", struct.pack("<f", x))[0]
def vr(b, n): return f"v[{b}:{b+n-1}]"
def sr(b, n): return f"s[{b}:{b+n-1}]"
DPPM = "row_mask:0xf bank_mask:0xf"

WS_CTR = 0x0
WS_QA = 0x10000
WS_PA = 0x80000
WS_YA = 0x100000
WS_QB = 0x180000
WS_PB = 0x1A0000
WS_YB = 0x200000
WS_STAMP = 0x300000
WS_SIZE = 0x400000
OOB = 0x40000000
CBASE = 16

sK, sV, sWS, sW, sX = 4, 8, 12, 16, 20
pAx, pAk, pAv, pAwq, pAwo, pBx, pBk, pBv, pBwq, pBwo, pOut, pDbg, pWs = [24 + 2 * i for i in range(13)]
sWave = 50; sH = 51; sS = 52; sT0 = 53; sT1 = 54; sNonce = 55; sJ = 56; sStat = 57
sScale = 58; sLog2e = 59; sOff = 60
sId = 68; sT2 = 69; sTm = 70
sDupLo = 74; sDupHi = 75; sCnt = 76; sMask = 78
sStampA = 80
sFlag = 77
sRot = 3
sCtr = 96
sClaim = 98

vLane, vOffK, vOffV, vCtr = 0, 1, 2, 3
vN, vG = 4, 5
vMask = 6
vM, vML, vL = 10, 11, 12
vT = 13
vTag = 20
vZ = 21
vAop = 22
vS = 34
vO = 50
vQ = 34 + 4
A_vS, A_vQ, A_vO, A_vClaim = 34, 38, 54, 58
B_vS, B_vQ, B_vO = 34, 50, 54
vBuf = 64

LDS_Q = 0
LDS_NONCE = 1024
LDS_FLAG = 1028
LDS_O = 2048
LDS_ML = 10240
LDS_OB = 10496
LDS_BYTES = 12288

def srd(dst, ptr, nrec, add_lo=None):
    if add_lo is None:
        e(f"s_mov_b32 s{dst}, s{ptr}")
        e(f"s_mov_b32 s{dst+1}, s{ptr+1}")
    else:
        e(f"s_add_u32 s{dst}, s{ptr}, s{add_lo}")
        e(f"s_addc_u32 s{dst+1}, s{ptr+1}, 0")
    e(f"s_mov_b32 s{dst+2}, {hex(nrec)}")
    e(f"s_mov_b32 s{dst+3}, 0x00020000")

def stamp(idx):
    if P.STAMP == 1 or (P.STAMP == 2 and idx == 0):
        e(f"s_memrealtime s[{sStampA+2*idx}:{sStampA+2*idx+1}]")

def stamp_store():
    e(f"v_mov_b32 v{vT+3}, {hex(OOB)}")
    e(f"v_cmp_eq_u32 vcc, 0, v{vLane}")
    nop(2)
    e(f"v_cndmask_b32 v{vT+2}, v{vT+3}, 0, vcc")
    e(f"s_memrealtime s[{sTm}:{sTm+1}]")
    e("s_waitcnt lgkmcnt(0)")
    for i in range(8):
        e(f"v_mov_b32 v{34+i}, s{sStampA+2*i}")
    e(f"v_mov_b32 v{42}, s{sTm}")
    e(f"s_getreg_b32 s{sT1}, hwreg(HW_REG_XCC_ID)")
    e(f"v_mov_b32 v{43}, s{sT1}")
    e(f"v_mov_b32 v{44}, s{sJ}")
    e(f"v_mov_b32 v{45}, s{sCnt}")
    e(f"s_lshl_b32 s{sT0}, s2, 6")
    e(f"s_add_u32 s{sT0}, s{sT0}, {hex(WS_STAMP)}")
    e(f"buffer_store_dwordx4 {vr(34,4)}, v{vT+2}, {sr(sWS,4)}, s{sT0} offen")
    e(f"buffer_store_dwordx4 {vr(38,4)}, v{vT+2}, {sr(sWS,4)}, s{sT0} offen offset:16")
    e(f"buffer_store_dwordx4 {vr(42,4)}, v{vT+2}, {sr(sWS,4)}, s{sT0} offen offset:32")

def stampw(idx):
    if P.STAMP == 2:
        e(f"s_memrealtime s[{sStampA+2*idx}:{sStampA+2*idx+1}]")

def allreduce_rows(op, x, a, b):
    e(f"v_mov_b32 v{a}, v{x}")
    e(f"v_mov_b32 v{b}, v{x}")
    nop(2)
    e(f"v_permlane16_swap_b32 v{a}, v{b}")
    nop(1)
    e(f"{op} v{x}, v{a}, v{b}")
    e(f"v_mov_b32 v{a}, v{x}")
    e(f"v_mov_b32 v{b}, v{x}")
    nop(2)
    e(f"v_permlane32_swap_b32 v{a}, v{b}")
    nop(1)
    e(f"{op} v{x}, v{a}, v{b}")

def ror_reduce(op, x, rors):
    for r in rors:
        nop(2)
        e(f"{op}_dpp v{x}, v{x}, v{x} row_ror:{r} {DPPM}")

def tag_check(tags, t0, t1):
    tags = list(tags)
    if len(tags) == 1:
        e(f"v_cmp_ne_u32 vcc, s{sNonce}, v{tags[0]}")
        return
    e(f"v_min_u32 v{t0}, v{tags[0]}, v{tags[1]}")
    e(f"v_max_u32 v{t1}, v{tags[0]}, v{tags[1]}")
    rest = tags[2:]
    while len(rest) >= 2:
        e(f"v_min3_u32 v{t0}, v{t0}, v{rest[0]}, v{rest[1]}")
        e(f"v_max3_u32 v{t1}, v{t1}, v{rest[0]}, v{rest[1]}")
        rest = rest[2:]
    if rest:
        e(f"v_min_u32 v{t0}, v{t0}, v{rest[0]}")
        e(f"v_max_u32 v{t1}, v{t1}, v{rest[0]}")
    e(f"v_cmp_ne_u32 vcc, s{sNonce}, v{t0}")
    e(f"v_cmp_ne_u32 s[{sMask}:{sMask+1}], s{sNonce}, v{t1}")
    e(f"s_or_b64 vcc, vcc, s[{sMask}:{sMask+1}]")

def masked_poll(name, loads, sleep, filler=None):
    for (lt, tags, pre) in loads:
        if pre: e(pre)
        e(lt)
    if filler: filler()
    lab(f"{name}_POLL")
    e("s_waitcnt vmcnt(0)")
    e(f"s_mov_b32 s{sT2}, 0")
    for k, (lt, tags, pre) in enumerate(loads):
        if pre: e(pre)
        e(f"v_cmp_ne_u32 vcc, s{sNonce}, v{tags[0]}")
        for t in tags[1:]:
            e(f"v_cmp_ne_u32 s[{sMask}:{sMask+1}], s{sNonce}, v{t}")
            e(f"s_or_b64 vcc, vcc, s[{sMask}:{sMask+1}]")
        e(f"s_cbranch_vccz {name}_S{k}")
        e("s_mov_b64 exec, vcc")
        e(lt)
        e("s_mov_b64 exec, -1")
        e(f"s_mov_b32 s{sT2}, 1")
        lab(f"{name}_S{k}")
    e(f"s_cmp_eq_u32 s{sT2}, 0")
    e(f"s_cbranch_scc1 {name}_DONE")
    e(f"s_add_u32 s{sCnt}, s{sCnt}, 1")
    e(f"s_cmp_gt_u32 s{sCnt}, {hex(P.SPIN)}")
    e(f"s_cbranch_scc1 {name}_DONE")
    if sleep: e(f"s_sleep {sleep}")
    e(f"s_branch {name}_POLL")
    lab(f"{name}_DONE")
    e("s_waitcnt vmcnt(0)")

def get_nonce(tag):
    lab(f"NONCE_{tag}")
    e("s_waitcnt vmcnt(0)")
    e(f"v_readfirstlane_b32 s{sNonce}, v{vTag}")
    e(f"s_cmp_lg_u32 s{sNonce}, 0")
    e(f"s_cbranch_scc1 NONCE_OK_{tag}")
    e(f"s_add_u32 s{sCnt}, s{sCnt}, 1")
    e(f"s_cmp_gt_u32 s{sCnt}, {hex(P.SPIN)}")
    e(f"s_cbranch_scc1 NONCE_OK_{tag}")
    e(f"s_sleep {P.SLEEP}")
    e(f"v_mov_b32 v{vT}, 0")
    e(f"buffer_load_dword v{vTag}, v{vT}, {sr(sX,4)}, 0 offen sc1")
    e(f"s_branch NONCE_{tag}")
    lab(f"NONCE_OK_{tag}")

def rowsum_mfma(pp, tt, setidx, breg, acc, first, masks=vMask):
    a = vAop + 4 * setidx
    for i in range(4):
        e(f"v_and_b32_dpp v{a+i}, v{pp}, v{masks+i} row_newbcast:{4*tt} {DPPM}")
    return a

hdr = open("concat_heads__mha_block_cached__sliding_block_cached__decode.s.ref").read().split("; Override launch")[0]
out = hdr
NWG = P.NB + P.NA
out += "; Override launch geometry by editing the next line (default: block=256,\n"
out += f"; @launch grid=({NWG},1,1) block=(256,1,1) lds={LDS_BYTES}\n"
out += '.amdgcn_target "amdgcn-amd-amdhsa--gfx950"\n.text\n'
out += f".globl {KNAME}\n.p2align 8\n.type {KNAME},@function\n{KNAME}:\n"

e(f"s_cmp_ge_u32 s2, {NWG}")
e("s_cbranch_scc1 END")
e("s_load_dwordx16 s[24:39], s[0:1], 0")
e("s_load_dwordx8 s[40:47], s[0:1], 64")
e("s_load_dwordx2 s[48:49], s[0:1], 96")
stamp(0)
e(f"v_lshrrev_b32 v{vT}, 6, v0")
e(f"v_and_b32 v{vLane}, 63, v0")
e(f"v_readfirstlane_b32 s{sWave}, v{vT}")
e(f"v_and_b32 v{vN}, 15, v{vLane}")
e(f"v_lshrrev_b32 v{vG}, 4, v{vLane}")
e(f"v_lshrrev_b32 v{vT}, 2, v{vN}")
e(f"v_lshlrev_b32 v{vOffK}, 8, v{vT}")
e(f"v_lshl_or_b32 v{vOffK}, v{vG}, 6, v{vOffK}")
e(f"v_and_b32 v{vT}, 3, v{vN}")
e(f"v_lshl_or_b32 v{vOffK}, v{vT}, 4, v{vOffK}")
e(f"v_lshlrev_b32 v{vOffV}, 4, v{vLane}")
e(f"v_mov_b32 v{vT}, {hex(OOB)}")
e(f"v_cmp_eq_u32 vcc, 0, v{vLane}")
nop(2)
e(f"v_cndmask_b32 v{vCtr}, v{vT}, 0, vcc")
def lane_consts():
    e(f"v_and_b32 v{vT}, 1, v{vN}")
    e(f"v_cmp_eq_u32 vcc, 1, v{vT}")
    e(f"v_mov_b32 v{vT+1}, 0xffff")
    e(f"v_mov_b32 v{vT+2}, 0xffff0000")
    e(f"v_cndmask_b32 v{vT+1}, v{vT+1}, v{vT+2}, vcc")
    e(f"v_lshrrev_b32 v{vT}, 1, v{vN}")
    for i in range(4):
        e(f"v_cmp_eq_u32 vcc, {i}, v{vT}")
        nop(2)
        e(f"v_cndmask_b32 v{vMask+i}, 0, v{vT+1}, vcc")
    e(f"s_mov_b32 s{sScale}, {f32(128 ** -0.5)}")
    e(f"s_mov_b32 s{sLog2e}, {f32(1.4426950408889634)}")
    e(f"s_mov_b32 s{sCnt}, 0")
    e(f"s_mov_b32 s{sDupLo}, 0x01000100")
    e(f"s_mov_b32 s{sDupHi}, 0x03020302")
    e(f"v_mov_b32 v{vM}, 0xff800000")
    e(f"v_mov_b32 v{vML}, 0xff800000")
    e(f"v_mov_b32 v{vL}, 0")
e("s_waitcnt lgkmcnt(0)")
srd(sWS, pWs, WS_SIZE)
srd(sX, pDbg, 256)
e("s_cmp_lg_u32 s2, 0")
e("s_cbranch_scc1 NO_NONCE_WRITE")
e(f"s_cmp_lg_u32 s{sWave}, 0")
e("s_cbranch_scc1 NO_NONCE_WRITE")
e(f"s_memrealtime s[{sTm}:{sTm+1}]")
e("s_waitcnt lgkmcnt(0)")
e(f"s_or_b32 s{sT0}, s{sTm}, 1")
e(f"v_mov_b32 v{vT}, s{sT0}")
e(f"buffer_store_dword v{vT}, v{vCtr}, {sr(sX,4)}, 0 offen sc1")
lab("NO_NONCE_WRITE")
if P.BLAST:
    e(f"s_cmp_ge_u32 s2, {P.NA}")
    e("s_cbranch_scc1 B_PATH")
else:
    e(f"s_cmp_lt_u32 s2, {P.NB}")
    e("s_cbranch_scc1 B_PATH")

N = P.NBUF
NPRO = max(P.NPRO, N)
J = P.J
assert J > NPRO + 2 * N + 2 and P.PW <= NPRO
LIMIT = 0x800000
e(f"s_sub_u32 s{sId}, s2, {0 if P.BLAST else P.NB}")
e(f"s_lshr_b32 s{sH}, s{sId}, 3")
e(f"s_and_b32 s{sS}, s{sId}, 7")
e(f"s_lshl_b32 s{sT0}, s{sS}, 2")
e(f"s_add_u32 s{sH}, s{sH}, s{sT0}")
e(f"s_and_b32 s{sH}, s{sH}, 31")
e(f"s_lshl_b32 s{sId}, s{sH}, 3")
e(f"s_add_u32 s{sId}, s{sId}, s{sS}")
e(f"s_lshl_b32 s{sT0}, s{sH}, 23")
srd(sK, pAk, LIMIT, sT0)
srd(sV, pAv, LIMIT, sT0)
e(f"s_lshl_b32 s{sT0}, s{sH}, 8")
e(f"v_add_u32 v{vCtr}, s{sT0}, v{vCtr}")
e(f"s_add_u32 s{sCtr}, s{pWs}, s{sT0}")
e(f"s_addc_u32 s{sCtr+1}, s{pWs+1}, 0")
e(f"s_lshl_b32 s{sT0}, s{sS}, 2")
e(f"s_add_u32 s{sT0}, s{sT0}, s{sWave}")
e(f"s_lshl_b32 s{sStat}, s{sT0}, 12")
e(f"s_mov_b32 s{sJ}, 0")
e(f"s_mul_i32 s{sRot}, s{sH}, {hex(P.ROT*4096)}")
if P.REV:
    e(f"s_and_b32 s{sRot}, s{sH}, {P.REV}")
    e(f"s_cmp_lg_u32 s{sRot}, 0")
    e(f"s_cselect_b32 s{sRot}, {hex(P.RMASK)}, 0")

def A_issueK(b):
    for t in range(4):
        e(f"buffer_load_dwordx4 {vr(vBuf+32*b+4*t,4)}, v{vOffK}, {sr(sK,4)}, s{sOff+b} offen offset:{1024*t} nt")
def A_issueV(b, ts=range(4)):
    for t in ts:
        e(f"buffer_load_dwordx4 {vr(vBuf+32*b+16+4*t,4)}, v{vOffV}, {sr(sV,4)}, s{sOff+b} offen offset:{1024*t} nt")
vWo = (vBuf + 32 * max(N, NPRO)) if P.WOEARLY else vBuf
def A_wo_loads():
    cm("leader: issue wo slice loads: load t': lane (n,g) row 16(2g+(n>>3)) + t', cols 64s + 8(n&7)")
    srd(sW, pAwo, 4096 * 1024)
    e(f"v_lshrrev_b32 v{vT}, 3, v{vN}")
    e(f"v_lshl_or_b32 v{vT}, v{vG}, 1, v{vT}")
    e(f"v_lshlrev_b32 v{vT}, 14, v{vT}")
    e(f"v_and_b32 v{vT+1}, 7, v{vN}")
    e(f"v_lshl_or_b32 v{vT}, v{vT+1}, 4, v{vT}")
    e(f"s_lshl_b32 s{sT0}, s{sH}, 17")
    e(f"s_lshl_b32 s{sT1}, s{sS}, 7")
    e(f"s_add_u32 s{sT0}, s{sT0}, s{sT1}")
    for t in range(16):
        if t % 4 == 0 and t > 0:
            e(f"s_add_u32 s{sT0}, s{sT0}, 4096")
        e(f"buffer_load_dwordx4 {vr(vWo+4*t,4)}, v{vT}, {sr(sW,4)}, s{sT0} offen offset:{1024*(t%4)} nt")
def stat_off(b):
    if P.REV:
        e(f"s_xor_b32 s{sOff+b}, s{sStat}, s{sRot}")
    elif P.ROT:
        e(f"s_add_u32 s{sOff+b}, s{sStat}, s{sRot}")
        e(f"s_and_b32 s{sOff+b}, s{sOff+b}, {hex(LIMIT-1)}")
    else:
        e(f"s_mov_b32 s{sOff+b}, s{sStat}")
def A_slot(b):
    stat_off(b)
    e(f"s_add_u32 s{sStat}, s{sStat}, 0x20000")
    A_issueK(b)
    A_issueV(b)
def read_flag():
    e(f"v_mov_b32 v{vT}, 0")
    e(f"ds_read_b32 v{vT+1}, v{vT} offset:{LDS_FLAG}")
    e("s_waitcnt lgkmcnt(0)")
    e(f"v_readfirstlane_b32 s{sFlag}, v{vT+1}")

cm("x (ushort) + 4 wq loads per wave, issued before anything else")
srd(sW, pAx, 1024)
e(f"v_lshrrev_b32 v{vT}, 2, v{vN}")
e(f"v_lshlrev_b32 v{vT}, 3, v{vT}")
e(f"v_lshl_or_b32 v{vT}, v{vG}, 1, v{vT}")
e(f"s_lshl_b32 s{sT0}, s{sS}, 7")
e(f"s_lshl_b32 s{sT1}, s{sWave}, 5")
e(f"s_add_u32 s{sT0}, s{sT0}, s{sT1}")
e(f"buffer_load_ushort v{vZ}, v{vT}, {sr(sW,4)}, s{sT0} offen")
e(f"v_lshlrev_b32 v{vT+1}, 13, v{vG}")
e(f"v_lshl_or_b32 v{vT+1}, v{vN}, 4, v{vT+1}")
srd(sW, pAwq, 512 * 8192)
e(f"s_lshl_b32 s{sT0}, s{sT0}, 12")
e(f"s_lshl_b32 s{sT1}, s{sH}, 8")
e(f"s_add_u32 s{sT0}, s{sT0}, s{sT1}")
wqb = A_vS
for tt in range(4):
    e(f"buffer_load_dwordx4 {vr(wqb+4*tt,4)}, v{vT+1}, {sr(sW,4)}, s{sT0} offen nt")
    if tt < 3:
        e(f"s_add_u32 s{sT0}, s{sT0}, 0x8000")
e(f"s_cmp_lg_u32 s{sWave}, 0")
e("s_cbranch_scc1 A_NONLEADER0")
cm("leader: nonce load, counter init")
e(f"v_mov_b32 v{vT}, 0")
e(f"buffer_load_dword v{vTag}, v{vT}, {sr(sX,4)}, 0 offen sc1")
if P.WARM:
    e(f"buffer_load_dword v{vT+6}, v{vCtr}, {sr(sWS,4)}, 0 offen offset:128 sc1")
e(f"s_cmp_lg_u32 s{sS}, 0")
e("s_cbranch_scc1 A_NOCTR")
e(f"v_mov_b32 v{vT+5}, {CBASE}")
e(f"buffer_store_dword v{vT+5}, v{vCtr}, {sr(sWS,4)}, 0 offen sc1")
lab("A_NOCTR")
e("s_branch A_COMMON0")
lab("A_NONLEADER0")
for b in range(P.PW):
    A_slot(b)
e(f"v_mov_b32 v{vT}, 0")
e(f"ds_write_b32 v{vT}, v{vT} offset:{LDS_FLAG}")
lab("A_COMMON0")
lane_consts()
e(f"s_mov_b32 s{sFlag}, 0")
e(f"s_cmp_eq_u32 s{sWave}, 0")
e("s_cbranch_scc1 A_LW")
e(f"s_waitcnt vmcnt({8*P.PW})")
e("s_branch A_QMFMA")
lab("A_LW")
e(f"s_waitcnt vmcnt({2 if P.WARM else 1})")
lab("A_QMFMA")
e(f"v_lshl_or_b32 v{vZ}, v{vZ}, 16, v{vZ}")
nop(2)
a0 = rowsum_mfma(vZ, 0, 0, None, None, None)
a1 = rowsum_mfma(vZ, 1, 1, None, None, None)
e(f"v_mfma_f32_16x16x32_bf16 {vr(A_vO,4)}, {vr(a0,4)}, {vr(wqb,4)}, 0")
rowsum_mfma(vZ, 2, 0, None, None, None)
e(f"v_mfma_f32_16x16x32_bf16 {vr(A_vO,4)}, {vr(a1,4)}, {vr(wqb+4,4)}, {vr(A_vO,4)}")
rowsum_mfma(vZ, 3, 1, None, None, None)
e(f"v_mfma_f32_16x16x32_bf16 {vr(A_vO,4)}, {vr(a0,4)}, {vr(wqb+8,4)}, {vr(A_vO,4)}")
nop(1)
e(f"v_mfma_f32_16x16x32_bf16 {vr(A_vO,4)}, {vr(a1,4)}, {vr(wqb+12,4)}, {vr(A_vO,4)}")
e(f"v_lshlrev_b32 v{vT}, 5, v{vN}")
e(f"v_lshl_or_b32 v{vT}, v{vG}, 4, v{vT}")
e(f"s_lshl_b32 s{sT0}, s{sWave}, 9")
e(f"v_add_u32 v{vT+1}, s{sT0}, v{vT}")
e(f"s_cmp_eq_u32 s{sWave}, 0")
e("s_cbranch_scc1 A_LEADER1")
nop(3)
e("s_mov_b32 exec_hi, 0")
e(f"ds_write_b128 v{vT+1}, {vr(A_vO,4)} offset:{LDS_O}")
e("s_mov_b64 exec, -1")
e("s_waitcnt lgkmcnt(0)")
e("s_barrier")
e("s_branch A_PACE")
lab("A_LEADER1")
e("s_barrier")
for w in range(1, 4):
    e(f"ds_read_b128 {vr(wqb+4*w,4)}, v{vT} offset:{LDS_O+512*w}")
stamp(3)
get_nonce("A")
e("s_waitcnt lgkmcnt(0)")
for w in range(1, 4):
    for i in range(4):
        e(f"v_add_f32 v{A_vO+i}, v{A_vO+i}, v{wqb+4*w+i}")
e(f"v_lshlrev_b32 v{vT}, 6, v{vN}")
e(f"v_lshl_or_b32 v{vT}, v{vG}, 5, v{vT}")
e(f"v_mov_b32 v{vT+1}, {hex(OOB)}")
e(f"v_cmp_gt_u32 vcc, 32, v{vLane}")
e(f"s_lshl_b32 s{sT0}, s{sId}, 10")
e(f"s_add_u32 s{sT0}, s{sT0}, {hex(WS_QA)}")
e(f"v_cndmask_b32 v{vT}, v{vT+1}, v{vT}, vcc")
b0 = vBuf
for i in range(4):
    e(f"v_mov_b32 v{b0+2*i}, v{A_vO+i}")
    e(f"v_mov_b32 v{b0+2*i+1}, s{sNonce}")
e(f"buffer_store_dwordx4 {vr(b0,4)}, v{vT}, {sr(sWS,4)}, s{sT0} offen sc1")
e(f"buffer_store_dwordx4 {vr(b0+4,4)}, v{vT}, {sr(sWS,4)}, s{sT0} offen offset:16 sc1")
e(f"v_and_b32 v{vT}, 1, v{vG}")
e(f"v_lshlrev_b32 v{vT}, 5, v{vT}")
e(f"v_lshl_or_b32 v{vT}, v{vN}, 6, v{vT}")
e(f"v_lshrrev_b32 v{vT+1}, 5, v{vLane}")
e(f"v_lshl_or_b32 v{vT}, v{vT+1}, 12, v{vT}")
e(f"s_lshl_b32 s{sT0}, s{sH}, 13")
e(f"s_add_u32 s{sT0}, s{sT0}, {hex(WS_QA)}")
g0 = vBuf + 8
lds_ = []
for k in range(4):
    lds_.append((f"buffer_load_dwordx4 {vr(g0+8*k,4)}, v{vT}, {sr(sWS,4)}, s{sT0} offen offset:{1024*k} sc1", [g0+8*k+1, g0+8*k+3], None))
    lds_.append((f"buffer_load_dwordx4 {vr(g0+8*k+4,4)}, v{vT}, {sr(sWS,4)}, s{sT0} offen offset:{1024*k+16} sc1", [g0+8*k+5, g0+8*k+7], None))
masked_poll("A_Q", lds_, P.SLEEPQ)
stamp(5)
for i in range(4):
    e(f"v_add_f32 v{A_vO+i}, v{g0+2*i}, v{g0+8+2*i}")
    e(f"v_add_f32 v{A_vO+i}, v{A_vO+i}, v{g0+16+2*i}")
    e(f"v_add_f32 v{A_vO+i}, v{A_vO+i}, v{g0+24+2*i}")
for b in range(N):
    A_slot(b)
e(f"s_mov_b32 s{sJ}, {N}")
for i in range(4):
    e(f"v_mov_b32 v{A_vS+i}, v{A_vO+i}")
nop(2)
for i in range(4):
    e(f"v_permlane32_swap_b32 v{A_vS+i}, v{A_vO+i}")
nop(1)
for i in range(4):
    e(f"v_add_f32 v{A_vO+i}, v{A_vS+i}, v{A_vO+i}")
e(f"v_cvt_pk_bf16_f32 v{A_vS}, v{A_vO}, v{A_vO+1}")
e(f"v_cvt_pk_bf16_f32 v{A_vS+1}, v{A_vO+2}, v{A_vO+3}")
e(f"v_and_b32 v{vT}, 1, v{vG}")
e(f"v_lshlrev_b32 v{vT}, 3, v{vT}")
e(f"v_lshl_or_b32 v{vT}, v{vN}, 4, v{vT}")
e(f"ds_write_b64 v{vT}, {vr(A_vS,2)} offset:{LDS_Q}")
e(f"v_mov_b32 v{vT}, 0")
e(f"v_mov_b32 v{vT+1}, 1")
e("s_waitcnt lgkmcnt(0)")
e(f"ds_write_b32 v{vT}, v{vT+1} offset:{LDS_FLAG}")
if P.WOEARLY == 1:
    A_wo_loads()
    e("s_waitcnt vmcnt(0)")
e("s_branch A_QGO")
lab("A_PACE")
cm("paced prefetch of the remaining slots while q is being exchanged")
if P.PW == 0:
    lab("A_QSPIN0")
    read_flag()
    e(f"s_cmp_eq_u32 s{sFlag}, 0")
    e("s_cbranch_scc1 A_QSPIN0")
for b in range(P.PW, NPRO):
    e(f"s_cmp_lg_u32 s{sFlag}, 0")
    e(f"s_cbranch_scc1 A_PGO{b}")
    e(f"s_waitcnt vmcnt({8*max(P.PW-1,0)})")
    stampw(b)
    read_flag()
    lab(f"A_PGO{b}")
    A_slot(b)
e(f"s_mov_b32 s{sJ}, {NPRO}")
lab("A_QSPIN")
e(f"s_cmp_lg_u32 s{sFlag}, 0")
e("s_cbranch_scc1 A_QGO")
read_flag()
e(f"s_add_u32 s{sCnt}, s{sCnt}, 1")
e(f"s_cmp_gt_u32 s{sCnt}, {hex(0x4000000)}")
e("s_cbranch_scc1 A_QGO")
e("s_branch A_QSPIN")
lab("A_QGO")
stampw(4)
e(f"s_mov_b32 s{sCnt}, 0")
e(f"v_and_b32 v{vT}, 3, v{vN}")
e(f"v_lshlrev_b32 v{vT}, 4, v{vT}")
e(f"v_lshl_or_b32 v{vT}, v{vG}, 6, v{vT}")
e(f"ds_read_b128 {vr(A_vS,4)}, v{vT} offset:{LDS_Q}")
e(f"v_lshrrev_b32 v{vT+1}, 2, v{vN}")
for i in range(4):
    e(f"v_mov_b32 v{A_vO+i}, 0")
e("s_waitcnt lgkmcnt(0)")
for t in range(4):
    e(f"v_cmp_eq_u32 vcc, {t}, v{vT+1}")
    nop(2)
    for i in range(4):
        e(f"v_cndmask_b32 v{A_vQ+4*t+i}, 0, v{A_vS+i}, vcc")
nop(2)

rare = []
def sclaim(tag):
    e(f"s_cmp_lt_u32 s{sJ}, {J}")
    e(f"s_cbranch_scc1 A_NOCLAIM{tag}")
    e(f"s_mov_b32 s{sClaim}, 1")
    e(f"s_atomic_add s{sClaim}, s[{sCtr}:{sCtr+1}], 0x0 glc")
    lab(f"A_NOCLAIM{tag}")
def A_body(b, tag, kwait, vwait, refill, exitcheck, cl=0):
    kb = vBuf + 32 * b
    vb = kb + 16
    cm(f"--- A body {tag}")
    if exitcheck:
        e(f"s_cmp_ge_u32 s{sOff+b}, {hex(LIMIT)}")
        e("s_cbranch_scc1 A_EXIT")
    e(f"s_waitcnt vmcnt({kwait})")
    for t in range(4):
        c = "0" if t == 0 else vr(A_vS, 4)
        e(f"v_mfma_f32_16x16x32_bf16 {vr(A_vS,4)}, {vr(kb+4*t,4)}, {vr(A_vQ+4*t,4)}, {c}")
    if refill:
        e(f"s_cmp_lt_u32 s{sJ}, {J}")
        e(f"s_cbranch_scc1 A_STAT{tag}")
        if P.SAT:
            e("s_waitcnt lgkmcnt(0)")
            e(f"s_min_u32 s{sT0}, s{sClaim}, 0x10000")
        else:
            e(f"v_readfirstlane_b32 s{sT0}, v{A_vClaim+cl}")
            e(f"s_cmp_lg_u32 s{sT0}, 1")
            e(f"s_cbranch_scc1 A_CLOK{tag}")
            e("s_waitcnt vmcnt(0)")
            e(f"v_readfirstlane_b32 s{sT0}, v{A_vClaim+cl}")
            lab(f"A_CLOK{tag}")
            e(f"s_min_u32 s{sT0}, s{sT0}, 0x10000")
        e(f"s_lshl_b32 s{sT0}, s{sT0}, 12")
        e(f"s_add_u32 s{sT0}, s{sT0}, {hex(J*0x20000 - CBASE*4096)}")
        if P.REV:
            e(f"s_xor_b32 s{sT1}, s{sT0}, s{sRot}")
            e(f"s_cmp_lt_u32 s{sT0}, {hex(LIMIT)}")
            e(f"s_cselect_b32 s{sOff+b}, s{sT1}, {hex(OOB)}")
        elif P.ROT:
            e(f"s_add_u32 s{sT1}, s{sT0}, s{sRot}")
            e(f"s_and_b32 s{sT1}, s{sT1}, {hex(LIMIT-1)}")
            e(f"s_cmp_lt_u32 s{sT0}, {hex(LIMIT)}")
            e(f"s_cselect_b32 s{sOff+b}, s{sT1}, {hex(OOB)}")
        else:
            e(f"s_cmp_lt_u32 s{sT0}, {hex(LIMIT)}")
            e(f"s_cselect_b32 s{sOff+b}, s{sT0}, {hex(OOB)}")
        e(f"s_cmp_lt_u32 s{sJ}, 0x1000")
        e(f"s_cselect_b32 s{sOff+b}, s{sOff+b}, {hex(OOB)}")
        e(f"s_branch A_JOIN{tag}")
        lab(f"A_STAT{tag}")
        stat_off(b)
        e(f"s_add_u32 s{sStat}, s{sStat}, 0x20000")
        lab(f"A_JOIN{tag}")
        e(f"s_add_u32 s{sJ}, s{sJ}, 1")
        if P.SAT and P.CLPOS == 0:
            sclaim(tag)
        A_issueK(b)
        nop(2)
    else:
        nop(8)
    s = vT
    e(f"v_mov_b32_dpp v{s}, v{A_vS} quad_perm:[0,0,0,0] {DPPM}")
    for i in range(1, 4):
        e(f"v_add_f32_dpp v{s}, v{A_vS+i}, v{s} quad_perm:[{i},{i},{i},{i}] {DPPM}")
    if P.MIMIC:
        e(f"v_cvt_pk_bf16_f32 v{s}, v{s}, v{s}")
        e(f"v_and_b32 v{s}, 0xffff0000, v{s}")
        e(f"v_mul_f32 v{s}, s{sScale}, v{s}")
        e(f"v_cvt_pk_bf16_f32 v{s}, v{s}, v{s}")
        e(f"v_and_b32 v{s}, 0xffff0000, v{s}")
    else:
        e(f"v_mul_f32 v{s}, s{sScale}, v{s}")
    e(f"v_cmp_gt_f32 vcc, v{s}, v{vM}")
    e(f"s_cbranch_vccnz A_RARE{tag}")
    lab(f"A_BACK{tag}")
    e(f"v_fma_f32 v{s+1}, v{s}, s{sLog2e}, -v{vML}")
    e(f"v_exp_f32 v{s+1}, v{s+1}")
    nop(1)
    e(f"v_cvt_pk_bf16_f32 v{s+2}, v{s+1}, v{s+1}")
    e(f"v_add_f32 v{vL}, v{vL}, v{s+1}")
    e(f"s_waitcnt vmcnt({vwait})")
    pp = s + 2
    a0 = rowsum_mfma(pp, 0, 0, None, None, None)
    a1 = rowsum_mfma(pp, 1, 1, None, None, None)
    e(f"v_mfma_f32_16x16x32_bf16 {vr(A_vO,4)}, {vr(a0,4)}, {vr(vb,4)}, {vr(A_vO,4)}")
    rowsum_mfma(pp, 2, 0, None, None, None)
    e(f"v_mfma_f32_16x16x32_bf16 {vr(A_vO,4)}, {vr(a1,4)}, {vr(vb+4,4)}, {vr(A_vO,4)}")
    rowsum_mfma(pp, 3, 1, None, None, None)
    e(f"v_mfma_f32_16x16x32_bf16 {vr(A_vO,4)}, {vr(a0,4)}, {vr(vb+8,4)}, {vr(A_vO,4)}")
    if refill: A_issueV(b, [0, 1])
    else: nop(2)
    e(f"v_mfma_f32_16x16x32_bf16 {vr(A_vO,4)}, {vr(a1,4)}, {vr(vb+12,4)}, {vr(A_vO,4)}")
    if refill:
        A_issueV(b, [2, 3])
        if P.SAT:
            if P.CLPOS == 1:
                sclaim(tag)
            rare.append(tag)
            return
        e(f"s_cmp_lt_u32 s{sJ}, {J-(P.LA-1)}")
        e(f"s_cbranch_scc1 A_NOCLAIM{tag}")
        e(f"v_mov_b32 v{A_vClaim+cl}, 1")
        e(f"buffer_atomic_add v{A_vClaim+cl}, v{vCtr}, {sr(sWS,4)}, 0 offen sc0")
        if P.FAKEAT:
            e(f"s_branch A_CL2{tag}")
        lab(f"A_NOCLAIM{tag}")
        if P.FAKEAT:
            e(f"v_mov_b32 v63, 1")
            e(f"buffer_atomic_add v63, v{vCtr}, {sr(sWS,4)}, 0 offen offset:128 sc0")
            lab(f"A_CL2{tag}")
    rare.append(tag)

if NPRO > N:
    e(f"s_cmp_eq_u32 s{sWave}, 0")
    e("s_cbranch_scc1 A_LOOP")
    for b in range(NPRO):
        base = 8 * (NPRO - 1 - b) + 8 * min(b, N)
        A_body(b, f"P{b}", 4 + base, base + (4 if b < N else 0), b < N, False, 0)
lab("A_LOOP")
if P.STAMP == 2:
    for k, jj in ((5, 8), (6, 12), (7, 20)):
        e(f"s_cmp_lg_u32 s{sJ}, {jj}")
        e(f"s_cbranch_scc1 A_ST{k}")
        stampw(k)
        lab(f"A_ST{k}")
U = N if (P.SAT or N % P.LA == 0) else P.LA * N
for k in range(U):
    A_body(k % N, f"L{k}", 8 * N - 4, 8 * N - 4, True, True, k % P.LA)
e("s_branch A_LOOP")
for tag in rare:
    s = vT
    lab(f"A_RARE{tag}")
    x = s + 3
    e(f"v_mov_b32 v{x}, v{s}")
    ror_reduce("v_max_f32", x, [4, 8])
    allreduce_rows("v_max_f32", x, s + 4, s + 5)
    e(f"v_mul_f32 v{s+4}, s{sLog2e}, v{x}")
    e(f"v_sub_f32 v{s+5}, v{vML}, v{s+4}")
    e(f"v_exp_f32 v{s+5}, v{s+5}")
    e(f"v_mov_b32 v{vM}, v{x}")
    e(f"v_mov_b32 v{vML}, v{s+4}")
    nop(8)
    e(f"v_mul_f32 v{vL}, v{vL}, v{s+5}")
    for i in range(4):
        e(f"v_mul_f32 v{A_vO+i}, v{A_vO+i}, v{s+5}")
    e(f"s_branch A_BACK{tag}")

lab("A_EXIT")
e("s_waitcnt vmcnt(0) lgkmcnt(0)")
stamp(6)
if not P.WOEARLY:
    e(f"s_cmp_lg_u32 s{sWave}, 0")
    e("s_cbranch_scc1 A_NOWO")
    A_wo_loads()
    lab("A_NOWO")
ror_reduce("v_add_f32", vL, [4, 8])
allreduce_rows("v_add_f32", vL, vT, vT + 1)
e(f"v_lshlrev_b32 v{vT}, 5, v{vN}")
e(f"v_lshl_or_b32 v{vT}, v{vG}, 4, v{vT}")
e(f"s_lshl_b32 s{sT0}, s{sWave}, 9")
e(f"v_add_u32 v{vT}, s{sT0}, v{vT}")
e(f"s_lshl_b32 s{sT0}, s{sWave}, 3")
e(f"v_mov_b32 v{vT+1}, s{sT0}")
e("s_mov_b32 exec_hi, 0")
e(f"ds_write_b128 v{vT}, {vr(A_vO,4)} offset:{LDS_O}")
e("s_mov_b64 exec, -1")
assert (vT + 3) % 2 == 0
e(f"v_mov_b32 v{vT+3}, v{vML}")
e(f"v_mov_b32 v{vT+4}, v{vL}")
e(f"ds_write_b64 v{vT+1}, {vr(vT+3,2)} offset:{LDS_ML}")
e("s_waitcnt lgkmcnt(0)")
e("s_barrier")
if P.STAMP == 2:
    e(f"s_cmp_lg_u32 s{sWave}, 1")
    e("s_cbranch_scc1 A_NS")
    stamp_store()
    lab("A_NS")
e(f"s_cmp_lg_u32 s{sWave}, 0")
e("s_cbranch_scc1 END")
cm("leader: combine 4 waves")
stamp(1)
c0 = A_vS
e(f"v_mov_b32 v{vT}, 0")
e(f"ds_read_b128 {vr(c0,4)}, v{vT} offset:{LDS_ML}")
e(f"ds_read_b128 {vr(c0+4,4)}, v{vT} offset:{LDS_ML+16}")
e(f"v_lshlrev_b32 v{vT+1}, 3, v{vLane}")
for w in range(4):
    e(f"ds_read_b64 {vr(c0+8+2*w,2)}, v{vT+1} offset:{LDS_O+512*w}")
e("s_waitcnt lgkmcnt(0)")
e(f"v_max3_f32 v{vML}, v{c0}, v{c0+2}, v{c0+4}")
e(f"v_max_f32 v{vML}, v{vML}, v{c0+6}")
for w in range(4):
    e(f"v_sub_f32 v{c0+2*w}, v{c0+2*w}, v{vML}")
    e(f"v_exp_f32 v{c0+2*w}, v{c0+2*w}")
nop(1)
pb = c0 + 16
e(f"v_mul_f32 v{vL}, v{c0}, v{c0+1}")
e(f"v_mul_f32 v{pb}, v{c0}, v{c0+8}")
e(f"v_mul_f32 v{pb+2}, v{c0}, v{c0+9}")
for w in range(1, 4):
    e(f"v_fmac_f32 v{vL}, v{c0+2*w}, v{c0+2*w+1}")
    e(f"v_fmac_f32 v{pb}, v{c0+2*w}, v{c0+8+2*w}")
    e(f"v_fmac_f32 v{pb+2}, v{c0+2*w}, v{c0+9+2*w}")
e(f"v_mov_b32 v{pb+1}, s{sNonce}")
e(f"v_mov_b32 v{pb+3}, s{sNonce}")
e(f"v_mov_b32 v{pb+4}, v{vML}")
e(f"v_mov_b32 v{pb+5}, s{sNonce}")
e(f"v_mov_b32 v{pb+6}, v{vL}")
e(f"v_mov_b32 v{pb+7}, s{sNonce}")
e(f"s_lshl_b32 s{sT0}, s{sId}, 11")
e(f"s_add_u32 s{sT0}, s{sT0}, {hex(WS_PA)}")
e(f"v_mov_b32 v{vT+3}, {hex(OOB)}")
e(f"v_cmp_eq_u32 vcc, 0, v{vLane}")
e(f"buffer_store_dwordx4 {vr(pb,4)}, v{vOffV}, {sr(sWS,4)}, s{sT0} offen sc1")
nop(1)
e(f"v_cndmask_b32 v{vT+2}, v{vT+3}, 0, vcc")
e(f"buffer_store_dwordx4 {vr(pb+4,4)}, v{vT+2}, {sr(sWS,4)}, s{sT0} offen offset:1024 sc1")
stamp(2)
go = 22
gm = 54
e(f"s_lshl_b32 s{sT0}, s{sH}, 14")
e(f"s_add_u32 s{sT0}, s{sT0}, {hex(WS_PA)}")
e(f"s_add_u32 s{sT1}, s{sT0}, 8192")
e(f"v_and_b32 v{vT}, 7, v{vLane}")
e(f"v_lshlrev_b32 v{vT}, 11, v{vT}")
nop(2)
e(f"v_add_u32 v{vT+1}, 4096, v{vOffV}")
lds_ = []
for p in range(8):
    so = sT0 if p < 4 else sT1
    vo = vOffV if (p % 4) < 2 else vT + 1
    lds_.append((f"buffer_load_dwordx4 {vr(go+4*p,4)}, v{vo}, {sr(sWS,4)}, s{so} offen offset:{2048*(p%2)} sc1", [go+4*p+1, go+4*p+3], None))
lds_.append((f"buffer_load_dwordx4 {vr(gm,4)}, v{vT}, {sr(sWS,4)}, s{sT0} offen offset:1024 sc1", [gm+1, gm+3], None))
selE, selO, vLw, vLr, vYo = vMask, 58, 62, 63, vM
def stage2_prep():
    e(f"v_and_b32 v{vT+2}, 1, v{vN}")
    e(f"v_cmp_eq_u32 vcc, 1, v{vT+2}")
    e(f"v_mov_b32 v{vT+3}, 0x0c0c0100")
    e(f"v_mov_b32 v{vT+4}, 0x01000c0c")
    e(f"v_cndmask_b32 v{vT+3}, v{vT+3}, v{vT+4}, vcc")
    e(f"v_mov_b32 v{vT+4}, 0x0c0c0302")
    e(f"v_mov_b32 v{vT+5}, 0x03020c0c")
    e(f"v_cndmask_b32 v{vT+4}, v{vT+4}, v{vT+5}, vcc")
    e(f"v_mov_b32 v{vT+5}, 0x0c0c0c0c")
    e(f"v_bfe_u32 v{vT+2}, v{vN}, 1, 2")
    for i in range(4):
        e(f"v_cmp_eq_u32 vcc, {i}, v{vT+2}")
        nop(2)
        e(f"v_cndmask_b32 v{selE+i}, v{vT+5}, v{vT+3}, vcc")
        e(f"v_cndmask_b32 v{selO+i}, v{vT+5}, v{vT+4}, vcc")
    e(f"v_lshlrev_b32 v{vLw}, 2, v{vLane}")
    e(f"v_lshrrev_b32 v{vT+2}, 3, v{vN}")
    e(f"v_lshl_or_b32 v{vLr}, v{vG}, 1, v{vT+2}")
    e(f"v_lshlrev_b32 v{vLr}, 5, v{vLr}")
    e(f"v_and_b32 v{vYo}, 7, v{vN}")
    e(f"v_lshlrev_b32 v{vYo}, 7, v{vYo}")
    e(f"v_and_b32 v{vT+3}, 1, v{vG}")
    e(f"v_lshl_or_b32 v{vYo}, v{vT+3}, 6, v{vYo}")
    e(f"v_lshl_or_b32 v{vYo}, v{vT+2}, 4, v{vYo}")
    e(f"v_lshrrev_b32 v{vT+3}, 1, v{vG}")
    e(f"v_cmp_eq_u32 vcc, v{vT+2}, v{vT+3}")
    e(f"v_mov_b32 v{vT+3}, {hex(OOB)}")
    e(f"s_lshl_b32 s72, s{sId}, 10")
    e(f"s_add_u32 s72, s72, {hex(WS_YA)}")
    e(f"v_cndmask_b32 v{vYo}, v{vT+3}, v{vYo}, vcc")
masked_poll("A_P", lds_, P.SLEEPP, stage2_prep)
stamp(7)
e(f"v_max_f32_dpp v{vT+2}, v{gm}, v{gm} row_ror:1 {DPPM}")
ror_reduce("v_max_f32", vT + 2, [2, 4])
e(f"v_sub_f32 v{vT+3}, v{gm}, v{vT+2}")
e(f"v_exp_f32 v{vT+3}, v{vT+3}")
e(f"v_mov_b32 v{vT+5}, 0")
e(f"v_mul_f32 v{vT+4}, v{vT+3}, v{gm+2}")
e(f"v_mov_b32 v{vT+6}, 0")
rr = [1, 2, 4]
for p in range(8):
    e(f"v_fmac_f32_dpp v{vT+5}, v{vT+3}, v{go+4*p} row_newbcast:{p} {DPPM}")
    e(f"v_fmac_f32_dpp v{vT+6}, v{vT+3}, v{go+4*p+2} row_newbcast:{p} {DPPM}")
    if p < 3:
        e(f"v_add_f32_dpp v{vT+4}, v{vT+4}, v{vT+4} row_ror:{rr[p]} {DPPM}")
    if p == 3:
        e(f"v_rcp_f32 v{vT+4}, v{vT+4}")
e(f"v_mul_f32 v{vT+5}, v{vT+5}, v{vT+4}")
e(f"v_mul_f32 v{vT+6}, v{vT+6}, v{vT+4}")
e(f"v_cvt_pk_bf16_f32 v{vT+5}, v{vT+5}, v{vT+6}")
e(f"ds_write_b32 v{vLw}, v{vT+5} offset:{LDS_OB}")
od = 34
e(f"ds_read_b128 {vr(od,4)}, v{vLr} offset:{LDS_OB}")
e(f"ds_read_b128 {vr(od+4,4)}, v{vLr} offset:{LDS_OB+16}")
yb = 42
for i in range(4):
    e(f"v_mov_b32 v{yb+2*i+1}, s{sNonce}")
e("s_waitcnt lgkmcnt(0)")
yacc = 54
def abuild(t):
    a = vAop + 4 * (t & 1)
    sel = selO if t & 1 else selE
    for i in range(4):
        e(f"v_perm_b32 v{a+i}, v{od+t//2}, v{od+t//2}, v{sel+i}")
abuild(0)
for t in range(16):
    if t < 15: abuild(t + 1)
    else: nop(2)
    a = vAop + 4 * (t & 1)
    c = "0" if t == 0 else vr(yacc, 4)
    e(f"v_mfma_f32_16x16x32_bf16 {vr(yacc,4)}, {vr(a,4)}, {vr(vWo+4*t,4)}, {c}")
nop(8)
for i in range(4):
    e(f"v_mov_b32 v{yb+2*i}, v{yacc+i}")
e(f"buffer_store_dwordx4 {vr(yb,4)}, v{vYo}, {sr(sWS,4)}, s72 offen sc1")
e(f"buffer_store_dwordx4 {vr(yb+4,4)}, v{vYo}, {sr(sWS,4)}, s72 offen offset:32 sc1")
stamp(4)
e(f"s_cmp_ge_u32 s{sH}, 4")
e("s_cbranch_scc1 A_FIN")
e(f"v_lshlrev_b32 v{vT}, 13, v{vG}")
e(f"v_lshl_or_b32 v{vT}, v{vN}, 4, v{vT}")
e(f"s_lshl_b32 s{sT0}, s{sS}, 10")
e(f"s_lshl_b32 s{sT1}, s{sH}, 8")
e(f"s_add_u32 s{sT0}, s{sT0}, s{sT1}")
e(f"s_add_u32 s{sT0}, s{sT0}, {hex(WS_YA)}")
gy = vBuf
lds_ = []
for k in range(8):
    lds_.append((f"buffer_load_dwordx4 {vr(gy+4*k,4)}, v{vT}, {sr(sWS,4)}, s{sT1} offen sc1", [gy+4*k+1, gy+4*k+3], f"s_add_u32 s{sT1}, s{sT0}, {hex(k*0x8000)}"))
def stage3_prep():
    srd(sW, pOut, 2048)
    e(f"v_and_b32 v{vT+1}, 0x31, v{vLane}")
    e(f"v_cmp_eq_u32 vcc, 0, v{vT+1}")
    e(f"v_mov_b32 v{vT+3}, {hex(OOB)}")
    e(f"v_lshlrev_b32 v{vT+6}, 1, v{vLane}")
    e(f"s_lshl_b32 s72, s{sS}, 7")
    e(f"s_lshl_b32 s73, s{sH}, 5")
    e(f"s_add_u32 s72, s72, s73")
    e(f"v_cndmask_b32 v{vT+6}, v{vT+3}, v{vT+6}, vcc")
masked_poll("A_Y", lds_, P.SLEEPY, stage3_prep)
for k in range(1, 8):
    e(f"v_add_f32 v{gy}, v{gy}, v{gy+4*k}")
    e(f"v_add_f32 v{gy+2}, v{gy+2}, v{gy+4*k+2}")
nop(1)
e(f"v_add_f32_dpp v{gy}, v{gy}, v{gy} quad_perm:[1,0,3,2] {DPPM}")
e(f"v_add_f32_dpp v{gy+2}, v{gy+2}, v{gy+2} quad_perm:[1,0,3,2] {DPPM}")
for sw in ("v_permlane16_swap_b32", "v_permlane32_swap_b32"):
    e(f"v_mov_b32 v{vT+2}, v{gy}")
    e(f"v_mov_b32 v{vT+4}, v{gy+2}")
    nop(1)
    e(f"{sw} v{vT+2}, v{gy}")
    e(f"{sw} v{vT+4}, v{gy+2}")
    e(f"v_add_f32 v{gy}, v{vT+2}, v{gy}")
    e(f"v_add_f32 v{gy+2}, v{vT+4}, v{gy+2}")
e(f"v_cvt_pk_bf16_f32 v{gy}, v{gy}, v{gy+2}")
e(f"buffer_store_dword v{gy}, v{vT+6}, {sr(sW,4)}, s72 offen")
lab("A_FIN")
if P.STAMP == 1:
    stamp_store()
e("s_branch END")

lab("B_PATH")
if P.BLAST:
    e(f"s_sub_u32 s2, s2, {P.NA}")
NBf = P.NBUFB
lane_consts()
e(f"s_lshr_b32 s{sH}, s2, 2")
e(f"s_and_b32 s{sS}, s2, 3")
e(f"s_lshl_b32 s{sT0}, s{sH}, 23")
e(f"s_lshl_b32 s{sT1}, s{sS}, 18")
e(f"s_add_u32 s{sT0}, s{sT0}, s{sT1}")
e(f"s_add_u32 s{sT0}, s{sT0}, {hex((32768-4096)*256)}")
BLIM = 1024 * 256
srd(sK, pBk, BLIM, sT0)
srd(sV, pBv, BLIM, sT0)
e(f"s_cmp_lg_u32 s{sWave}, 0")
e("s_cbranch_scc1 B_NONONCE")
e(f"v_mov_b32 v{vT}, 0")
e(f"buffer_load_dword v{vTag}, v{vT}, {sr(sX,4)}, 0 offen sc1")
get_nonce("B")
if P.BWAIT:
    cm("B starts its heavy loads only after the A q-exchange of head s2 has been published")
    e(f"s_lshl_b32 s{sT0}, s2, 13")
    e(f"s_add_u32 s{sT0}, s{sT0}, {hex(WS_QA)}")
    e(f"v_and_b32 v{vT}, 7, v{vLane}")
    e(f"v_lshlrev_b32 v{vT}, 10, v{vT}")
    lab("B_WPOLL")
    e(f"buffer_load_dwordx2 {vr(34,2)}, v{vT}, {sr(sWS,4)}, s{sT0} offen sc1")
    e("s_waitcnt vmcnt(0)")
    tag_check([35], vT + 2, vT + 3)
    e("s_cbranch_vccz B_WDONE")
    e(f"s_add_u32 s{sCnt}, s{sCnt}, 1")
    e(f"s_cmp_gt_u32 s{sCnt}, {hex(P.SPIN)}")
    e("s_cbranch_scc1 B_WDONE")
    e(f"s_sleep {P.SLEEP*8}")
    e("s_branch B_WPOLL")
    lab("B_WDONE")
lab("B_NONONCE")
e("s_barrier")
srd(sW, pBx, 1024)
e(f"v_lshrrev_b32 v{vT}, 2, v{vN}")
e(f"v_lshlrev_b32 v{vT}, 4, v{vT}")
e(f"v_lshl_or_b32 v{vT}, v{vG}, 6, v{vT}")
e(f"s_lshl_b32 s{sT0}, s{sWave}, 8")
e(f"buffer_load_dwordx4 {vr(34,4)}, v{vT}, {sr(sW,4)}, s{sT0} offen")
nop(1)

def rowsum128(xd, rowstride_log2, label):
    ppb = 38
    first = True
    for half in range(2):
        for Tq in range(4):
            T = half * 4 + Tq
            for tt in range(4):
                idx = Tq * 4 + tt
                e(f"s_add_u32 s{sT1}, s{sT0}, {hex((8*tt+T) << rowstride_log2)}")
                e(f"buffer_load_dwordx4 {vr(vBuf+4*idx,4)}, v{vT+1}, {sr(sW,4)}, s{sT1} offen nt")
        if half == 0:
            yield "loads_issued"
            for T in range(8):
                e(f"v_perm_b32 v{ppb+T}, v{xd+T//2}, v{xd+T//2}, s{sDupHi if T&1 else sDupLo}")
            nop(2)
        for Tq in range(4):
            T = half * 4 + Tq
            for tt in range(4):
                idx = Tq * 4 + tt
                a = rowsum_mfma(ppb + T, tt, idx & 1, None, None, None)
                e(f"s_waitcnt vmcnt({15-idx})")
                nop(1)
                c = "0" if first else vr(B_vO, 4)
                first = False
                e(f"v_mfma_f32_16x16x32_bf16 {vr(B_vO,4)}, {vr(a,4)}, {vr(vBuf+4*idx,4)}, {c}")

srd(sW, pBwq, 512 * 8192)
e(f"v_lshlrev_b32 v{vT+1}, 18, v{vG}")
e(f"v_lshl_or_b32 v{vT+1}, v{vN}, 4, v{vT+1}")
e(f"s_lshl_b32 s{sT0}, s{sWave}, 20")
e(f"s_lshl_b32 s{sT1}, s2, 8")
e(f"s_add_u32 s{sT0}, s{sT0}, s{sT1}")
gen = rowsum128(34, 13, "BQ")
next(gen)
e("s_waitcnt vmcnt(16)")
for _ in gen: pass
e(f"v_lshlrev_b32 v{vT}, 5, v{vN}")
e(f"v_lshl_or_b32 v{vT}, v{vG}, 4, v{vT}")
e(f"s_lshl_b32 s{sT0}, s{sWave}, 9")
e(f"v_add_u32 v{vT}, s{sT0}, v{vT}")
nop(8)
e("s_mov_b32 exec_hi, 0")
e(f"ds_write_b128 v{vT}, {vr(B_vO,4)} offset:{LDS_O}")
e("s_mov_b64 exec, -1")
e("s_waitcnt lgkmcnt(0)")
e("s_barrier")

def B_issueK(b):
    for t in range(4):
        e(f"buffer_load_dwordx4 {vr(vBuf+32*b+4*t,4)}, v{vOffK}, {sr(sK,4)}, s{sOff+b} offen offset:{1024*t} nt")
def B_issueV(b, ts=range(4)):
    for t in ts:
        e(f"buffer_load_dwordx4 {vr(vBuf+32*b+16+4*t,4)}, v{vOffV}, {sr(sV,4)}, s{sOff+b} offen offset:{1024*t} nt")
def B_prefetch():
    e(f"s_lshl_b32 s{sStat}, s{sWave}, 12")
    for b in range(NBf):
        e(f"s_mov_b32 s{sOff+b}, s{sStat}")
        e(f"s_add_u32 s{sStat}, s{sStat}, 0x4000")
        B_issueK(b)
        B_issueV(b)

e(f"s_cmp_lg_u32 s{sWave}, 0")
e("s_cbranch_scc1 B_NONLEADER")
e(f"v_lshlrev_b32 v{vT+1}, 3, v{vLane}")
for w in range(4):
    e(f"ds_read_b64 {vr(34+2*w,2)}, v{vT+1} offset:{LDS_O+512*w}")
e("s_waitcnt lgkmcnt(0)")
for i in range(2):
    e(f"v_add_f32 v{34+i}, v{34+i}, v{36+i}")
    e(f"v_add_f32 v{34+i}, v{34+i}, v{38+i}")
    e(f"v_add_f32 v{34+i}, v{34+i}, v{40+i}")
e(f"v_cvt_pk_bf16_f32 v{34}, v{34}, v{35}")
e(f"v_mov_b32 v{35}, s{sNonce}")
e(f"s_lshl_b32 s{sT0}, s2, 10")
e(f"s_add_u32 s{sT0}, s{sT0}, {hex(WS_QB)}")
e(f"buffer_store_dwordx2 {vr(34,2)}, v{vT+1}, {sr(sWS,4)}, s{sT0} offen sc1")
e(f"s_lshl_b32 s{sT0}, s{sH}, 12")
e(f"s_add_u32 s{sT0}, s{sT0}, {hex(WS_QB)}")
lab("B_QPOLL")
for j in range(4):
    e(f"buffer_load_dwordx2 {vr(36+2*j,2)}, v{vT+1}, {sr(sWS,4)}, s{sT0} offen offset:{1024*j} sc1")
e("s_waitcnt vmcnt(0)")
tag_check([37, 39, 41, 43], vT + 2, vT + 3)
e("s_cbranch_vccz B_QDONE")
e(f"s_add_u32 s{sCnt}, s{sCnt}, 1")
e(f"s_cmp_gt_u32 s{sCnt}, {hex(P.SPIN)}")
e("s_cbranch_scc1 B_QDONE")
e(f"s_sleep {P.SLEEP*4}")
e("s_branch B_QPOLL")
lab("B_QDONE")
e(f"v_lshlrev_b32 v{vT}, 2, v{vLane}")
for j in range(4):
    e(f"ds_write_b32 v{vT}, v{36+2*j} offset:{LDS_Q+256*j}")
e(f"v_mov_b32 v{vT+2}, 0")
e(f"ds_write_b32 v{vT+2}, v{35} offset:{LDS_NONCE}")
B_prefetch()
e("s_waitcnt lgkmcnt(0)")
e("s_branch B_QBAR")
lab("B_NONLEADER")
B_prefetch()
lab("B_QBAR")
e("s_barrier")
e(f"ds_read_b128 {vr(B_vQ,4)}, v{vOffK} offset:{LDS_Q}")
e(f"v_mov_b32 v{vT+2}, 0")
e(f"ds_read_b32 v{vTag}, v{vT+2} offset:{LDS_NONCE}")
vMa, vMb = 62, 63
e(f"v_and_b32 v{vT}, 1, v{vN}")
e(f"v_cmp_eq_u32 vcc, 1, v{vT}")
e(f"v_mov_b32 v{vT+1}, 0xffff")
e(f"v_mov_b32 v{vT+2}, 0xffff0000")
e(f"v_cndmask_b32 v{vT+1}, v{vT+1}, v{vT+2}, vcc")
e(f"v_and_b32 v{vT}, 2, v{vN}")
e(f"v_cmp_eq_u32 vcc, 0, v{vT}")
nop(2)
e(f"v_cndmask_b32 v{vMa}, 0, v{vT+1}, vcc")
e(f"v_cndmask_b32 v{vMb}, v{vT+1}, 0, vcc")
for i in range(12):
    e(f"v_mov_b32 v{vAop+i}, 0")
for i in range(8):
    e(f"v_mov_b32 v{B_vO+i}, 0")
e("s_waitcnt lgkmcnt(0)")
e(f"v_readfirstlane_b32 s{sNonce}, v{vTag}")
nop(2)
lab("B_LOOP")
rareB = []
for b in range(NBf):
    kb = vBuf + 32 * b
    vb = kb + 16
    cm(f"--- B body {b}")
    e(f"s_cmp_ge_u32 s{sOff+b}, {hex(BLIM)}")
    e("s_cbranch_scc1 B_EXIT")
    e(f"s_waitcnt vmcnt({8*NBf-4})")
    for t in range(4):
        e(f"v_mfma_f32_16x16x32_bf16 {vr(B_vS+4*t,4)}, {vr(kb+4*t,4)}, {vr(B_vQ,4)}, 0")
    e(f"s_mov_b32 s{sOff+b}, s{sStat}")
    e(f"s_add_u32 s{sStat}, s{sStat}, 0x4000")
    B_issueK(b)
    nop(2)
    s = vT
    for t in range(4):
        e(f"v_mov_b32_dpp v{s+t}, v{B_vS+4*t} quad_perm:[0,0,0,0] {DPPM}")
        for i in range(1, 4):
            e(f"v_add_f32_dpp v{s+t}, v{B_vS+4*t+i}, v{s+t} quad_perm:[{i},{i},{i},{i}] {DPPM}")
    for t in range(4):
        if P.MIMIC:
            e(f"v_cvt_pk_bf16_f32 v{s+t}, v{s+t}, v{s+t}")
            e(f"v_and_b32 v{s+t}, 0xffff0000, v{s+t}")
            e(f"v_mul_f32 v{s+t}, s{sScale}, v{s+t}")
            e(f"v_cvt_pk_bf16_f32 v{s+t}, v{s+t}, v{s+t}")
            e(f"v_and_b32 v{s+t}, 0xffff0000, v{s+t}")
        else:
            e(f"v_mul_f32 v{s+t}, s{sScale}, v{s+t}")
    e(f"v_max3_f32 v{s+4}, v{s}, v{s+1}, v{s+2}")
    e(f"v_max_f32 v{s+4}, v{s+4}, v{s+3}")
    e(f"v_cmp_gt_f32 vcc, v{s+4}, v{vM}")
    e(f"s_cbranch_vccnz B_RARE{b}")
    lab(f"B_BACK{b}")
    for t in range(4):
        e(f"v_fma_f32 v{s+t}, v{s+t}, s{sLog2e}, -v{vML}")
        e(f"v_exp_f32 v{s+t}, v{s+t}")
    nop(1)
    for t in range(4):
        e(f"v_add_f32 v{vL}, v{vL}, v{s+t}")
        e(f"v_cvt_pk_bf16_f32 v{s+t}, v{s+t}, v{s+t}")
    e(f"s_waitcnt vmcnt({8*NBf-4})")
    for t in range(4):
        sx = vAop + 6 * (t & 1)
        e(f"v_and_b32 v{sx+2}, v{s+t}, v{vMa}")
        e(f"v_and_b32 v{sx+3}, v{s+t}, v{vMb}")
        nop(2)
        e(f"v_mfma_f32_16x16x32_bf16 {vr(B_vO,4)}, {vr(sx+2,4)}, {vr(vb+4*t,4)}, {vr(B_vO,4)}")
        e(f"v_mfma_f32_16x16x32_bf16 {vr(B_vO+4,4)}, {vr(sx,4)}, {vr(vb+4*t,4)}, {vr(B_vO+4,4)}")
    B_issueV(b)
    rareB.append(b)
e("s_branch B_LOOP")
for b in rareB:
    s = vT
    lab(f"B_RARE{b}")
    x = s + 4
    allreduce_rows("v_max_f32", x, s + 5, s + 6)
    e(f"v_max_f32 v{x}, v{x}, v{vM}")
    e(f"v_mul_f32 v{s+5}, s{sLog2e}, v{x}")
    e(f"v_sub_f32 v{s+6}, v{vML}, v{s+5}")
    e(f"v_exp_f32 v{s+6}, v{s+6}")
    e(f"v_mov_b32 v{vM}, v{x}")
    e(f"v_mov_b32 v{vML}, v{s+5}")
    e(f"v_lshlrev_b32 v{s+5}, 4, v{vG}")
    e(f"ds_bpermute_b32 v{s+4}, v{s+5}, v{s+6}")
    e(f"v_mul_f32 v{vL}, v{vL}, v{s+6}")
    e("s_waitcnt lgkmcnt(0)")
    nop(8)
    for i in range(8):
        e(f"v_mul_f32 v{B_vO+i}, v{B_vO+i}, v{s+4}")
    e(f"s_branch B_BACK{b}")
lab("B_EXIT")
e("s_waitcnt vmcnt(0)")
allreduce_rows("v_add_f32", vL, vT, vT + 1)
e(f"v_lshlrev_b32 v{vT}, 5, v{vN}")
e(f"v_lshl_or_b32 v{vT}, v{vG}, 9, v{vT}")
e(f"s_lshl_b32 s{sT0}, s{sWave}, 11")
e(f"v_add_u32 v{vT}, s{sT0}, v{vT}")
e(f"ds_write_b128 v{vT}, {vr(B_vO,4)} offset:{LDS_O}")
e(f"ds_write_b128 v{vT}, {vr(B_vO+4,4)} offset:{LDS_O+16}")
e(f"v_lshrrev_b32 v{vT+1}, 2, v{vN}")
e(f"v_lshlrev_b32 v{vT+1}, 5, v{vT+1}")
e(f"s_lshl_b32 s{sT0}, s{sWave}, 3")
e(f"v_add_u32 v{vT+1}, s{sT0}, v{vT+1}")
e(f"v_mov_b32 v{vT+3}, v{vML}")
e(f"v_mov_b32 v{vT+4}, v{vL}")
e(f"ds_write_b64 v{vT+1}, {vr(vT+3,2)} offset:{LDS_ML}")
e("s_waitcnt lgkmcnt(0)")
e("s_barrier")
cm("wave j combines head j")
c0 = 34
e(f"s_lshl_b32 s{sT0}, s{sWave}, 5")
e(f"v_mov_b32 v{vT}, s{sT0}")
e(f"ds_read_b128 {vr(c0,4)}, v{vT} offset:{LDS_ML}")
e(f"ds_read_b128 {vr(c0+4,4)}, v{vT} offset:{LDS_ML+16}")
e(f"v_lshlrev_b32 v{vT+1}, 3, v{vLane}")
e(f"s_lshl_b32 s{sT0}, s{sWave}, 9")
e(f"v_add_u32 v{vT+1}, s{sT0}, v{vT+1}")
for w in range(4):
    e(f"ds_read_b64 {vr(c0+8+2*w,2)}, v{vT+1} offset:{LDS_O+2048*w}")
e("s_waitcnt lgkmcnt(0)")
e(f"v_max3_f32 v{vML}, v{c0}, v{c0+2}, v{c0+4}")
e(f"v_max_f32 v{vML}, v{vML}, v{c0+6}")
for w in range(4):
    e(f"v_sub_f32 v{c0+2*w}, v{c0+2*w}, v{vML}")
    e(f"v_exp_f32 v{c0+2*w}, v{c0+2*w}")
nop(1)
pb = c0 + 16
e(f"v_mul_f32 v{vL}, v{c0}, v{c0+1}")
e(f"v_mul_f32 v{pb}, v{c0}, v{c0+8}")
e(f"v_mul_f32 v{pb+2}, v{c0}, v{c0+9}")
for w in range(1, 4):
    e(f"v_fmac_f32 v{vL}, v{c0+2*w}, v{c0+2*w+1}")
    e(f"v_fmac_f32 v{pb}, v{c0+2*w}, v{c0+8+2*w}")
    e(f"v_fmac_f32 v{pb+2}, v{c0+2*w}, v{c0+9+2*w}")
e(f"v_mov_b32 v{pb+1}, s{sNonce}")
e(f"v_mov_b32 v{pb+3}, s{sNonce}")
e(f"v_mov_b32 v{pb+4}, v{vML}")
e(f"v_mov_b32 v{pb+5}, s{sNonce}")
e(f"v_mov_b32 v{pb+6}, v{vL}")
e(f"v_mov_b32 v{pb+7}, s{sNonce}")
e(f"s_lshl_b32 s{sT0}, s{sH}, 2")
e(f"s_add_u32 s{sT0}, s{sT0}, s{sWave}")
e(f"s_lshl_b32 s{sT0}, s{sT0}, 2")
e(f"s_add_u32 s{sT0}, s{sT0}, s{sS}")
e(f"s_lshl_b32 s{sT0}, s{sT0}, 11")
e(f"s_add_u32 s{sT0}, s{sT0}, {hex(WS_PB)}")
e(f"v_mov_b32 v{vT+3}, {hex(OOB)}")
e(f"v_cmp_eq_u32 vcc, 0, v{vLane}")
e(f"buffer_store_dwordx4 {vr(pb,4)}, v{vOffV}, {sr(sWS,4)}, s{sT0} offen sc1")
nop(1)
e(f"v_cndmask_b32 v{vT+2}, v{vT+3}, 0, vcc")
e(f"buffer_store_dwordx4 {vr(pb+4,4)}, v{vT+2}, {sr(sWS,4)}, s{sT0} offen offset:1024 sc1")
e(f"s_cmp_lg_u32 s{sWave}, 0")
e("s_cbranch_scc1 B_OBAR")
go = 22
gm = 38
e(f"s_lshl_b32 s{sT0}, s2, 13")
e(f"s_add_u32 s{sT0}, s{sT0}, {hex(WS_PB)}")
e(f"v_and_b32 v{vT}, 3, v{vLane}")
e(f"v_lshlrev_b32 v{vT}, 11, v{vT}")
e(f"v_add_u32 v{vT+1}, 4096, v{vOffV}")
nop(2)
lab("B_PPOLL")
for p in range(4):
    vo = vOffV if p < 2 else vT + 1
    e(f"buffer_load_dwordx4 {vr(go+4*p,4)}, v{vo}, {sr(sWS,4)}, s{sT0} offen offset:{2048*(p%2)} sc1")
e(f"buffer_load_dwordx4 {vr(gm,4)}, v{vT}, {sr(sWS,4)}, s{sT0} offen offset:1024 sc1")
e("s_waitcnt vmcnt(0)")
tag_check([go + 2 * i + 1 for i in range(8)] + [gm + 1, gm + 3], vT + 2, vT + 3)
e("s_cbranch_vccz B_PDONE")
e(f"s_add_u32 s{sCnt}, s{sCnt}, 1")
e(f"s_cmp_gt_u32 s{sCnt}, {hex(P.SPIN)}")
e("s_cbranch_scc1 B_PDONE")
e(f"s_sleep {P.SLEEP*4}")
e("s_branch B_PPOLL")
lab("B_PDONE")
e(f"v_mov_b32 v{vT+2}, v{gm}")
ror_reduce("v_max_f32", vT + 2, [1, 2])
e(f"v_sub_f32 v{vT+3}, v{gm}, v{vT+2}")
e(f"v_exp_f32 v{vT+3}, v{vT+3}")
nop(1)
e(f"v_mul_f32 v{vT+4}, v{vT+3}, v{gm+2}")
ror_reduce("v_add_f32", vT + 4, [1, 2])
e(f"v_rcp_f32 v{vT+4}, v{vT+4}")
e(f"v_mov_b32 v{vT+5}, 0")
e(f"v_mov_b32 v{vT+6}, 0")
for p in range(4):
    e(f"v_fmac_f32_dpp v{vT+5}, v{vT+3}, v{go+4*p} row_newbcast:{p} {DPPM}")
    e(f"v_fmac_f32_dpp v{vT+6}, v{vT+3}, v{go+4*p+2} row_newbcast:{p} {DPPM}")
e(f"v_mul_f32 v{vT+5}, v{vT+5}, v{vT+4}")
e(f"v_mul_f32 v{vT+6}, v{vT+6}, v{vT+4}")
e(f"v_cvt_pk_bf16_f32 v{vT+5}, v{vT+5}, v{vT+6}")
e(f"v_lshlrev_b32 v{vT}, 2, v{vLane}")
e(f"ds_write_b32 v{vT}, v{vT+5} offset:{LDS_OB}")
e("s_waitcnt lgkmcnt(0)")
lab("B_OBAR")
e("s_barrier")
e(f"v_lshrrev_b32 v{vT}, 2, v{vN}")
e(f"v_lshlrev_b32 v{vT}, 4, v{vT}")
e(f"v_lshl_or_b32 v{vT}, v{vG}, 6, v{vT}")
e(f"ds_read_b128 {vr(34,4)}, v{vT} offset:{LDS_OB}")
srd(sW, pBwo, 4096 * 1024)
e(f"v_lshlrev_b32 v{vT+1}, 15, v{vG}")
e(f"v_lshl_or_b32 v{vT+1}, v{vN}, 4, v{vT+1}")
e(f"s_lshl_b32 s{sT0}, s2, 17")
e(f"s_lshl_b32 s{sT1}, s{sWave}, 8")
e(f"s_add_u32 s{sT0}, s{sT0}, s{sT1}")
e("s_waitcnt vmcnt(0)")
gen = rowsum128(34, 10, "BW")
next(gen)
e("s_waitcnt lgkmcnt(0)")
for _ in gen: pass
e(f"v_lshlrev_b32 v{vT}, 6, v{vN}")
e(f"v_lshl_or_b32 v{vT}, v{vG}, 5, v{vT}")
e(f"v_mov_b32 v{vT+1}, {hex(OOB)}")
e(f"v_cmp_gt_u32 vcc, 32, v{vLane}")
e(f"s_lshl_b32 s{sT0}, s2, 12")
e(f"s_lshl_b32 s{sT1}, s{sWave}, 10")
e(f"s_add_u32 s{sT0}, s{sT0}, s{sT1}")
e(f"s_add_u32 s{sT0}, s{sT0}, {hex(WS_YB)}")
e(f"v_cndmask_b32 v{vT}, v{vT+1}, v{vT}, vcc")
nop(8)
yb = 34
for i in range(4):
    e(f"v_mov_b32 v{yb+2*i}, v{B_vO+i}")
    e(f"v_mov_b32 v{yb+2*i+1}, s{sNonce}")
e(f"buffer_store_dwordx4 {vr(yb,4)}, v{vT}, {sr(sWS,4)}, s{sT0} offen sc1")
e(f"buffer_store_dwordx4 {vr(yb+4,4)}, v{vT}, {sr(sWS,4)}, s{sT0} offen offset:16 sc1")
e(f"s_cmp_lg_u32 s{sWave}, 0")
e("s_cbranch_scc1 END")
e(f"v_and_b32 v{vT}, 7, v{vLane}")
e(f"v_lshlrev_b32 v{vT}, 4, v{vT}")
e(f"v_lshrrev_b32 v{vT+1}, 3, v{vLane}")
e(f"v_lshl_or_b32 v{vT}, v{vT+1}, 12, v{vT}")
e(f"s_lshl_b32 s{sT0}, s2, 7")
e(f"s_add_u32 s{sT0}, s{sT0}, {hex(WS_YB)}")
gy = 44
lab("B_YPOLL")
e(f"s_mov_b32 s{sT1}, s{sT0}")
for i in range(4):
    e(f"buffer_load_dwordx4 {vr(gy+4*i,4)}, v{vT}, {sr(sWS,4)}, s{sT1} offen sc1")
    if i < 3:
        e(f"s_add_u32 s{sT1}, s{sT1}, 0x8000")
e("s_waitcnt vmcnt(0)")
tag_check([gy + 2 * i + 1 for i in range(8)], vT + 2, vT + 3)
e("s_cbranch_vccz B_YDONE")
e(f"s_add_u32 s{sCnt}, s{sCnt}, 1")
e(f"s_cmp_gt_u32 s{sCnt}, {hex(P.SPIN)}")
e("s_cbranch_scc1 B_YDONE")
e(f"s_sleep {P.SLEEP*4}")
e("s_branch B_YPOLL")
lab("B_YDONE")
for c in (0, 2):
    e(f"v_add_f32 v{gy+c}, v{gy+c}, v{gy+4+c}")
    e(f"v_add_f32 v{gy+c}, v{gy+c}, v{gy+8+c}")
    e(f"v_add_f32 v{gy+c}, v{gy+c}, v{gy+12+c}")
ror_reduce("v_add_f32", gy, [8])
ror_reduce("v_add_f32", gy + 2, [8])
allreduce_rows("v_add_f32", gy, vT + 2, vT + 3)
allreduce_rows("v_add_f32", gy + 2, vT + 2, vT + 3)
e(f"v_cvt_pk_bf16_f32 v{gy}, v{gy}, v{gy+2}")
srd(sW, pOut, 2048)
e(f"v_mov_b32 v{vT+3}, {hex(OOB)}")
e(f"v_cmp_gt_u32 vcc, 8, v{vLane}")
e(f"v_lshlrev_b32 v{vT+2}, 2, v{vLane}")
e(f"s_lshl_b32 s{sT0}, s2, 5")
e(f"s_add_u32 s{sT0}, s{sT0}, 1024")
e(f"v_cndmask_b32 v{vT+2}, v{vT+3}, v{vT+2}, vcc")
e(f"buffer_store_dword v{gy}, v{vT+2}, {sr(sW,4)}, s{sT0} offen")
lab("END")
e("s_endpgm")

nvgpr = max(vBuf + 32 * max(P.NBUF, P.NBUFB, 2, P.NPRO), vWo + 64)
out += "\n".join(L) + "\n"
out += f""".section .rodata,"a"
.p2align 6
.amdhsa_kernel {KNAME}
  .amdhsa_next_free_vgpr {nvgpr}
  .amdhsa_next_free_sgpr 100
  .amdhsa_accum_offset {nvgpr}
  .amdhsa_group_segment_fixed_size 0
  .amdhsa_kernarg_size 104
  .amdhsa_user_sgpr_count 2
  .amdhsa_user_sgpr_kernarg_segment_ptr 1
  .amdhsa_system_sgpr_workgroup_id_x 1
.end_amdhsa_kernel
"""
open(sys.argv[1], "w").write(out)
print("wrote", sys.argv[1], "lines", len(L), "vgpr", nvgpr)
```

```python
import sys, struct

KNAME = "concat_heads__mha_block_cached__sliding_block_cached__decode_kernel"

class P:
    NBUF = 2
    NBUFB = 2
    J = 54
    NB = 32
    NA = 256
    MIMIC = 1
    STAMP = 0
    SLEEP = 1
    BWAIT = 1
    ROT = 0
    NOB = 0
    NI = 2
    LE = 8
    TEND = 1792
    CAP = 60
    J0 = 6
    EB = 0
    EDGE = 0
    ORG = 0
    PMUL = 0
    OFF = 0
    PAIR = 1
    PAIRM = 96
    CLK = 0
    NX = 0
    RMASK = 0x7ff000
    BLAST = 0
    SAT = 1
    CLPOS = 0
    FAKEAT = 0
    LA = 2
    REV = 0
    WARM = 0
    WOEARLY = 0
    NPRO = 1
    SLEEPQ = 1
    SLEEPP = 1
    SLEEPY = 1
    PW = 1
    SPIN = 0x40000

for a in sys.argv[2:]:
    k, v = a.split("=")
    setattr(P, k, v if "_" in v else int(v, 0))

L = []
def e(s): L.append("    " + s)
def lab(s): L.append(s + ":")
def cm(s): L.append("    ; " + s)
def nop(n):
    while n > 0:
        k = min(n, 16)
        e(f"s_nop {k-1}")
        n -= k
def f32(x): return "0x%08x" % struct.unpack("<I", struct.pack("<f", x))[0]
def vr(b, n): return f"v[{b}:{b+n-1}]"
def sr(b, n): return f"s[{b}:{b+n-1}]"
DPPM = "row_mask:0xf bank_mask:0xf"

WS_CTR = 0x0
WS_QA = 0x10000
WS_PA = 0x80000
WS_YA = 0x100000
WS_QB = 0x180000
WS_PB = 0x1A0000
WS_YB = 0x200000
WS_STAMP = 0x300000
WS_SIZE = 0x400000
OOB = 0x40000000
CBASE = 16

sK, sV, sWS, sW, sX = 4, 8, 12, 16, 20
pAx, pAk, pAv, pAwq, pAwo, pBx, pBk, pBv, pBwq, pBwo, pOut, pDbg, pWs = [24 + 2 * i for i in range(13)]
sWave = 50; sH = 51; sS = 52; sT0 = 53; sT1 = 54; sNonce = 55; sJ = 56; sStat = 57
sScale = 58; sLog2e = 59; sOff = 60
sId = 68; sT2 = 69; sTm = 70
sDupLo = 74; sDupHi = 75; sCnt = 76; sMask = 78
sStampA = 80
sFlag = 77
sRot = 3
sCtr = 96
sClaim = 98
sUw = 100

vLane, vOffK, vOffV, vCtr = 0, 1, 2, 3
vN, vG = 4, 5
vMask = 6
vM, vML, vL = 10, 11, 12
vT = 13
vTag = 20
vZ = 21
vAop = 22
vS = 34
vO = 50
vQ = 34 + 4
A_vS, A_vQ, A_vO, A_vClaim = 34, 38, 54, 58
B_vS, B_vQ, B_vO = 34, 50, 54
vBuf = 64

LDS_Q = 0
LDS_NONCE = 1024
LDS_FLAG = 1028
LDS_O = 2048
LDS_ML = 10240
LDS_OB = 10496
LDS_BYTES = 12288 + 16384

def srd(dst, ptr, nrec, add_lo=None):
    if add_lo is None:
        e(f"s_mov_b32 s{dst}, s{ptr}")
        e(f"s_mov_b32 s{dst+1}, s{ptr+1}")
    else:
        e(f"s_add_u32 s{dst}, s{ptr}, s{add_lo}")
        e(f"s_addc_u32 s{dst+1}, s{ptr+1}, 0")
    e(f"s_mov_b32 s{dst+2}, {hex(nrec)}")
    e(f"s_mov_b32 s{dst+3}, 0x00020000")

def stamp(idx):
    if P.STAMP == 1 or (P.STAMP == 2 and idx == 0):
        e(f"s_memrealtime s[{sStampA+2*idx}:{sStampA+2*idx+1}]")

def stamp_store():
    e(f"v_mov_b32 v{vT+3}, {hex(OOB)}")
    e(f"v_cmp_eq_u32 vcc, 0, v{vLane}")
    nop(2)
    e(f"v_cndmask_b32 v{vT+2}, v{vT+3}, 0, vcc")
    e(f"s_memrealtime s[{sTm}:{sTm+1}]")
    e("s_waitcnt lgkmcnt(0)")
    for i in range(8):
        e(f"v_mov_b32 v{34+i}, s{sStampA+2*i}")
    e(f"v_mov_b32 v{42}, s{sTm}")
    e(f"s_getreg_b32 s{sT1}, hwreg(HW_REG_XCC_ID)")
    e(f"v_mov_b32 v{43}, s{sT1}")
    e(f"v_mov_b32 v{44}, s{sJ}")
    e(f"v_mov_b32 v{45}, s{sCnt}")
    e(f"s_lshl_b32 s{sT0}, s2, 6")
    e(f"s_add_u32 s{sT0}, s{sT0}, {hex(WS_STAMP)}")
    e(f"buffer_store_dwordx4 {vr(34,4)}, v{vT+2}, {sr(sWS,4)}, s{sT0} offen")
    e(f"buffer_store_dwordx4 {vr(38,4)}, v{vT+2}, {sr(sWS,4)}, s{sT0} offen offset:16")
    e(f"buffer_store_dwordx4 {vr(42,4)}, v{vT+2}, {sr(sWS,4)}, s{sT0} offen offset:32")

def stampw(idx):
    if P.STAMP == 2:
        e(f"s_memrealtime s[{sStampA+2*idx}:{sStampA+2*idx+1}]")

def allreduce_rows(op, x, a, b):
    e(f"v_mov_b32 v{a}, v{x}")
    e(f"v_mov_b32 v{b}, v{x}")
    nop(2)
    e(f"v_permlane16_swap_b32 v{a}, v{b}")
    nop(1)
    e(f"{op} v{x}, v{a}, v{b}")
    e(f"v_mov_b32 v{a}, v{x}")
    e(f"v_mov_b32 v{b}, v{x}")
    nop(2)
    e(f"v_permlane32_swap_b32 v{a}, v{b}")
    nop(1)
    e(f"{op} v{x}, v{a}, v{b}")

def ror_reduce(op, x, rors):
    for r in rors:
        nop(2)
        e(f"{op}_dpp v{x}, v{x}, v{x} row_ror:{r} {DPPM}")

def tag_check(tags, t0, t1):
    tags = list(tags)
    if len(tags) == 1:
        e(f"v_cmp_ne_u32 vcc, s{sNonce}, v{tags[0]}")
        return
    e(f"v_min_u32 v{t0}, v{tags[0]}, v{tags[1]}")
    e(f"v_max_u32 v{t1}, v{tags[0]}, v{tags[1]}")
    rest = tags[2:]
    while len(rest) >= 2:
        e(f"v_min3_u32 v{t0}, v{t0}, v{rest[0]}, v{rest[1]}")
        e(f"v_max3_u32 v{t1}, v{t1}, v{rest[0]}, v{rest[1]}")
        rest = rest[2:]
    if rest:
        e(f"v_min_u32 v{t0}, v{t0}, v{rest[0]}")
        e(f"v_max_u32 v{t1}, v{t1}, v{rest[0]}")
    e(f"v_cmp_ne_u32 vcc, s{sNonce}, v{t0}")
    e(f"v_cmp_ne_u32 s[{sMask}:{sMask+1}], s{sNonce}, v{t1}")
    e(f"s_or_b64 vcc, vcc, s[{sMask}:{sMask+1}]")

def masked_poll(name, loads, sleep, filler=None):
    for (lt, tags, pre) in loads:
        if pre: e(pre)
        e(lt)
    if filler: filler()
    lab(f"{name}_POLL")
    e("s_waitcnt vmcnt(0)")
    e(f"s_mov_b32 s{sT2}, 0")
    for k, (lt, tags, pre) in enumerate(loads):
        if pre: e(pre)
        e(f"v_cmp_ne_u32 vcc, s{sNonce}, v{tags[0]}")
        for t in tags[1:]:
            e(f"v_cmp_ne_u32 s[{sMask}:{sMask+1}], s{sNonce}, v{t}")
            e(f"s_or_b64 vcc, vcc, s[{sMask}:{sMask+1}]")
        e(f"s_cbranch_vccz {name}_S{k}")
        e("s_mov_b64 exec, vcc")
        e(lt)
        e("s_mov_b64 exec, -1")
        e(f"s_mov_b32 s{sT2}, 1")
        lab(f"{name}_S{k}")
    e(f"s_cmp_eq_u32 s{sT2}, 0")
    e(f"s_cbranch_scc1 {name}_DONE")
    e(f"s_add_u32 s{sCnt}, s{sCnt}, 1")
    e(f"s_cmp_gt_u32 s{sCnt}, {hex(P.SPIN)}")
    e(f"s_cbranch_scc1 {name}_DONE")
    if sleep: e(f"s_sleep {sleep}")
    e(f"s_branch {name}_POLL")
    lab(f"{name}_DONE")
    e("s_waitcnt vmcnt(0)")

def get_nonce(tag):
    lab(f"NONCE_{tag}")
    e("s_waitcnt vmcnt(0)")
    e(f"v_readfirstlane_b32 s{sNonce}, v{vTag}")
    e(f"s_cmp_lg_u32 s{sNonce}, 0")
    e(f"s_cbranch_scc1 NONCE_OK_{tag}")
    e(f"s_add_u32 s{sCnt}, s{sCnt}, 1")
    e(f"s_cmp_gt_u32 s{sCnt}, {hex(P.SPIN)}")
    e(f"s_cbranch_scc1 NONCE_OK_{tag}")
    e(f"s_sleep {P.SLEEP}")
    e(f"v_mov_b32 v{vT}, 0")
    e(f"buffer_load_dword v{vTag}, v{vT}, {sr(sX,4)}, 0 offen sc1")
    e(f"s_branch NONCE_{tag}")
    lab(f"NONCE_OK_{tag}")

def rowsum_mfma(pp, tt, setidx, breg, acc, first, masks=vMask):
    a = vAop + 4 * setidx
    for i in range(4):
        e(f"v_and_b32_dpp v{a+i}, v{pp}, v{masks+i} row_newbcast:{4*tt} {DPPM}")
    return a

hdr = open("concat_heads__mha_block_cached__sliding_block_cached__decode.s.ref").read().split("; Override launch")[0]
out = hdr
NWG = P.NB + P.NA
out += "; Override launch geometry by editing the next line (default: block=256,\n"
out += f"; @launch grid=({NWG},1,1) block=(256,1,1) lds={LDS_BYTES}\n"
out += """;
;    as {value, tag} granules (tag = per-launch nonce published in d_debug[0]); all hand-offs use sc1 stores/loads.
"""
out += '.amdgcn_target "amdgcn-amd-amdhsa--gfx950"\n.text\n'
out += f".globl {KNAME}\n.p2align 8\n.type {KNAME},@function\n{KNAME}:\n"

e(f"s_cmp_ge_u32 s2, {NWG}")
e("s_cbranch_scc1 END")
e("s_load_dwordx16 s[24:39], s[0:1], 0")
e("s_load_dwordx8 s[40:47], s[0:1], 64")
e("s_load_dwordx2 s[48:49], s[0:1], 96")
stamp(0)
e(f"v_lshrrev_b32 v{vT}, 6, v0")
e(f"v_and_b32 v{vLane}, 63, v0")
e(f"v_readfirstlane_b32 s{sWave}, v{vT}")
e(f"v_and_b32 v{vN}, 15, v{vLane}")
e(f"v_lshrrev_b32 v{vG}, 4, v{vLane}")
e(f"v_lshrrev_b32 v{vT}, 2, v{vN}")
e(f"v_lshlrev_b32 v{vOffK}, 8, v{vT}")
e(f"v_lshl_or_b32 v{vOffK}, v{vG}, 6, v{vOffK}")
e(f"v_and_b32 v{vT}, 3, v{vN}")
e(f"v_lshl_or_b32 v{vOffK}, v{vT}, 4, v{vOffK}")
e(f"v_lshlrev_b32 v{vOffV}, 4, v{vLane}")
e(f"v_mov_b32 v{vT}, {hex(OOB)}")
e(f"v_cmp_eq_u32 vcc, 0, v{vLane}")
nop(2)
e(f"v_cndmask_b32 v{vCtr}, v{vT}, 0, vcc")
def lane_consts():
    e(f"v_and_b32 v{vT}, 1, v{vN}")
    e(f"v_cmp_eq_u32 vcc, 1, v{vT}")
    e(f"v_mov_b32 v{vT+1}, 0xffff")
    e(f"v_mov_b32 v{vT+2}, 0xffff0000")
    e(f"v_cndmask_b32 v{vT+1}, v{vT+1}, v{vT+2}, vcc")
    e(f"v_lshrrev_b32 v{vT}, 1, v{vN}")
    for i in range(4):
        e(f"v_cmp_eq_u32 vcc, {i}, v{vT}")
        nop(2)
        e(f"v_cndmask_b32 v{vMask+i}, 0, v{vT+1}, vcc")
    e(f"s_mov_b32 s{sScale}, {f32(128 ** -0.5)}")
    e(f"s_mov_b32 s{sLog2e}, {f32(1.4426950408889634)}")
    e(f"s_mov_b32 s{sCnt}, 0")
    e(f"s_mov_b32 s{sDupLo}, 0x01000100")
    e(f"s_mov_b32 s{sDupHi}, 0x03020302")
    e(f"v_mov_b32 v{vM}, 0xff800000")
    e(f"v_mov_b32 v{vML}, 0xff800000")
    e(f"v_mov_b32 v{vL}, 0")
e("s_waitcnt lgkmcnt(0)")
srd(sWS, pWs, WS_SIZE)
srd(sX, pDbg, 256)
e("s_cmp_lg_u32 s2, 0")
e("s_cbranch_scc1 NO_NONCE_WRITE")
e(f"s_cmp_lg_u32 s{sWave}, 0")
e("s_cbranch_scc1 NO_NONCE_WRITE")
e(f"s_memrealtime s[{sTm}:{sTm+1}]")
e("s_waitcnt lgkmcnt(0)")
e(f"s_or_b32 s{sT0}, s{sTm}, 1")
e(f"v_mov_b32 v{vT}, s{sT0}")
e(f"buffer_store_dword v{vT}, v{vCtr}, {sr(sX,4)}, 0 offen sc1")
lab("NO_NONCE_WRITE")
if P.BLAST:
    e(f"s_cmp_ge_u32 s2, {P.NA}")
    e("s_cbranch_scc1 B_PATH")
else:
    e(f"s_cmp_lt_u32 s2, {P.NB}")
    e("s_cbranch_scc1 B_PATH")

N = P.NBUF
NPRO = max(P.NPRO, N)
J = P.J
assert J > NPRO + 2 * N + 2 and P.PW <= NPRO
LIMIT = 0x800000
e(f"s_sub_u32 s{sId}, s2, {0 if P.BLAST else P.NB}")
e(f"s_lshr_b32 s{sH}, s{sId}, 3")
e(f"s_and_b32 s{sS}, s{sId}, 7")
e(f"s_lshl_b32 s{sT0}, s{sS}, 2")
e(f"s_add_u32 s{sH}, s{sH}, s{sT0}")
e(f"s_and_b32 s{sH}, s{sH}, 31")
e(f"s_lshl_b32 s{sId}, s{sH}, 3")
e(f"s_add_u32 s{sId}, s{sId}, s{sS}")
e(f"s_lshl_b32 s{sT0}, s{sH}, 23")
srd(sK, pAk, LIMIT, sT0)
srd(sV, pAv, LIMIT, sT0)
e(f"s_lshl_b32 s{sT0}, s{sH}, 8")
e(f"v_add_u32 v{vCtr}, s{sT0}, v{vCtr}")
e(f"s_add_u32 s{sCtr}, s{pWs}, s{sT0}")
e(f"s_addc_u32 s{sCtr+1}, s{pWs+1}, 0")
e(f"s_lshl_b32 s{sT0}, s{sS}, 2")
e(f"s_add_u32 s{sT0}, s{sT0}, s{sWave}")
e(f"s_mov_b32 s{sUw}, s{sT0}")
e(f"s_mov_b32 s{sJ}, 0")
e(f"s_mul_i32 s{sRot}, s{sH}, {hex(P.ROT*4096)}")
if P.REV:
    e(f"s_and_b32 s{sRot}, s{sH}, {P.REV}")
    e(f"s_cmp_lg_u32 s{sRot}, 0")
    e(f"s_cselect_b32 s{sRot}, {hex(P.RMASK)}, 0")

def A_issueK(b):
    for t in range(4):
        e(f"buffer_load_dwordx4 {vr(vBuf+32*b+4*t,4)}, v{vOffK}, {sr(sK,4)}, s{sOff+b} offen offset:{1024*t} nt")
def A_issueV(b, ts=range(4)):
    for t in ts:
        e(f"buffer_load_dwordx4 {vr(vBuf+32*b+16+4*t,4)}, v{vOffV}, {sr(sV,4)}, s{sOff+b} offen offset:{1024*t} nt")
vWo = (vBuf + 32 * max(N, NPRO)) if P.WOEARLY else vBuf
def A_wo_loads():
    cm("leader: issue wo slice loads: load t': lane (n,g) row 16(2g+(n>>3)) + t', cols 64s + 8(n&7)")
    srd(sW, pAwo, 4096 * 1024)
    e(f"v_lshrrev_b32 v{vT}, 3, v{vN}")
    e(f"v_lshl_or_b32 v{vT}, v{vG}, 1, v{vT}")
    e(f"v_lshlrev_b32 v{vT}, 14, v{vT}")
    e(f"v_and_b32 v{vT+1}, 7, v{vN}")
    e(f"v_lshl_or_b32 v{vT}, v{vT+1}, 4, v{vT}")
    e(f"s_lshl_b32 s{sT0}, s{sH}, 17")
    e(f"s_lshl_b32 s{sT1}, s{sS}, 7")
    e(f"s_add_u32 s{sT0}, s{sT0}, s{sT1}")
    for t in range(16):
        if t % 4 == 0 and t > 0:
            e(f"s_add_u32 s{sT0}, s{sT0}, 4096")
        e(f"buffer_load_dwordx4 {vr(vWo+4*t,4)}, v{vT}, {sr(sW,4)}, s{sT0} offen offset:{1024*(t%4)} nt")
def stat_off(b):
    if P.REV:
        e(f"s_xor_b32 s{sOff+b}, s{sStat}, s{sRot}")
    elif P.ROT:
        e(f"s_add_u32 s{sOff+b}, s{sStat}, s{sRot}")
        e(f"s_and_b32 s{sOff+b}, s{sOff+b}, {hex(LIMIT-1)}")
    else:
        e(f"s_mov_b32 s{sOff+b}, s{sStat}")
NI = P.NI
J0 = P.J0
sType, sSlot = 60, 64
sQH, sQT, sMode, sEp, sNext, sU = 80+16, 0, 0, 0, 0, 0
sQH, sQT, sMode, sEp, sNext = 57, 72, 73, 99, 77
sNext = 69
vRing = 58
vLS = 59
LDS_S = 12288
icount = [0]
sPend = 75
sExtra, sNeed = 101, 76
def request_next(tag):
    e(f"s_add_u32 s{sJ}, s{sJ}, 1")
    e(f"s_cmp_lt_u32 s{sJ}, {J0}")
    e(f"s_cbranch_scc1 GN_ST{tag}")
    e(f"s_cmp_eq_u32 s{sExtra}, 0")
    e(f"s_cselect_b32 s{sNeed}, 1, 0")
    e(f"s_add_u32 s{sNext}, s{sNext}, s{sExtra}")
    e(f"s_mov_b32 s{sExtra}, 0")
    e(f"s_branch GN_L{tag}")
    lab(f"GN_ST{tag}")
    e(f"s_add_u32 s{sNext}, s{sNext}, 32")
    e(f"s_cmp_lt_u32 s{sJ}, {J0-1}")
    e(f"s_cbranch_scc1 GN_D{tag}")
    lab(f"GN_L{tag}")
    e(f"s_cmp_lg_u32 s{sPend}, 0")
    e(f"s_cbranch_scc1 GN_D{tag}")
    e(f"s_cmp_lt_u32 s{sNext}, {max(P.TEND-P.PAIRM,0) if P.PAIR else 0}")
    e(f"s_cselect_b32 s{sPend}, 2, 1")
    e(f"s_mov_b32 s{sClaim}, s{sPend}")
    e(f"s_atomic_add s{sClaim}, s[{sCtr}:{sCtr+1}], 0x0 glc")
    lab(f"GN_D{tag}")
def _resolve(tag, wait):
    e(f"s_cmp_eq_u32 s{sNeed}, 0")
    e(f"s_cbranch_scc1 RN_D{tag}")
    if wait: e("s_waitcnt lgkmcnt(0)")
    e(f"s_min_u32 s{sNext}, s{sClaim}, 0x10000")
    e(f"s_add_u32 s{sNext}, s{sNext}, {J0*32-CBASE}")
    e(f"s_cmp_lt_u32 s{sJ}, 0x1000")
    e(f"s_cselect_b32 s{sNext}, s{sNext}, 0x10000")
    e(f"s_sub_u32 s{sExtra}, s{sPend}, 1")
    e(f"s_mov_b32 s{sPend}, 0")
    e(f"s_mov_b32 s{sNeed}, 0")
    lab(f"RN_D{tag}")
def resolve_next(tag): _resolve(tag, True)
def resolve_nowait(tag): _resolve(tag, False)
inloop = [False]
sEl = 78
sClk = 94
EB = [int(x) for x in str(P.EB).split("_")] if P.EB else None
def epoch_of_next():
    if EB is None:
        e(f"s_lshr_b32 s{sT0}, s{sNext}, {P.LE}")
    else:
        e(f"s_mov_b32 s{sT0}, 0")
        for bd in EB:
            e(f"s_cmp_ge_u32 s{sNext}, {bd}")
            e(f"s_addc_u32 s{sT0}, s{sT0}, 0")
    e(f"s_add_u32 s{sT1}, s{sNext}, 0x1000")
    e(f"s_cmp_lt_u32 s{sNext}, {P.TEND}")
    e(f"s_cselect_b32 s{sT0}, s{sT0}, s{sT1}")
sNT, sNS, sNO = 70, 71, 74
def decide(force=False):
    t = icount[0]; icount[0] += 1
    useclk = P.CLK and inloop[0]
    if useclk:
        if not force:
            e(f"s_cmp_lg_u32 s{sNeed}, 0")
            e(f"s_cbranch_scc1 IS_CK{t}")
            e(f"s_cmp_lg_u32 s{sPend}, 0")
            e(f"s_cbranch_scc1 IS_CS{t}")
        lab(f"IS_CK{t}")
        e("s_waitcnt lgkmcnt(0)")
        e(f"s_sub_u32 s{sEl}, s{sClk}, s{sFlag}")
        if P.ORG and not P.EDGE:
            e(f"s_sub_u32 s{sEl}, s{sEl}, {P.ORG}")
        if P.PMUL:
            e(f"s_mul_i32 s{sEl}, s{sEl}, {P.PMUL}")
        e(f"s_memrealtime s[{sClk}:{sClk+1}]")
        lab(f"IS_CS{t}")
    e(f"s_cmp_lg_u32 s{sMode}, 0")
    e(f"s_cbranch_scc1 IS_V{t}")
    e(f"s_cmp_ge_u32 s{sEp}, 0x1000")
    e(f"s_cbranch_scc1 IS_TOV{t}")
    if useclk and P.EDGE:
        e(f"s_add_u32 s{sT0}, s{sEl}, {P.OFF}")
        e(f"s_lshr_b32 s{sT0}, s{sT0}, {P.CLK}")
        e(f"s_and_b32 s{sT0}, s{sT0}, 0xff")
        e(f"s_cmp_lg_u32 s{sT0}, s{sEp}")
        e(f"s_mov_b32 s{sEp}, s{sT0}")
        e(f"s_cbranch_scc1 IS_TOV{t}")
        resolve_nowait(f"a{t}")
    elif useclk:
        e(f"s_bitcmp0_b32 s{sEl}, {P.CLK}")
        e(f"s_cbranch_scc1 IS_KT{t}")
        e(f"s_cmp_lg_u32 s{sQH}, s{sQT}")
        e(f"s_cbranch_scc1 IS_VG{t}")
        lab(f"IS_KT{t}")
        resolve_nowait(f"a{t}")
    else:
        resolve_next(f"a{t}")
    e(f"s_cmp_ge_u32 s{sNext}, 2048")
    e(f"s_cbranch_scc1 IS_TOV{t}")
    if P.CLK:
        e(f"s_cmp_ge_u32 s{sNext}, {P.TEND}")
        e(f"s_cselect_b32 s{sEp}, 0x1000, s{sEp}")
        e(f"s_cbranch_scc1 IS_TOV{t}")
        e(f"s_sub_u32 s{sT0}, s{sQT}, s{sQH}")
        e(f"s_cmp_ge_u32 s{sT0}, {P.CAP}")
        e(f"s_cbranch_scc1 IS_VG{t}")
    else:
        epoch_of_next()
        e(f"s_cmp_lg_u32 s{sT0}, s{sEp}")
        e(f"s_mov_b32 s{sEp}, s{sT0}")
        e(f"s_cbranch_scc1 IS_TOV{t}")
        e(f"s_sub_u32 s{sT0}, s{sQT}, s{sQH}")
        e(f"s_cmp_ge_u32 s{sT0}, {P.CAP}")
        e(f"s_cbranch_scc1 IS_TOV{t}")
    lab(f"IS_K{t}")
    e(f"s_lshl_b32 s{sNO}, s{sNext}, 12")
    e(f"s_xor_b32 s{sNO}, s{sNO}, s{sRot}")
    e(f"s_and_b32 s{sNS}, s{sQT}, 63")
    e(f"s_mov_b32 m0, s{sNS}")
    e(f"s_add_u32 s{sQT}, s{sQT}, 1")
    e(f"s_mov_b32 s{sNT}, 1")
    e(f"v_writelane_b32 v{vRing}, s{sNO}, m0")
    request_next(t)
    e(f"s_branch IS_D{t}")
    lab(f"IS_TOV{t}")
    e(f"s_mov_b32 s{sMode}, 1")
    lab(f"IS_V{t}")
    e(f"s_cmp_lg_u32 s{sQH}, s{sQT}")
    e(f"s_cbranch_scc1 IS_VG{t}")
    e(f"s_mov_b32 s{sMode}, 0")
    if useclk: resolve_nowait(f"b{t}")
    else: resolve_next(f"b{t}")
    e(f"s_cmp_lt_u32 s{sNext}, 2048")
    e(f"s_cbranch_scc1 IS_K{t}")
    e(f"s_mov_b32 s{sMode}, 1")
    e(f"s_mov_b32 s{sNT}, 0")
    e(f"s_mov_b32 s{sNO}, {hex(OOB)}")
    e(f"s_branch IS_D{t}")
    lab(f"IS_VG{t}")
    e(f"s_and_b32 s{sNS}, s{sQH}, 63")
    e(f"v_readlane_b32 s{sNO}, v{vRing}, s{sNS}")
    e(f"s_add_u32 s{sQH}, s{sQH}, 1")
    e(f"s_mov_b32 s{sNT}, 2")
    nop(3)
    lab(f"IS_D{t}")
def fire(b):
    t = icount[0]; icount[0] += 1
    ib = vBuf + 16 * b
    e(f"s_cmp_eq_u32 s{sNT}, 1")
    e(f"s_cbranch_scc1 FI_K{t}")
    for k in range(4):
        e(f"buffer_load_dwordx4 {vr(ib+4*k,4)}, v{vOffV}, {sr(sV,4)}, s{sNO} offen offset:{1024*k} nt")
    e(f"s_branch FI_D{t}")
    lab(f"FI_K{t}")
    for k in range(4):
        e(f"buffer_load_dwordx4 {vr(ib+4*k,4)}, v{vOffK}, {sr(sK,4)}, s{sNO} offen offset:{1024*k} nt")
    lab(f"FI_D{t}")
    e(f"s_mov_b32 s{sType+b}, s{sNT}")
    e(f"s_mov_b32 s{sSlot+b}, s{sNS}")
def issue(b):
    decide()
    fire(b)
def stream_init():
    e(f"s_mov_b32 s{sQH}, 0")
    e(f"s_mov_b32 s{sQT}, 0")
    e(f"s_mov_b32 s{sMode}, 0")
    e(f"s_mov_b32 s{sEp}, 0")
    e(f"s_mov_b32 s{sNext}, s{sUw}")
    e(f"s_mov_b32 s{sPend}, 0")
    e(f"s_mov_b32 s{sExtra}, 0")
    e(f"s_mov_b32 s{sNeed}, 0")

def A_slot(b):
    stat_off(b)
    e(f"s_add_u32 s{sStat}, s{sStat}, 0x20000")
    A_issueK(b)
    A_issueV(b)
def read_flag():
    e(f"v_mov_b32 v{vT}, 0")
    e(f"ds_read_b32 v{vT+1}, v{vT} offset:{LDS_FLAG}")
    e("s_waitcnt lgkmcnt(0)")
    e(f"v_readfirstlane_b32 s{sFlag}, v{vT+1}")

cm("x (ushort) + 4 wq loads per wave, issued before anything else")
srd(sW, pAx, 1024)
e(f"v_lshrrev_b32 v{vT}, 2, v{vN}")
e(f"v_lshlrev_b32 v{vT}, 3, v{vT}")
e(f"v_lshl_or_b32 v{vT}, v{vG}, 1, v{vT}")
e(f"s_lshl_b32 s{sT0}, s{sS}, 7")
e(f"s_lshl_b32 s{sT1}, s{sWave}, 5")
e(f"s_add_u32 s{sT0}, s{sT0}, s{sT1}")
e(f"buffer_load_ushort v{vZ}, v{vT}, {sr(sW,4)}, s{sT0} offen")
e(f"v_lshlrev_b32 v{vT+1}, 13, v{vG}")
e(f"v_lshl_or_b32 v{vT+1}, v{vN}, 4, v{vT+1}")
srd(sW, pAwq, 512 * 8192)
e(f"s_lshl_b32 s{sT0}, s{sT0}, 12")
e(f"s_lshl_b32 s{sT1}, s{sH}, 8")
e(f"s_add_u32 s{sT0}, s{sT0}, s{sT1}")
wqb = A_vS
for tt in range(4):
    e(f"buffer_load_dwordx4 {vr(wqb+4*tt,4)}, v{vT+1}, {sr(sW,4)}, s{sT0} offen nt")
    if tt < 3:
        e(f"s_add_u32 s{sT0}, s{sT0}, 0x8000")
e(f"s_cmp_lg_u32 s{sWave}, 0")
e("s_cbranch_scc1 A_NONLEADER0")
cm("leader: nonce load, counter init")
e(f"v_mov_b32 v{vT}, 0")
e(f"buffer_load_dword v{vTag}, v{vT}, {sr(sX,4)}, 0 offen sc1")
if P.WARM:
    e(f"buffer_load_dword v{vT+6}, v{vCtr}, {sr(sWS,4)}, 0 offen offset:128 sc1")
e(f"s_cmp_lg_u32 s{sS}, 0")
e("s_cbranch_scc1 A_NOCTR")
e(f"v_mov_b32 v{vT+5}, {CBASE}")
e(f"buffer_store_dword v{vT+5}, v{vCtr}, {sr(sWS,4)}, 0 offen sc1")
lab("A_NOCTR")
e("s_branch A_COMMON0")
lab("A_NONLEADER0")
stream_init()
if P.NX:
    for x in range(P.NX):
        issue(NI + x)
else:
    for b in range(NI):
        issue(b)
e(f"v_mov_b32 v{vT}, 0")
e(f"ds_write_b32 v{vT}, v{vT} offset:{LDS_FLAG}")
lab("A_COMMON0")
lane_consts()
e(f"s_mov_b32 s{sPend}, 0")
e(f"s_mov_b32 s{sFlag}, 0")
e(f"s_cmp_eq_u32 s{sWave}, 0")
e("s_cbranch_scc1 A_LW")
e(f"s_waitcnt vmcnt({4*(P.NX if P.NX else NI)})")
e("s_branch A_QMFMA")
lab("A_LW")
e(f"s_waitcnt vmcnt({2 if P.WARM else 1})")
lab("A_QMFMA")
e(f"v_lshl_or_b32 v{vZ}, v{vZ}, 16, v{vZ}")
nop(2)
a0 = rowsum_mfma(vZ, 0, 0, None, None, None)
a1 = rowsum_mfma(vZ, 1, 1, None, None, None)
e(f"v_mfma_f32_16x16x32_bf16 {vr(A_vO,4)}, {vr(a0,4)}, {vr(wqb,4)}, 0")
rowsum_mfma(vZ, 2, 0, None, None, None)
e(f"v_mfma_f32_16x16x32_bf16 {vr(A_vO,4)}, {vr(a1,4)}, {vr(wqb+4,4)}, {vr(A_vO,4)}")
rowsum_mfma(vZ, 3, 1, None, None, None)
e(f"v_mfma_f32_16x16x32_bf16 {vr(A_vO,4)}, {vr(a0,4)}, {vr(wqb+8,4)}, {vr(A_vO,4)}")
nop(1)
e(f"v_mfma_f32_16x16x32_bf16 {vr(A_vO,4)}, {vr(a1,4)}, {vr(wqb+12,4)}, {vr(A_vO,4)}")
e(f"v_lshlrev_b32 v{vT}, 5, v{vN}")
e(f"v_lshl_or_b32 v{vT}, v{vG}, 4, v{vT}")
e(f"s_lshl_b32 s{sT0}, s{sWave}, 9")
e(f"v_add_u32 v{vT+1}, s{sT0}, v{vT}")
e(f"s_cmp_eq_u32 s{sWave}, 0")
e("s_cbranch_scc1 A_LEADER1")
nop(3)
e("s_mov_b32 exec_hi, 0")
e(f"ds_write_b128 v{vT+1}, {vr(A_vO,4)} offset:{LDS_O}")
e("s_mov_b64 exec, -1")
e("s_waitcnt lgkmcnt(0)")
e("s_barrier")
e("s_branch A_PACE")
lab("A_LEADER1")
e("s_barrier")
for w in range(1, 4):
    e(f"ds_read_b128 {vr(wqb+4*w,4)}, v{vT} offset:{LDS_O+512*w}")
stamp(3)
get_nonce("A")
e("s_waitcnt lgkmcnt(0)")
for w in range(1, 4):
    for i in range(4):
        e(f"v_add_f32 v{A_vO+i}, v{A_vO+i}, v{wqb+4*w+i}")
e(f"v_lshlrev_b32 v{vT}, 6, v{vN}")
e(f"v_lshl_or_b32 v{vT}, v{vG}, 5, v{vT}")
e(f"v_mov_b32 v{vT+1}, {hex(OOB)}")
e(f"v_cmp_gt_u32 vcc, 32, v{vLane}")
e(f"s_lshl_b32 s{sT0}, s{sId}, 10")
e(f"s_add_u32 s{sT0}, s{sT0}, {hex(WS_QA)}")
e(f"v_cndmask_b32 v{vT}, v{vT+1}, v{vT}, vcc")
b0 = vBuf
for i in range(4):
    e(f"v_mov_b32 v{b0+2*i}, v{A_vO+i}")
    e(f"v_mov_b32 v{b0+2*i+1}, s{sNonce}")
e(f"buffer_store_dwordx4 {vr(b0,4)}, v{vT}, {sr(sWS,4)}, s{sT0} offen sc1")
e(f"buffer_store_dwordx4 {vr(b0+4,4)}, v{vT}, {sr(sWS,4)}, s{sT0} offen offset:16 sc1")
e(f"v_and_b32 v{vT}, 1, v{vG}")
e(f"v_lshlrev_b32 v{vT}, 5, v{vT}")
e(f"v_lshl_or_b32 v{vT}, v{vN}, 6, v{vT}")
e(f"v_lshrrev_b32 v{vT+1}, 5, v{vLane}")
e(f"v_lshl_or_b32 v{vT}, v{vT+1}, 12, v{vT}")
e(f"s_lshl_b32 s{sT0}, s{sH}, 13")
e(f"s_add_u32 s{sT0}, s{sT0}, {hex(WS_QA)}")
g0 = vBuf + 8
lds_ = []
for k in range(4):
    lds_.append((f"buffer_load_dwordx4 {vr(g0+8*k,4)}, v{vT}, {sr(sWS,4)}, s{sT0} offen offset:{1024*k} sc1", [g0+8*k+1, g0+8*k+3], None))
    lds_.append((f"buffer_load_dwordx4 {vr(g0+8*k+4,4)}, v{vT}, {sr(sWS,4)}, s{sT0} offen offset:{1024*k+16} sc1", [g0+8*k+5, g0+8*k+7], None))
masked_poll("A_Q", lds_, P.SLEEPQ)
stamp(5)
for i in range(4):
    e(f"v_add_f32 v{A_vO+i}, v{g0+2*i}, v{g0+8+2*i}")
    e(f"v_add_f32 v{A_vO+i}, v{A_vO+i}, v{g0+16+2*i}")
    e(f"v_add_f32 v{A_vO+i}, v{A_vO+i}, v{g0+24+2*i}")
stream_init()
for b in range(NI):
    issue(b)
for i in range(4):
    e(f"v_mov_b32 v{A_vS+i}, v{A_vO+i}")
nop(2)
for i in range(4):
    e(f"v_permlane32_swap_b32 v{A_vS+i}, v{A_vO+i}")
nop(1)
for i in range(4):
    e(f"v_add_f32 v{A_vO+i}, v{A_vS+i}, v{A_vO+i}")
e(f"v_cvt_pk_bf16_f32 v{A_vS}, v{A_vO}, v{A_vO+1}")
e(f"v_cvt_pk_bf16_f32 v{A_vS+1}, v{A_vO+2}, v{A_vO+3}")
e(f"v_and_b32 v{vT}, 1, v{vG}")
e(f"v_lshlrev_b32 v{vT}, 3, v{vT}")
e(f"v_lshl_or_b32 v{vT}, v{vN}, 4, v{vT}")
e(f"ds_write_b64 v{vT}, {vr(A_vS,2)} offset:{LDS_Q}")
e(f"v_mov_b32 v{vT}, 0")
e(f"v_mov_b32 v{vT+1}, s{sNonce}")
e("s_waitcnt lgkmcnt(0)")
e(f"ds_write_b32 v{vT}, v{vT+1} offset:{LDS_FLAG}")
e(f"s_mov_b32 s{sFlag}, s{sNonce}")
if P.WOEARLY == 1:
    A_wo_loads()
    e("s_waitcnt vmcnt(0)")
e("s_branch A_QGO")
lab("A_PACE")
if P.NX:
    e("s_waitcnt vmcnt(0)")
    for b in range(NI):
        issue(b)
lab("A_QSPIN")
e(f"s_cmp_lg_u32 s{sFlag}, 0")
e("s_cbranch_scc1 A_QGO")
read_flag()
e(f"s_add_u32 s{sCnt}, s{sCnt}, 1")
e(f"s_cmp_gt_u32 s{sCnt}, {hex(0x4000000)}")
e("s_cbranch_scc1 A_QGO")
e("s_branch A_QSPIN")
lab("A_QGO")
stampw(4)
e(f"s_mov_b32 s{sCnt}, 0")
e(f"v_and_b32 v{vT}, 3, v{vN}")
e(f"v_lshlrev_b32 v{vT}, 4, v{vT}")
e(f"v_lshl_or_b32 v{vT}, v{vG}, 6, v{vT}")
e(f"ds_read_b128 {vr(A_vS,4)}, v{vT} offset:{LDS_Q}")
e(f"v_lshrrev_b32 v{vT+1}, 2, v{vN}")
for i in range(4):
    e(f"v_mov_b32 v{A_vO+i}, 0")
e("s_waitcnt lgkmcnt(0)")
for t in range(4):
    e(f"v_cmp_eq_u32 vcc, {t}, v{vT+1}")
    nop(2)
    for i in range(4):
        e(f"v_cndmask_b32 v{A_vQ+4*t+i}, 0, v{A_vS+i}, vcc")
nop(2)

e(f"v_lshrrev_b32 v{vLS}, 2, v{vLane}")
e(f"v_lshlrev_b32 v{vLS}, 2, v{vLS}")
e(f"s_lshl_b32 s{sT0}, s{sWave}, 12")
e(f"v_add_u32 v{vLS}, s{sT0}, v{vLS}")
if P.CLK:
    e(f"s_memrealtime s[{sClk}:{sClk+1}]")
    e(f"s_mov_b32 s{sEl}, 0")
inloop[0] = True
rare = []
def k_scores(tagb, ret):
    sc = vT
    e(f"v_mov_b32_dpp v{sc}, v{A_vS} quad_perm:[0,0,0,0] {DPPM}")
    for i in range(1, 4):
        e(f"v_add_f32_dpp v{sc}, v{A_vS+i}, v{sc} quad_perm:[{i},{i},{i},{i}] {DPPM}")
    e(f"v_cvt_pk_bf16_f32 v{sc}, v{sc}, v{sc}")
    e(f"v_and_b32 v{sc}, 0xffff0000, v{sc}")
    e(f"v_mul_f32 v{sc}, s{sScale}, v{sc}")
    e(f"v_cvt_pk_bf16_f32 v{sc}, v{sc}, v{sc}")
    e(f"v_and_b32 v{sc}, 0xffff0000, v{sc}")
    e(f"ds_write_b32 v{sc+6}, v{sc} offset:{LDS_S}")
    e(f"v_cmp_gt_f32 vcc, v{sc}, v{vM}")
    e(f"s_cbranch_vccnz A_RARE{tagb}")
if P.NX:
    assert P.TEND >= 256 and J0 >= P.NX + NI + 1 and NI + P.NX <= 4
    e(f"s_cmp_eq_u32 s{sWave}, 0")
    e("s_cbranch_scc1 A_LOOP")
    for x in range(P.NX):
        ib = vBuf + 16 * (NI + x)
        e(f"s_lshl_b32 s{sT0}, s{sSlot+NI+x}, 6")
        e(f"v_add_u32 v{vT+6}, s{sT0}, v{vLS}")
        for t in range(4):
            c = "0" if t == 0 else vr(A_vS, 4)
            e(f"v_mfma_f32_16x16x32_bf16 {vr(A_vS,4)}, {vr(ib+4*t,4)}, {vr(A_vQ+4*t,4)}, {c}")
        nop(8)
        k_scores(f"X{x}", None)
        lab(f"A_NEXTX{x}")
        rare.append(f"X{x}")
lab("A_LOOP")
for b in range(NI):
    ib = vBuf + 16 * b
    sc = vT
    cm(f"--- item body {b}")
    e(f"s_cmp_eq_u32 s{sType+b}, 0")
    e("s_cbranch_scc1 A_EXIT")
    e(f"s_lshl_b32 s{sT0}, s{sSlot+b}, 6")
    e(f"v_add_u32 v{sc+6}, s{sT0}, v{vLS}")
    e(f"s_cmp_eq_u32 s{sType+b}, 2")
    e(f"s_cbranch_scc1 A_PV{b}")
    decide()
    e(f"s_waitcnt vmcnt({4*(NI-1)})")
    for t in range(4):
        c = "0" if t == 0 else vr(A_vS, 4)
        e(f"v_mfma_f32_16x16x32_bf16 {vr(A_vS,4)}, {vr(ib+4*t,4)}, {vr(A_vQ+4*t,4)}, {c}")
    fire(b)
    nop(1)
    e(f"v_mov_b32_dpp v{sc}, v{A_vS} quad_perm:[0,0,0,0] {DPPM}")
    for i in range(1, 4):
        e(f"v_add_f32_dpp v{sc}, v{A_vS+i}, v{sc} quad_perm:[{i},{i},{i},{i}] {DPPM}")
    if P.MIMIC:
        e(f"v_cvt_pk_bf16_f32 v{sc}, v{sc}, v{sc}")
        e(f"v_and_b32 v{sc}, 0xffff0000, v{sc}")
        e(f"v_mul_f32 v{sc}, s{sScale}, v{sc}")
        e(f"v_cvt_pk_bf16_f32 v{sc}, v{sc}, v{sc}")
        e(f"v_and_b32 v{sc}, 0xffff0000, v{sc}")
    else:
        e(f"v_mul_f32 v{sc}, s{sScale}, v{sc}")
    e(f"ds_write_b32 v{sc+6}, v{sc} offset:{LDS_S}")
    e(f"v_cmp_gt_f32 vcc, v{sc}, v{vM}")
    e(f"s_cbranch_vccnz A_RARE{b}")
    e(f"s_branch A_NEXT{b}")
    lab(f"A_PV{b}")
    e(f"ds_read_b32 v{sc}, v{sc+6} offset:{LDS_S}")
    e("s_waitcnt lgkmcnt(0)")
    decide(True)
    e(f"v_fma_f32 v{sc+1}, v{sc}, s{sLog2e}, -v{vML}")
    e(f"v_exp_f32 v{sc+1}, v{sc+1}")
    nop(1)
    e(f"v_cvt_pk_bf16_f32 v{sc+2}, v{sc+1}, v{sc+1}")
    e(f"v_add_f32 v{vL}, v{vL}, v{sc+1}")
    nop(1)
    pp = sc + 2
    a0 = rowsum_mfma(pp, 0, 0, None, None, None)
    a1 = rowsum_mfma(pp, 1, 1, None, None, None)
    e(f"s_waitcnt vmcnt({4*(NI-1)})")
    e(f"v_mfma_f32_16x16x32_bf16 {vr(A_vO,4)}, {vr(a0,4)}, {vr(ib,4)}, {vr(A_vO,4)}")
    rowsum_mfma(pp, 2, 0, None, None, None)
    e(f"v_mfma_f32_16x16x32_bf16 {vr(A_vO,4)}, {vr(a1,4)}, {vr(ib+4,4)}, {vr(A_vO,4)}")
    rowsum_mfma(pp, 3, 1, None, None, None)
    e(f"v_mfma_f32_16x16x32_bf16 {vr(A_vO,4)}, {vr(a0,4)}, {vr(ib+8,4)}, {vr(A_vO,4)}")
    nop(1)
    e(f"v_mfma_f32_16x16x32_bf16 {vr(A_vO,4)}, {vr(a1,4)}, {vr(ib+12,4)}, {vr(A_vO,4)}")
    fire(b)
    lab(f"A_NEXT{b}")
    rare.append(b)
e("s_branch A_LOOP")
for b in rare:
    sc = vT
    lab(f"A_RARE{b}")
    x = sc + 3
    e(f"v_mov_b32 v{x}, v{sc}")
    ror_reduce("v_max_f32", x, [4, 8])
    allreduce_rows("v_max_f32", x, sc + 4, sc + 5)
    e(f"v_mul_f32 v{sc+4}, s{sLog2e}, v{x}")
    e(f"v_sub_f32 v{sc+5}, v{vML}, v{sc+4}")
    e(f"v_exp_f32 v{sc+5}, v{sc+5}")
    e(f"v_mov_b32 v{vM}, v{x}")
    e(f"v_mov_b32 v{vML}, v{sc+4}")
    nop(8)
    e(f"v_mul_f32 v{vL}, v{vL}, v{sc+5}")
    for i in range(4):
        e(f"v_mul_f32 v{A_vO+i}, v{A_vO+i}, v{sc+5}")
    nop(2)
    e(f"s_branch A_NEXT{b}")

lab("A_EXIT")
e("s_waitcnt vmcnt(0) lgkmcnt(0)")
e(f"s_mov_b32 s{sCnt}, 0")
stamp(6)
if not P.WOEARLY:
    e(f"s_cmp_lg_u32 s{sWave}, 0")
    e("s_cbranch_scc1 A_NOWO")
    A_wo_loads()
    lab("A_NOWO")
ror_reduce("v_add_f32", vL, [4, 8])
allreduce_rows("v_add_f32", vL, vT, vT + 1)
e(f"v_lshlrev_b32 v{vT}, 5, v{vN}")
e(f"v_lshl_or_b32 v{vT}, v{vG}, 4, v{vT}")
e(f"s_lshl_b32 s{sT0}, s{sWave}, 9")
e(f"v_add_u32 v{vT}, s{sT0}, v{vT}")
e(f"s_lshl_b32 s{sT0}, s{sWave}, 3")
e(f"v_mov_b32 v{vT+1}, s{sT0}")
e("s_mov_b32 exec_hi, 0")
e(f"ds_write_b128 v{vT}, {vr(A_vO,4)} offset:{LDS_O}")
e("s_mov_b64 exec, -1")
assert (vT + 3) % 2 == 0
e(f"v_mov_b32 v{vT+3}, v{vML}")
e(f"v_mov_b32 v{vT+4}, v{vL}")
e(f"ds_write_b64 v{vT+1}, {vr(vT+3,2)} offset:{LDS_ML}")
e("s_waitcnt lgkmcnt(0)")
e("s_barrier")
if P.STAMP == 2:
    e(f"s_cmp_lg_u32 s{sWave}, 1")
    e("s_cbranch_scc1 A_NS")
    stamp_store()
    lab("A_NS")
e(f"s_cmp_lg_u32 s{sWave}, 0")
e("s_cbranch_scc1 END")
cm("leader: combine 4 waves")
stamp(1)
c0 = A_vS
e(f"v_mov_b32 v{vT}, 0")
e(f"ds_read_b128 {vr(c0,4)}, v{vT} offset:{LDS_ML}")
e(f"ds_read_b128 {vr(c0+4,4)}, v{vT} offset:{LDS_ML+16}")
e(f"v_lshlrev_b32 v{vT+1}, 3, v{vLane}")
for w in range(4):
    e(f"ds_read_b64 {vr(c0+8+2*w,2)}, v{vT+1} offset:{LDS_O+512*w}")
e("s_waitcnt lgkmcnt(0)")
e(f"v_max3_f32 v{vML}, v{c0}, v{c0+2}, v{c0+4}")
e(f"v_max_f32 v{vML}, v{vML}, v{c0+6}")
for w in range(4):
    e(f"v_sub_f32 v{c0+2*w}, v{c0+2*w}, v{vML}")
    e(f"v_exp_f32 v{c0+2*w}, v{c0+2*w}")
nop(1)
pb = c0 + 16
e(f"v_mul_f32 v{vL}, v{c0}, v{c0+1}")
e(f"v_mul_f32 v{pb}, v{c0}, v{c0+8}")
e(f"v_mul_f32 v{pb+2}, v{c0}, v{c0+9}")
for w in range(1, 4):
    e(f"v_fmac_f32 v{vL}, v{c0+2*w}, v{c0+2*w+1}")
    e(f"v_fmac_f32 v{pb}, v{c0+2*w}, v{c0+8+2*w}")
    e(f"v_fmac_f32 v{pb+2}, v{c0+2*w}, v{c0+9+2*w}")
e(f"v_mov_b32 v{pb+1}, s{sNonce}")
e(f"v_mov_b32 v{pb+3}, s{sNonce}")
e(f"v_mov_b32 v{pb+4}, v{vML}")
e(f"v_mov_b32 v{pb+5}, s{sNonce}")
e(f"v_mov_b32 v{pb+6}, v{vL}")
e(f"v_mov_b32 v{pb+7}, s{sNonce}")
e(f"s_lshl_b32 s{sT0}, s{sId}, 11")
e(f"s_add_u32 s{sT0}, s{sT0}, {hex(WS_PA)}")
e(f"v_mov_b32 v{vT+3}, {hex(OOB)}")
e(f"v_cmp_eq_u32 vcc, 0, v{vLane}")
e(f"buffer_store_dwordx4 {vr(pb,4)}, v{vOffV}, {sr(sWS,4)}, s{sT0} offen sc1")
nop(1)
e(f"v_cndmask_b32 v{vT+2}, v{vT+3}, 0, vcc")
e(f"buffer_store_dwordx4 {vr(pb+4,4)}, v{vT+2}, {sr(sWS,4)}, s{sT0} offen offset:1024 sc1")
stamp(2)
go = 22
gm = 54
e(f"s_lshl_b32 s{sT0}, s{sH}, 14")
e(f"s_add_u32 s{sT0}, s{sT0}, {hex(WS_PA)}")
e(f"s_add_u32 s{sT1}, s{sT0}, 8192")
e(f"v_and_b32 v{vT}, 7, v{vLane}")
e(f"v_lshlrev_b32 v{vT}, 11, v{vT}")
nop(2)
e(f"v_add_u32 v{vT+1}, 4096, v{vOffV}")
lds_ = []
for p in range(8):
    so = sT0 if p < 4 else sT1
    vo = vOffV if (p % 4) < 2 else vT + 1
    lds_.append((f"buffer_load_dwordx4 {vr(go+4*p,4)}, v{vo}, {sr(sWS,4)}, s{so} offen offset:{2048*(p%2)} sc1", [go+4*p+1, go+4*p+3], None))
lds_.append((f"buffer_load_dwordx4 {vr(gm,4)}, v{vT}, {sr(sWS,4)}, s{sT0} offen offset:1024 sc1", [gm+1, gm+3], None))
selE, selO, vLw, vLr, vYo = vMask, 58, 62, 63, vM
def stage2_prep():
    e(f"v_and_b32 v{vT+2}, 1, v{vN}")
    e(f"v_cmp_eq_u32 vcc, 1, v{vT+2}")
    e(f"v_mov_b32 v{vT+3}, 0x0c0c0100")
    e(f"v_mov_b32 v{vT+4}, 0x01000c0c")
    e(f"v_cndmask_b32 v{vT+3}, v{vT+3}, v{vT+4}, vcc")
    e(f"v_mov_b32 v{vT+4}, 0x0c0c0302")
    e(f"v_mov_b32 v{vT+5}, 0x03020c0c")
    e(f"v_cndmask_b32 v{vT+4}, v{vT+4}, v{vT+5}, vcc")
    e(f"v_mov_b32 v{vT+5}, 0x0c0c0c0c")
    e(f"v_bfe_u32 v{vT+2}, v{vN}, 1, 2")
    for i in range(4):
        e(f"v_cmp_eq_u32 vcc, {i}, v{vT+2}")
        nop(2)
        e(f"v_cndmask_b32 v{selE+i}, v{vT+5}, v{vT+3}, vcc")
        e(f"v_cndmask_b32 v{selO+i}, v{vT+5}, v{vT+4}, vcc")
    e(f"v_lshlrev_b32 v{vLw}, 2, v{vLane}")
    e(f"v_lshrrev_b32 v{vT+2}, 3, v{vN}")
    e(f"v_lshl_or_b32 v{vLr}, v{vG}, 1, v{vT+2}")
    e(f"v_lshlrev_b32 v{vLr}, 5, v{vLr}")
    e(f"v_and_b32 v{vYo}, 7, v{vN}")
    e(f"v_lshlrev_b32 v{vYo}, 7, v{vYo}")
    e(f"v_and_b32 v{vT+3}, 1, v{vG}")
    e(f"v_lshl_or_b32 v{vYo}, v{vT+3}, 6, v{vYo}")
    e(f"v_lshl_or_b32 v{vYo}, v{vT+2}, 4, v{vYo}")
    e(f"v_lshrrev_b32 v{vT+3}, 1, v{vG}")
    e(f"v_cmp_eq_u32 vcc, v{vT+2}, v{vT+3}")
    e(f"v_mov_b32 v{vT+3}, {hex(OOB)}")
    e(f"s_lshl_b32 s72, s{sId}, 10")
    e(f"s_add_u32 s72, s72, {hex(WS_YA)}")
    e(f"v_cndmask_b32 v{vYo}, v{vT+3}, v{vYo}, vcc")
masked_poll("A_P", lds_, P.SLEEPP, stage2_prep)
stamp(7)
e(f"v_max_f32_dpp v{vT+2}, v{gm}, v{gm} row_ror:1 {DPPM}")
ror_reduce("v_max_f32", vT + 2, [2, 4])
e(f"v_sub_f32 v{vT+3}, v{gm}, v{vT+2}")
e(f"v_exp_f32 v{vT+3}, v{vT+3}")
e(f"v_mov_b32 v{vT+5}, 0")
e(f"v_mul_f32 v{vT+4}, v{vT+3}, v{gm+2}")
e(f"v_mov_b32 v{vT+6}, 0")
rr = [1, 2, 4]
for p in range(8):
    e(f"v_fmac_f32_dpp v{vT+5}, v{vT+3}, v{go+4*p} row_newbcast:{p} {DPPM}")
    e(f"v_fmac_f32_dpp v{vT+6}, v{vT+3}, v{go+4*p+2} row_newbcast:{p} {DPPM}")
    if p < 3:
        e(f"v_add_f32_dpp v{vT+4}, v{vT+4}, v{vT+4} row_ror:{rr[p]} {DPPM}")
    if p == 3:
        e(f"v_rcp_f32 v{vT+4}, v{vT+4}")
e(f"v_mul_f32 v{vT+5}, v{vT+5}, v{vT+4}")
e(f"v_mul_f32 v{vT+6}, v{vT+6}, v{vT+4}")
e(f"v_cvt_pk_bf16_f32 v{vT+5}, v{vT+5}, v{vT+6}")
e(f"ds_write_b32 v{vLw}, v{vT+5} offset:{LDS_OB}")
od = 34
e(f"ds_read_b128 {vr(od,4)}, v{vLr} offset:{LDS_OB}")
e(f"ds_read_b128 {vr(od+4,4)}, v{vLr} offset:{LDS_OB+16}")
yb = 42
for i in range(4):
    e(f"v_mov_b32 v{yb+2*i+1}, s{sNonce}")
e("s_waitcnt lgkmcnt(0)")
yacc = 54
def abuild(t):
    a = vAop + 4 * (t & 1)
    sel = selO if t & 1 else selE
    for i in range(4):
        e(f"v_perm_b32 v{a+i}, v{od+t//2}, v{od+t//2}, v{sel+i}")
abuild(0)
for t in range(16):
    if t < 15: abuild(t + 1)
    else: nop(2)
    a = vAop + 4 * (t & 1)
    c = "0" if t == 0 else vr(yacc, 4)
    e(f"v_mfma_f32_16x16x32_bf16 {vr(yacc,4)}, {vr(a,4)}, {vr(vWo+4*t,4)}, {c}")
nop(8)
for i in range(4):
    e(f"v_mov_b32 v{yb+2*i}, v{yacc+i}")
e(f"buffer_store_dwordx4 {vr(yb,4)}, v{vYo}, {sr(sWS,4)}, s72 offen sc1")
e(f"buffer_store_dwordx4 {vr(yb+4,4)}, v{vYo}, {sr(sWS,4)}, s72 offen offset:32 sc1")
stamp(4)
e(f"s_cmp_ge_u32 s{sH}, 4")
e("s_cbranch_scc1 A_FIN")
e(f"v_lshlrev_b32 v{vT}, 13, v{vG}")
e(f"v_lshl_or_b32 v{vT}, v{vN}, 4, v{vT}")
e(f"s_lshl_b32 s{sT0}, s{sS}, 10")
e(f"s_lshl_b32 s{sT1}, s{sH}, 8")
e(f"s_add_u32 s{sT0}, s{sT0}, s{sT1}")
e(f"s_add_u32 s{sT0}, s{sT0}, {hex(WS_YA)}")
gy = vBuf
lds_ = []
for k in range(8):
    lds_.append((f"buffer_load_dwordx4 {vr(gy+4*k,4)}, v{vT}, {sr(sWS,4)}, s{sT1} offen sc1", [gy+4*k+1, gy+4*k+3], f"s_add_u32 s{sT1}, s{sT0}, {hex(k*0x8000)}"))
def stage3_prep():
    srd(sW, pOut, 2048)
    e(f"v_and_b32 v{vT+1}, 0x31, v{vLane}")
    e(f"v_cmp_eq_u32 vcc, 0, v{vT+1}")
    e(f"v_mov_b32 v{vT+3}, {hex(OOB)}")
    e(f"v_lshlrev_b32 v{vT+6}, 1, v{vLane}")
    e(f"s_lshl_b32 s72, s{sS}, 7")
    e(f"s_lshl_b32 s73, s{sH}, 5")
    e(f"s_add_u32 s72, s72, s73")
    e(f"v_cndmask_b32 v{vT+6}, v{vT+3}, v{vT+6}, vcc")
masked_poll("A_Y", lds_, P.SLEEPY, stage3_prep)
for k in range(1, 8):
    e(f"v_add_f32 v{gy}, v{gy}, v{gy+4*k}")
    e(f"v_add_f32 v{gy+2}, v{gy+2}, v{gy+4*k+2}")
nop(1)
e(f"v_add_f32_dpp v{gy}, v{gy}, v{gy} quad_perm:[1,0,3,2] {DPPM}")
e(f"v_add_f32_dpp v{gy+2}, v{gy+2}, v{gy+2} quad_perm:[1,0,3,2] {DPPM}")
for sw in ("v_permlane16_swap_b32", "v_permlane32_swap_b32"):
    e(f"v_mov_b32 v{vT+2}, v{gy}")
    e(f"v_mov_b32 v{vT+4}, v{gy+2}")
    nop(1)
    e(f"{sw} v{vT+2}, v{gy}")
    e(f"{sw} v{vT+4}, v{gy+2}")
    e(f"v_add_f32 v{gy}, v{vT+2}, v{gy}")
    e(f"v_add_f32 v{gy+2}, v{vT+4}, v{gy+2}")
e(f"v_cvt_pk_bf16_f32 v{gy}, v{gy}, v{gy+2}")
e(f"buffer_store_dword v{gy}, v{vT+6}, {sr(sW,4)}, s72 offen")
lab("A_FIN")
if P.STAMP == 1:
    stamp_store()
e("s_branch END")

lab("B_PATH")
if P.NOB:
    e("s_branch END")
if P.BLAST:
    e(f"s_sub_u32 s2, s2, {P.NA}")
NBf = P.NBUFB
lane_consts()
e(f"s_lshr_b32 s{sH}, s2, 2")
e(f"s_and_b32 s{sS}, s2, 3")
e(f"s_lshl_b32 s{sT0}, s{sH}, 23")
e(f"s_lshl_b32 s{sT1}, s{sS}, 18")
e(f"s_add_u32 s{sT0}, s{sT0}, s{sT1}")
e(f"s_add_u32 s{sT0}, s{sT0}, {hex((32768-4096)*256)}")
BLIM = 1024 * 256
srd(sK, pBk, BLIM, sT0)
srd(sV, pBv, BLIM, sT0)
e(f"s_cmp_lg_u32 s{sWave}, 0")
e("s_cbranch_scc1 B_NONONCE")
e(f"v_mov_b32 v{vT}, 0")
e(f"buffer_load_dword v{vTag}, v{vT}, {sr(sX,4)}, 0 offen sc1")
get_nonce("B")
if P.BWAIT:
    cm("B starts its heavy loads only after the A q-exchange of head s2 has been published")
    e(f"s_lshl_b32 s{sT0}, s2, 13")
    e(f"s_add_u32 s{sT0}, s{sT0}, {hex(WS_QA)}")
    e(f"v_and_b32 v{vT}, 7, v{vLane}")
    e(f"v_lshlrev_b32 v{vT}, 10, v{vT}")
    lab("B_WPOLL")
    e(f"buffer_load_dwordx2 {vr(34,2)}, v{vT}, {sr(sWS,4)}, s{sT0} offen sc1")
    e("s_waitcnt vmcnt(0)")
    tag_check([35], vT + 2, vT + 3)
    e("s_cbranch_vccz B_WDONE")
    e(f"s_add_u32 s{sCnt}, s{sCnt}, 1")
    e(f"s_cmp_gt_u32 s{sCnt}, {hex(P.SPIN)}")
    e("s_cbranch_scc1 B_WDONE")
    e(f"s_sleep {P.SLEEP*8}")
    e("s_branch B_WPOLL")
    lab("B_WDONE")
lab("B_NONONCE")
e("s_barrier")
srd(sW, pBx, 1024)
e(f"v_lshrrev_b32 v{vT}, 2, v{vN}")
e(f"v_lshlrev_b32 v{vT}, 4, v{vT}")
e(f"v_lshl_or_b32 v{vT}, v{vG}, 6, v{vT}")
e(f"s_lshl_b32 s{sT0}, s{sWave}, 8")
e(f"buffer_load_dwordx4 {vr(34,4)}, v{vT}, {sr(sW,4)}, s{sT0} offen")
nop(1)

def rowsum128(xd, rowstride_log2, label):
    ppb = 38
    first = True
    for half in range(2):
        for Tq in range(4):
            T = half * 4 + Tq
            for tt in range(4):
                idx = Tq * 4 + tt
                e(f"s_add_u32 s{sT1}, s{sT0}, {hex((8*tt+T) << rowstride_log2)}")
                e(f"buffer_load_dwordx4 {vr(vBuf+4*idx,4)}, v{vT+1}, {sr(sW,4)}, s{sT1} offen nt")
        if half == 0:
            yield "loads_issued"
            for T in range(8):
                e(f"v_perm_b32 v{ppb+T}, v{xd+T//2}, v{xd+T//2}, s{sDupHi if T&1 else sDupLo}")
            nop(2)
        for Tq in range(4):
            T = half * 4 + Tq
            for tt in range(4):
                idx = Tq * 4 + tt
                a = rowsum_mfma(ppb + T, tt, idx & 1, None, None, None)
                e(f"s_waitcnt vmcnt({15-idx})")
                nop(1)
                c = "0" if first else vr(B_vO, 4)
                first = False
                e(f"v_mfma_f32_16x16x32_bf16 {vr(B_vO,4)}, {vr(a,4)}, {vr(vBuf+4*idx,4)}, {c}")

srd(sW, pBwq, 512 * 8192)
e(f"v_lshlrev_b32 v{vT+1}, 18, v{vG}")
e(f"v_lshl_or_b32 v{vT+1}, v{vN}, 4, v{vT+1}")
e(f"s_lshl_b32 s{sT0}, s{sWave}, 20")
e(f"s_lshl_b32 s{sT1}, s2, 8")
e(f"s_add_u32 s{sT0}, s{sT0}, s{sT1}")
gen = rowsum128(34, 13, "BQ")
next(gen)
e("s_waitcnt vmcnt(16)")
for _ in gen: pass
e(f"v_lshlrev_b32 v{vT}, 5, v{vN}")
e(f"v_lshl_or_b32 v{vT}, v{vG}, 4, v{vT}")
e(f"s_lshl_b32 s{sT0}, s{sWave}, 9")
e(f"v_add_u32 v{vT}, s{sT0}, v{vT}")
nop(8)
e("s_mov_b32 exec_hi, 0")
e(f"ds_write_b128 v{vT}, {vr(B_vO,4)} offset:{LDS_O}")
e("s_mov_b64 exec, -1")
e("s_waitcnt lgkmcnt(0)")
e("s_barrier")

def B_issueK(b):
    for t in range(4):
        e(f"buffer_load_dwordx4 {vr(vBuf+32*b+4*t,4)}, v{vOffK}, {sr(sK,4)}, s{sOff+b} offen offset:{1024*t} nt")
def B_issueV(b, ts=range(4)):
    for t in ts:
        e(f"buffer_load_dwordx4 {vr(vBuf+32*b+16+4*t,4)}, v{vOffV}, {sr(sV,4)}, s{sOff+b} offen offset:{1024*t} nt")
def B_prefetch():
    e(f"s_lshl_b32 s{sStat}, s{sWave}, 12")
    for b in range(NBf):
        e(f"s_mov_b32 s{sOff+b}, s{sStat}")
        e(f"s_add_u32 s{sStat}, s{sStat}, 0x4000")
        B_issueK(b)
        B_issueV(b)

e(f"s_cmp_lg_u32 s{sWave}, 0")
e("s_cbranch_scc1 B_NONLEADER")
e(f"v_lshlrev_b32 v{vT+1}, 3, v{vLane}")
for w in range(4):
    e(f"ds_read_b64 {vr(34+2*w,2)}, v{vT+1} offset:{LDS_O+512*w}")
e("s_waitcnt lgkmcnt(0)")
for i in range(2):
    e(f"v_add_f32 v{34+i}, v{34+i}, v{36+i}")
    e(f"v_add_f32 v{34+i}, v{34+i}, v{38+i}")
    e(f"v_add_f32 v{34+i}, v{34+i}, v{40+i}")
e(f"v_cvt_pk_bf16_f32 v{34}, v{34}, v{35}")
e(f"v_mov_b32 v{35}, s{sNonce}")
e(f"s_lshl_b32 s{sT0}, s2, 10")
e(f"s_add_u32 s{sT0}, s{sT0}, {hex(WS_QB)}")
e(f"buffer_store_dwordx2 {vr(34,2)}, v{vT+1}, {sr(sWS,4)}, s{sT0} offen sc1")
e(f"s_lshl_b32 s{sT0}, s{sH}, 12")
e(f"s_add_u32 s{sT0}, s{sT0}, {hex(WS_QB)}")
lab("B_QPOLL")
for j in range(4):
    e(f"buffer_load_dwordx2 {vr(36+2*j,2)}, v{vT+1}, {sr(sWS,4)}, s{sT0} offen offset:{1024*j} sc1")
e("s_waitcnt vmcnt(0)")
tag_check([37, 39, 41, 43], vT + 2, vT + 3)
e("s_cbranch_vccz B_QDONE")
e(f"s_add_u32 s{sCnt}, s{sCnt}, 1")
e(f"s_cmp_gt_u32 s{sCnt}, {hex(P.SPIN)}")
e("s_cbranch_scc1 B_QDONE")
e(f"s_sleep {P.SLEEP*4}")
e("s_branch B_QPOLL")
lab("B_QDONE")
e(f"v_lshlrev_b32 v{vT}, 2, v{vLane}")
for j in range(4):
    e(f"ds_write_b32 v{vT}, v{36+2*j} offset:{LDS_Q+256*j}")
e(f"v_mov_b32 v{vT+2}, 0")
e(f"ds_write_b32 v{vT+2}, v{35} offset:{LDS_NONCE}")
B_prefetch()
e("s_waitcnt lgkmcnt(0)")
e("s_branch B_QBAR")
lab("B_NONLEADER")
B_prefetch()
lab("B_QBAR")
e("s_barrier")
e(f"ds_read_b128 {vr(B_vQ,4)}, v{vOffK} offset:{LDS_Q}")
e(f"v_mov_b32 v{vT+2}, 0")
e(f"ds_read_b32 v{vTag}, v{vT+2} offset:{LDS_NONCE}")
vMa, vMb = 62, 63
e(f"v_and_b32 v{vT}, 1, v{vN}")
e(f"v_cmp_eq_u32 vcc, 1, v{vT}")
e(f"v_mov_b32 v{vT+1}, 0xffff")
e(f"v_mov_b32 v{vT+2}, 0xffff0000")
e(f"v_cndmask_b32 v{vT+1}, v{vT+1}, v{vT+2}, vcc")
e(f"v_and_b32 v{vT}, 2, v{vN}")
e(f"v_cmp_eq_u32 vcc, 0, v{vT}")
nop(2)
e(f"v_cndmask_b32 v{vMa}, 0, v{vT+1}, vcc")
e(f"v_cndmask_b32 v{vMb}, v{vT+1}, 0, vcc")
for i in range(12):
    e(f"v_mov_b32 v{vAop+i}, 0")
for i in range(8):
    e(f"v_mov_b32 v{B_vO+i}, 0")
e("s_waitcnt lgkmcnt(0)")
e(f"v_readfirstlane_b32 s{sNonce}, v{vTag}")
nop(2)
lab("B_LOOP")
rareB = []
for b in range(NBf):
    kb = vBuf + 32 * b
    vb = kb + 16
    cm(f"--- B body {b}")
    e(f"s_cmp_ge_u32 s{sOff+b}, {hex(BLIM)}")
    e("s_cbranch_scc1 B_EXIT")
    e(f"s_waitcnt vmcnt({8*NBf-4})")
    for t in range(4):
        e(f"v_mfma_f32_16x16x32_bf16 {vr(B_vS+4*t,4)}, {vr(kb+4*t,4)}, {vr(B_vQ,4)}, 0")
    e(f"s_mov_b32 s{sOff+b}, s{sStat}")
    e(f"s_add_u32 s{sStat}, s{sStat}, 0x4000")
    B_issueK(b)
    nop(2)
    s = vT
    for t in range(4):
        e(f"v_mov_b32_dpp v{s+t}, v{B_vS+4*t} quad_perm:[0,0,0,0] {DPPM}")
        for i in range(1, 4):
            e(f"v_add_f32_dpp v{s+t}, v{B_vS+4*t+i}, v{s+t} quad_perm:[{i},{i},{i},{i}] {DPPM}")
    for t in range(4):
        if P.MIMIC:
            e(f"v_cvt_pk_bf16_f32 v{s+t}, v{s+t}, v{s+t}")
            e(f"v_and_b32 v{s+t}, 0xffff0000, v{s+t}")
            e(f"v_mul_f32 v{s+t}, s{sScale}, v{s+t}")
            e(f"v_cvt_pk_bf16_f32 v{s+t}, v{s+t}, v{s+t}")
            e(f"v_and_b32 v{s+t}, 0xffff0000, v{s+t}")
        else:
            e(f"v_mul_f32 v{s+t}, s{sScale}, v{s+t}")
    e(f"v_max3_f32 v{s+4}, v{s}, v{s+1}, v{s+2}")
    e(f"v_max_f32 v{s+4}, v{s+4}, v{s+3}")
    e(f"v_cmp_gt_f32 vcc, v{s+4}, v{vM}")
    e(f"s_cbranch_vccnz B_RARE{b}")
    lab(f"B_BACK{b}")
    for t in range(4):
        e(f"v_fma_f32 v{s+t}, v{s+t}, s{sLog2e}, -v{vML}")
        e(f"v_exp_f32 v{s+t}, v{s+t}")
    nop(1)
    for t in range(4):
        e(f"v_add_f32 v{vL}, v{vL}, v{s+t}")
        e(f"v_cvt_pk_bf16_f32 v{s+t}, v{s+t}, v{s+t}")
    e(f"s_waitcnt vmcnt({8*NBf-4})")
    for t in range(4):
        sx = vAop + 6 * (t & 1)
        e(f"v_and_b32 v{sx+2}, v{s+t}, v{vMa}")
        e(f"v_and_b32 v{sx+3}, v{s+t}, v{vMb}")
        nop(2)
        e(f"v_mfma_f32_16x16x32_bf16 {vr(B_vO,4)}, {vr(sx+2,4)}, {vr(vb+4*t,4)}, {vr(B_vO,4)}")
        e(f"v_mfma_f32_16x16x32_bf16 {vr(B_vO+4,4)}, {vr(sx,4)}, {vr(vb+4*t,4)}, {vr(B_vO+4,4)}")
    B_issueV(b)
    rareB.append(b)
e("s_branch B_LOOP")
for b in rareB:
    s = vT
    lab(f"B_RARE{b}")
    x = s + 4
    allreduce_rows("v_max_f32", x, s + 5, s + 6)
    e(f"v_max_f32 v{x}, v{x}, v{vM}")
    e(f"v_mul_f32 v{s+5}, s{sLog2e}, v{x}")
    e(f"v_sub_f32 v{s+6}, v{vML}, v{s+5}")
    e(f"v_exp_f32 v{s+6}, v{s+6}")
    e(f"v_mov_b32 v{vM}, v{x}")
    e(f"v_mov_b32 v{vML}, v{s+5}")
    e(f"v_lshlrev_b32 v{s+5}, 4, v{vG}")
    e(f"ds_bpermute_b32 v{s+4}, v{s+5}, v{s+6}")
    e(f"v_mul_f32 v{vL}, v{vL}, v{s+6}")
    e("s_waitcnt lgkmcnt(0)")
    nop(8)
    for i in range(8):
        e(f"v_mul_f32 v{B_vO+i}, v{B_vO+i}, v{s+4}")
    e(f"s_branch B_BACK{b}")
lab("B_EXIT")
e("s_waitcnt vmcnt(0)")
allreduce_rows("v_add_f32", vL, vT, vT + 1)
e(f"v_lshlrev_b32 v{vT}, 5, v{vN}")
e(f"v_lshl_or_b32 v{vT}, v{vG}, 9, v{vT}")
e(f"s_lshl_b32 s{sT0}, s{sWave}, 11")
e(f"v_add_u32 v{vT}, s{sT0}, v{vT}")
e(f"ds_write_b128 v{vT}, {vr(B_vO,4)} offset:{LDS_O}")
e(f"ds_write_b128 v{vT}, {vr(B_vO+4,4)} offset:{LDS_O+16}")
e(f"v_lshrrev_b32 v{vT+1}, 2, v{vN}")
e(f"v_lshlrev_b32 v{vT+1}, 5, v{vT+1}")
e(f"s_lshl_b32 s{sT0}, s{sWave}, 3")
e(f"v_add_u32 v{vT+1}, s{sT0}, v{vT+1}")
e(f"v_mov_b32 v{vT+3}, v{vML}")
e(f"v_mov_b32 v{vT+4}, v{vL}")
e(f"ds_write_b64 v{vT+1}, {vr(vT+3,2)} offset:{LDS_ML}")
e("s_waitcnt lgkmcnt(0)")
e("s_barrier")
cm("wave j combines head j")
c0 = 34
e(f"s_lshl_b32 s{sT0}, s{sWave}, 5")
e(f"v_mov_b32 v{vT}, s{sT0}")
e(f"ds_read_b128 {vr(c0,4)}, v{vT} offset:{LDS_ML}")
e(f"ds_read_b128 {vr(c0+4,4)}, v{vT} offset:{LDS_ML+16}")
e(f"v_lshlrev_b32 v{vT+1}, 3, v{vLane}")
e(f"s_lshl_b32 s{sT0}, s{sWave}, 9")
e(f"v_add_u32 v{vT+1}, s{sT0}, v{vT+1}")
for w in range(4):
    e(f"ds_read_b64 {vr(c0+8+2*w,2)}, v{vT+1} offset:{LDS_O+2048*w}")
e("s_waitcnt lgkmcnt(0)")
e(f"v_max3_f32 v{vML}, v{c0}, v{c0+2}, v{c0+4}")
e(f"v_max_f32 v{vML}, v{vML}, v{c0+6}")
for w in range(4):
    e(f"v_sub_f32 v{c0+2*w}, v{c0+2*w}, v{vML}")
    e(f"v_exp_f32 v{c0+2*w}, v{c0+2*w}")
nop(1)
pb = c0 + 16
e(f"v_mul_f32 v{vL}, v{c0}, v{c0+1}")
e(f"v_mul_f32 v{pb}, v{c0}, v{c0+8}")
e(f"v_mul_f32 v{pb+2}, v{c0}, v{c0+9}")
for w in range(1, 4):
    e(f"v_fmac_f32 v{vL}, v{c0+2*w}, v{c0+2*w+1}")
    e(f"v_fmac_f32 v{pb}, v{c0+2*w}, v{c0+8+2*w}")
    e(f"v_fmac_f32 v{pb+2}, v{c0+2*w}, v{c0+9+2*w}")
e(f"v_mov_b32 v{pb+1}, s{sNonce}")
e(f"v_mov_b32 v{pb+3}, s{sNonce}")
e(f"v_mov_b32 v{pb+4}, v{vML}")
e(f"v_mov_b32 v{pb+5}, s{sNonce}")
e(f"v_mov_b32 v{pb+6}, v{vL}")
e(f"v_mov_b32 v{pb+7}, s{sNonce}")
e(f"s_lshl_b32 s{sT0}, s{sH}, 2")
e(f"s_add_u32 s{sT0}, s{sT0}, s{sWave}")
e(f"s_lshl_b32 s{sT0}, s{sT0}, 2")
e(f"s_add_u32 s{sT0}, s{sT0}, s{sS}")
e(f"s_lshl_b32 s{sT0}, s{sT0}, 11")
e(f"s_add_u32 s{sT0}, s{sT0}, {hex(WS_PB)}")
e(f"v_mov_b32 v{vT+3}, {hex(OOB)}")
e(f"v_cmp_eq_u32 vcc, 0, v{vLane}")
e(f"buffer_store_dwordx4 {vr(pb,4)}, v{vOffV}, {sr(sWS,4)}, s{sT0} offen sc1")
nop(1)
e(f"v_cndmask_b32 v{vT+2}, v{vT+3}, 0, vcc")
e(f"buffer_store_dwordx4 {vr(pb+4,4)}, v{vT+2}, {sr(sWS,4)}, s{sT0} offen offset:1024 sc1")
e(f"s_cmp_lg_u32 s{sWave}, 0")
e("s_cbranch_scc1 B_OBAR")
go = 22
gm = 38
e(f"s_lshl_b32 s{sT0}, s2, 13")
e(f"s_add_u32 s{sT0}, s{sT0}, {hex(WS_PB)}")
e(f"v_and_b32 v{vT}, 3, v{vLane}")
e(f"v_lshlrev_b32 v{vT}, 11, v{vT}")
e(f"v_add_u32 v{vT+1}, 4096, v{vOffV}")
nop(2)
lab("B_PPOLL")
for p in range(4):
    vo = vOffV if p < 2 else vT + 1
    e(f"buffer_load_dwordx4 {vr(go+4*p,4)}, v{vo}, {sr(sWS,4)}, s{sT0} offen offset:{2048*(p%2)} sc1")
e(f"buffer_load_dwordx4 {vr(gm,4)}, v{vT}, {sr(sWS,4)}, s{sT0} offen offset:1024 sc1")
e("s_waitcnt vmcnt(0)")
tag_check([go + 2 * i + 1 for i in range(8)] + [gm + 1, gm + 3], vT + 2, vT + 3)
e("s_cbranch_vccz B_PDONE")
e(f"s_add_u32 s{sCnt}, s{sCnt}, 1")
e(f"s_cmp_gt_u32 s{sCnt}, {hex(P.SPIN)}")
e("s_cbranch_scc1 B_PDONE")
e(f"s_sleep {P.SLEEP*4}")
e("s_branch B_PPOLL")
lab("B_PDONE")
e(f"v_mov_b32 v{vT+2}, v{gm}")
ror_reduce("v_max_f32", vT + 2, [1, 2])
e(f"v_sub_f32 v{vT+3}, v{gm}, v{vT+2}")
e(f"v_exp_f32 v{vT+3}, v{vT+3}")
nop(1)
e(f"v_mul_f32 v{vT+4}, v{vT+3}, v{gm+2}")
ror_reduce("v_add_f32", vT + 4, [1, 2])
e(f"v_rcp_f32 v{vT+4}, v{vT+4}")
e(f"v_mov_b32 v{vT+5}, 0")
e(f"v_mov_b32 v{vT+6}, 0")
for p in range(4):
    e(f"v_fmac_f32_dpp v{vT+5}, v{vT+3}, v{go+4*p} row_newbcast:{p} {DPPM}")
    e(f"v_fmac_f32_dpp v{vT+6}, v{vT+3}, v{go+4*p+2} row_newbcast:{p} {DPPM}")
e(f"v_mul_f32 v{vT+5}, v{vT+5}, v{vT+4}")
e(f"v_mul_f32 v{vT+6}, v{vT+6}, v{vT+4}")
e(f"v_cvt_pk_bf16_f32 v{vT+5}, v{vT+5}, v{vT+6}")
e(f"v_lshlrev_b32 v{vT}, 2, v{vLane}")
e(f"ds_write_b32 v{vT}, v{vT+5} offset:{LDS_OB}")
e("s_waitcnt lgkmcnt(0)")
lab("B_OBAR")
e("s_barrier")
e(f"v_lshrrev_b32 v{vT}, 2, v{vN}")
e(f"v_lshlrev_b32 v{vT}, 4, v{vT}")
e(f"v_lshl_or_b32 v{vT}, v{vG}, 6, v{vT}")
e(f"ds_read_b128 {vr(34,4)}, v{vT} offset:{LDS_OB}")
srd(sW, pBwo, 4096 * 1024)
e(f"v_lshlrev_b32 v{vT+1}, 15, v{vG}")
e(f"v_lshl_or_b32 v{vT+1}, v{vN}, 4, v{vT+1}")
e(f"s_lshl_b32 s{sT0}, s2, 17")
e(f"s_lshl_b32 s{sT1}, s{sWave}, 8")
e(f"s_add_u32 s{sT0}, s{sT0}, s{sT1}")
e("s_waitcnt vmcnt(0)")
gen = rowsum128(34, 10, "BW")
next(gen)
e("s_waitcnt lgkmcnt(0)")
for _ in gen: pass
e(f"v_lshlrev_b32 v{vT}, 6, v{vN}")
e(f"v_lshl_or_b32 v{vT}, v{vG}, 5, v{vT}")
e(f"v_mov_b32 v{vT+1}, {hex(OOB)}")
e(f"v_cmp_gt_u32 vcc, 32, v{vLane}")
e(f"s_lshl_b32 s{sT0}, s2, 12")
e(f"s_lshl_b32 s{sT1}, s{sWave}, 10")
e(f"s_add_u32 s{sT0}, s{sT0}, s{sT1}")
e(f"s_add_u32 s{sT0}, s{sT0}, {hex(WS_YB)}")
e(f"v_cndmask_b32 v{vT}, v{vT+1}, v{vT}, vcc")
nop(8)
yb = 34
for i in range(4):
    e(f"v_mov_b32 v{yb+2*i}, v{B_vO+i}")
    e(f"v_mov_b32 v{yb+2*i+1}, s{sNonce}")
e(f"buffer_store_dwordx4 {vr(yb,4)}, v{vT}, {sr(sWS,4)}, s{sT0} offen sc1")
e(f"buffer_store_dwordx4 {vr(yb+4,4)}, v{vT}, {sr(sWS,4)}, s{sT0} offen offset:16 sc1")
e(f"s_cmp_lg_u32 s{sWave}, 0")
e("s_cbranch_scc1 END")
e(f"v_and_b32 v{vT}, 7, v{vLane}")
e(f"v_lshlrev_b32 v{vT}, 4, v{vT}")
e(f"v_lshrrev_b32 v{vT+1}, 3, v{vLane}")
e(f"v_lshl_or_b32 v{vT}, v{vT+1}, 12, v{vT}")
e(f"s_lshl_b32 s{sT0}, s2, 7")
e(f"s_add_u32 s{sT0}, s{sT0}, {hex(WS_YB)}")
gy = 44
lab("B_YPOLL")
e(f"s_mov_b32 s{sT1}, s{sT0}")
for i in range(4):
    e(f"buffer_load_dwordx4 {vr(gy+4*i,4)}, v{vT}, {sr(sWS,4)}, s{sT1} offen sc1")
    if i < 3:
        e(f"s_add_u32 s{sT1}, s{sT1}, 0x8000")
e("s_waitcnt vmcnt(0)")
tag_check([gy + 2 * i + 1 for i in range(8)], vT + 2, vT + 3)
e("s_cbranch_vccz B_YDONE")
e(f"s_add_u32 s{sCnt}, s{sCnt}, 1")
e(f"s_cmp_gt_u32 s{sCnt}, {hex(P.SPIN)}")
e("s_cbranch_scc1 B_YDONE")
e(f"s_sleep {P.SLEEP*4}")
e("s_branch B_YPOLL")
lab("B_YDONE")
for c in (0, 2):
    e(f"v_add_f32 v{gy+c}, v{gy+c}, v{gy+4+c}")
    e(f"v_add_f32 v{gy+c}, v{gy+c}, v{gy+8+c}")
    e(f"v_add_f32 v{gy+c}, v{gy+c}, v{gy+12+c}")
ror_reduce("v_add_f32", gy, [8])
ror_reduce("v_add_f32", gy + 2, [8])
allreduce_rows("v_add_f32", gy, vT + 2, vT + 3)
allreduce_rows("v_add_f32", gy + 2, vT + 2, vT + 3)
e(f"v_cvt_pk_bf16_f32 v{gy}, v{gy}, v{gy+2}")
srd(sW, pOut, 2048)
e(f"v_mov_b32 v{vT+3}, {hex(OOB)}")
e(f"v_cmp_gt_u32 vcc, 8, v{vLane}")
e(f"v_lshlrev_b32 v{vT+2}, 2, v{vLane}")
e(f"s_lshl_b32 s{sT0}, s2, 5")
e(f"s_add_u32 s{sT0}, s{sT0}, 1024")
e(f"v_cndmask_b32 v{vT+2}, v{vT+3}, v{vT+2}, vcc")
e(f"buffer_store_dword v{gy}, v{vT+2}, {sr(sW,4)}, s{sT0} offen")
lab("END")
e("s_endpgm")

nvgpr = max(vBuf + 32 * max(P.NBUF, P.NBUFB, 2, P.NPRO), vWo + 64)
out += "\n".join(L) + "\n"
out += f""".section .rodata,"a"
.p2align 6
.amdhsa_kernel {KNAME}
  .amdhsa_next_free_vgpr {nvgpr}
  .amdhsa_next_free_sgpr 102
  .amdhsa_accum_offset {nvgpr}
  .amdhsa_group_segment_fixed_size 0
  .amdhsa_kernarg_size 104
  .amdhsa_user_sgpr_count 2
  .amdhsa_user_sgpr_kernarg_segment_ptr 1
  .amdhsa_system_sgpr_workgroup_id_x 1
.end_amdhsa_kernel
"""
open(sys.argv[1], "w").write(out)
print("wrote", sys.argv[1], "lines", len(L), "vgpr", nvgpr)
```

```python
import sys, struct

KNAME = "concat_heads__mha_block_cached__sliding_block_cached__decode_kernel"

class P:
    NBUF = 2
    NBUFB = 2
    J = 54
    NB = 32
    NA = 256
    MIMIC = 1
    STAMP = 0
    SLEEP = 1
    BWAIT = 1
    ROT = 0
    NOB = 0
    NI = 2
    LE = 8
    TEND = 1792
    CAP = 60
    J0 = 6
    EB = 0
    EDGE = 0
    ORG = 0
    PMUL = 0
    OFF = 0
    PAIR = 1
    PAIRM = 96
    CLK = 0
    NX = 0
    RMASK = 0x7ff000
    BLAST = 0
    SAT = 1
    CLPOS = 0
    FAKEAT = 0
    LA = 2
    REV = 0
    WARM = 0
    WOEARLY = 0
    NPRO = 1
    SLEEPQ = 1
    SLEEPP = 1
    SLEEPY = 1
    PW = 1
    SPIN = 0x40000

for a in sys.argv[2:]:
    k, v = a.split("=")
    setattr(P, k, v if "_" in v else int(v, 0))

L = []
def e(s): L.append("    " + s)
def lab(s): L.append(s + ":")
def cm(s): L.append("    ; " + s)
def nop(n):
    while n > 0:
        k = min(n, 16)
        e(f"s_nop {k-1}")
        n -= k
def f32(x): return "0x%08x" % struct.unpack("<I", struct.pack("<f", x))[0]
def vr(b, n): return f"v[{b}:{b+n-1}]"
def sr(b, n): return f"s[{b}:{b+n-1}]"
DPPM = "row_mask:0xf bank_mask:0xf"

WS_CTR = 0x0
WS_QA = 0x10000
WS_PA = 0x80000
WS_YA = 0x100000
WS_QB = 0x180000
WS_PB = 0x1A0000
WS_YB = 0x200000
WS_STAMP = 0x300000
WS_SIZE = 0x400000
OOB = 0x40000000
CBASE = 16

sK, sV, sWS, sW, sX = 4, 8, 12, 16, 20
pAx, pAk, pAv, pAwq, pAwo, pBx, pBk, pBv, pBwq, pBwo, pOut, pDbg, pWs = [24 + 2 * i for i in range(13)]
sWave = 50; sH = 51; sS = 52; sT0 = 53; sT1 = 54; sNonce = 55; sJ = 56; sStat = 57
sScale = 58; sLog2e = 59; sOff = 60
sId = 68; sT2 = 69; sTm = 70
sDupLo = 74; sDupHi = 75; sCnt = 76; sMask = 78
sStampA = 80
sFlag = 77
sRot = 3
sCtr = 96
sClaim = 98
sUw = 100

vLane, vOffK, vOffV, vCtr = 0, 1, 2, 3
vN, vG = 4, 5
vMask = 6
vM, vML, vL = 10, 11, 12
vT = 13
vTag = 20
vZ = 21
vAop = 22
vS = 34
vO = 50
vQ = 34 + 4
A_vS, A_vQ, A_vO, A_vClaim = 34, 38, 54, 58
B_vS, B_vQ, B_vO = 34, 50, 54
vBuf = 64

LDS_Q = 0
LDS_NONCE = 1024
LDS_FLAG = 1028
LDS_O = 2048
LDS_ML = 10240
LDS_OB = 10496
LDS_BYTES = 12288 + 16384

def srd(dst, ptr, nrec, add_lo=None):
    if add_lo is None:
        e(f"s_mov_b32 s{dst}, s{ptr}")
        e(f"s_mov_b32 s{dst+1}, s{ptr+1}")
    else:
        e(f"s_add_u32 s{dst}, s{ptr}, s{add_lo}")
        e(f"s_addc_u32 s{dst+1}, s{ptr+1}, 0")
    e(f"s_mov_b32 s{dst+2}, {hex(nrec)}")
    e(f"s_mov_b32 s{dst+3}, 0x00020000")

def stamp(idx):
    if P.STAMP == 1 or (P.STAMP == 2 and idx == 0):
        e(f"s_memrealtime s[{sStampA+2*idx}:{sStampA+2*idx+1}]")

def stamp_store():
    e(f"v_mov_b32 v{vT+3}, {hex(OOB)}")
    e(f"v_cmp_eq_u32 vcc, 0, v{vLane}")
    nop(2)
    e(f"v_cndmask_b32 v{vT+2}, v{vT+3}, 0, vcc")
    e(f"s_memrealtime s[{sTm}:{sTm+1}]")
    e("s_waitcnt lgkmcnt(0)")
    for i in range(8):
        e(f"v_mov_b32 v{34+i}, s{sStampA+2*i}")
    e(f"v_mov_b32 v{42}, s{sTm}")
    e(f"s_getreg_b32 s{sT1}, hwreg(HW_REG_XCC_ID)")
    e(f"v_mov_b32 v{43}, s{sT1}")
    e(f"v_mov_b32 v{44}, s{sJ}")
    e(f"v_mov_b32 v{45}, s{sCnt}")
    e(f"s_lshl_b32 s{sT0}, s2, 6")
    e(f"s_add_u32 s{sT0}, s{sT0}, {hex(WS_STAMP)}")
    e(f"buffer_store_dwordx4 {vr(34,4)}, v{vT+2}, {sr(sWS,4)}, s{sT0} offen")
    e(f"buffer_store_dwordx4 {vr(38,4)}, v{vT+2}, {sr(sWS,4)}, s{sT0} offen offset:16")
    e(f"buffer_store_dwordx4 {vr(42,4)}, v{vT+2}, {sr(sWS,4)}, s{sT0} offen offset:32")

def stampw(idx):
    if P.STAMP == 2:
        e(f"s_memrealtime s[{sStampA+2*idx}:{sStampA+2*idx+1}]")

def allreduce_rows(op, x, a, b):
    e(f"v_mov_b32 v{a}, v{x}")
    e(f"v_mov_b32 v{b}, v{x}")
    nop(2)
    e(f"v_permlane16_swap_b32 v{a}, v{b}")
    nop(1)
    e(f"{op} v{x}, v{a}, v{b}")
    e(f"v_mov_b32 v{a}, v{x}")
    e(f"v_mov_b32 v{b}, v{x}")
    nop(2)
    e(f"v_permlane32_swap_b32 v{a}, v{b}")
    nop(1)
    e(f"{op} v{x}, v{a}, v{b}")

def ror_reduce(op, x, rors):
    for r in rors:
        nop(2)
        e(f"{op}_dpp v{x}, v{x}, v{x} row_ror:{r} {DPPM}")

def tag_check(tags, t0, t1):
    tags = list(tags)
    if len(tags) == 1:
        e(f"v_cmp_ne_u32 vcc, s{sNonce}, v{tags[0]}")
        return
    e(f"v_min_u32 v{t0}, v{tags[0]}, v{tags[1]}")
    e(f"v_max_u32 v{t1}, v{tags[0]}, v{tags[1]}")
    rest = tags[2:]
    while len(rest) >= 2:
        e(f"v_min3_u32 v{t0}, v{t0}, v{rest[0]}, v{rest[1]}")
        e(f"v_max3_u32 v{t1}, v{t1}, v{rest[0]}, v{rest[1]}")
        rest = rest[2:]
    if rest:
        e(f"v_min_u32 v{t0}, v{t0}, v{rest[0]}")
        e(f"v_max_u32 v{t1}, v{t1}, v{rest[0]}")
    e(f"v_cmp_ne_u32 vcc, s{sNonce}, v{t0}")
    e(f"v_cmp_ne_u32 s[{sMask}:{sMask+1}], s{sNonce}, v{t1}")
    e(f"s_or_b64 vcc, vcc, s[{sMask}:{sMask+1}]")

rcount = [0]
def spin_recover():
    k = rcount[0]; rcount[0] += 1
    e(f"s_and_b32 s{sMask}, s{sCnt}, 63")
    e(f"s_cmp_lg_u32 s{sMask}, 63")
    e(f"s_cbranch_scc1 SPINR{k}")
    e("s_waitcnt vmcnt(0)")
    e("buffer_inv sc1")
    e("s_waitcnt vmcnt(0)")
    lab(f"SPINR{k}")

def masked_poll(name, loads, sleep, filler=None):
    for (lt, tags, pre) in loads:
        if pre: e(pre)
        e(lt)
    if filler: filler()
    lab(f"{name}_POLL")
    e("s_waitcnt vmcnt(0)")
    e(f"s_mov_b32 s{sT2}, 0")
    for k, (lt, tags, pre) in enumerate(loads):
        if pre: e(pre)
        e(f"v_cmp_ne_u32 vcc, s{sNonce}, v{tags[0]}")
        for t in tags[1:]:
            e(f"v_cmp_ne_u32 s[{sMask}:{sMask+1}], s{sNonce}, v{t}")
            e(f"s_or_b64 vcc, vcc, s[{sMask}:{sMask+1}]")
        e(f"s_cbranch_vccz {name}_S{k}")
        e("s_mov_b64 exec, vcc")
        e(lt)
        e("s_mov_b64 exec, -1")
        e(f"s_mov_b32 s{sT2}, 1")
        lab(f"{name}_S{k}")
    e(f"s_cmp_eq_u32 s{sT2}, 0")
    e(f"s_cbranch_scc1 {name}_DONE")
    e(f"s_add_u32 s{sCnt}, s{sCnt}, 1")
    spin_recover()
    e(f"s_cmp_gt_u32 s{sCnt}, {hex(P.SPIN)}")
    e(f"s_cbranch_scc1 {name}_DONE")
    if sleep: e(f"s_sleep {sleep}")
    e(f"s_branch {name}_POLL")
    lab(f"{name}_DONE")
    e("s_waitcnt vmcnt(0)")

def get_nonce(tag):
    lab(f"NONCE_{tag}")
    e("s_waitcnt vmcnt(0)")
    e(f"v_readfirstlane_b32 s{sNonce}, v{vTag}")
    e(f"s_cmp_lg_u32 s{sNonce}, 0")
    e(f"s_cbranch_scc1 NONCE_OK_{tag}")
    e(f"s_add_u32 s{sCnt}, s{sCnt}, 1")
    spin_recover()
    e(f"s_cmp_gt_u32 s{sCnt}, {hex(P.SPIN)}")
    e(f"s_cbranch_scc1 NONCE_OK_{tag}")
    e(f"s_sleep {P.SLEEP}")
    e(f"v_mov_b32 v{vT}, 0")
    e(f"buffer_load_dword v{vTag}, v{vT}, {sr(sX,4)}, 0 offen sc1")
    e(f"s_branch NONCE_{tag}")
    lab(f"NONCE_OK_{tag}")

def rowsum_mfma(pp, tt, setidx, breg, acc, first, masks=vMask):
    a = vAop + 4 * setidx
    for i in range(4):
        e(f"v_and_b32_dpp v{a+i}, v{pp}, v{masks+i} row_newbcast:{4*tt} {DPPM}")
    return a

hdr = open("concat_heads__mha_block_cached__sliding_block_cached__decode.s.ref").read().split("; Override launch")[0]
out = hdr
NWG = P.NB + P.NA
out += "; Override launch geometry by editing the next line (default: block=256,\n"
out += f"; @launch grid=({NWG},1,1) block=(256,1,1) lds={LDS_BYTES}\n"
out += """;
;    as {value, tag} granules (tag = per-launch nonce published in d_debug[0]); all hand-offs use sc1 stores/loads.
"""
out += '.amdgcn_target "amdgcn-amd-amdhsa--gfx950"\n.text\n'
out += f".globl {KNAME}\n.p2align 8\n.type {KNAME},@function\n{KNAME}:\n"

e(f"s_cmp_ge_u32 s2, {NWG}")
e("s_cbranch_scc1 END")
e("s_load_dwordx16 s[24:39], s[0:1], 0")
e("s_load_dwordx8 s[40:47], s[0:1], 64")
e("s_load_dwordx2 s[48:49], s[0:1], 96")
stamp(0)
e(f"v_lshrrev_b32 v{vT}, 6, v0")
e(f"v_and_b32 v{vLane}, 63, v0")
e(f"v_readfirstlane_b32 s{sWave}, v{vT}")
e(f"v_and_b32 v{vN}, 15, v{vLane}")
e(f"v_lshrrev_b32 v{vG}, 4, v{vLane}")
e(f"v_lshrrev_b32 v{vT}, 2, v{vN}")
e(f"v_lshlrev_b32 v{vOffK}, 8, v{vT}")
e(f"v_lshl_or_b32 v{vOffK}, v{vG}, 6, v{vOffK}")
e(f"v_and_b32 v{vT}, 3, v{vN}")
e(f"v_lshl_or_b32 v{vOffK}, v{vT}, 4, v{vOffK}")
e(f"v_lshlrev_b32 v{vOffV}, 4, v{vLane}")
e(f"v_mov_b32 v{vT}, {hex(OOB)}")
e(f"v_cmp_eq_u32 vcc, 0, v{vLane}")
nop(2)
e(f"v_cndmask_b32 v{vCtr}, v{vT}, 0, vcc")
def lane_consts():
    e(f"v_and_b32 v{vT}, 1, v{vN}")
    e(f"v_cmp_eq_u32 vcc, 1, v{vT}")
    e(f"v_mov_b32 v{vT+1}, 0xffff")
    e(f"v_mov_b32 v{vT+2}, 0xffff0000")
    e(f"v_cndmask_b32 v{vT+1}, v{vT+1}, v{vT+2}, vcc")
    e(f"v_lshrrev_b32 v{vT}, 1, v{vN}")
    for i in range(4):
        e(f"v_cmp_eq_u32 vcc, {i}, v{vT}")
        nop(2)
        e(f"v_cndmask_b32 v{vMask+i}, 0, v{vT+1}, vcc")
    e(f"s_mov_b32 s{sScale}, {f32(128 ** -0.5)}")
    e(f"s_mov_b32 s{sLog2e}, {f32(1.4426950408889634)}")
    e(f"s_mov_b32 s{sCnt}, 0")
    e(f"s_mov_b32 s{sDupLo}, 0x01000100")
    e(f"s_mov_b32 s{sDupHi}, 0x03020302")
    e(f"v_mov_b32 v{vM}, 0xff800000")
    e(f"v_mov_b32 v{vML}, 0xff800000")
    e(f"v_mov_b32 v{vL}, 0")
e("s_waitcnt lgkmcnt(0)")
srd(sWS, pWs, WS_SIZE)
srd(sX, pDbg, 256)
e("s_cmp_lg_u32 s2, 0")
e("s_cbranch_scc1 NO_NONCE_WRITE")
e(f"s_cmp_lg_u32 s{sWave}, 0")
e("s_cbranch_scc1 NO_NONCE_WRITE")
e(f"s_memrealtime s[{sTm}:{sTm+1}]")
e("s_waitcnt lgkmcnt(0)")
e(f"s_or_b32 s{sT0}, s{sTm}, 1")
e(f"v_mov_b32 v{vT}, s{sT0}")
e(f"buffer_store_dword v{vT}, v{vCtr}, {sr(sX,4)}, 0 offen sc1")
lab("NO_NONCE_WRITE")
if P.BLAST:
    e(f"s_cmp_ge_u32 s2, {P.NA}")
    e("s_cbranch_scc1 B_PATH")
else:
    e(f"s_cmp_lt_u32 s2, {P.NB}")
    e("s_cbranch_scc1 B_PATH")

N = P.NBUF
NPRO = max(P.NPRO, N)
J = P.J
assert J > NPRO + 2 * N + 2 and P.PW <= NPRO
LIMIT = 0x800000
e(f"s_sub_u32 s{sId}, s2, {0 if P.BLAST else P.NB}")
e(f"s_lshr_b32 s{sH}, s{sId}, 3")
e(f"s_and_b32 s{sS}, s{sId}, 7")
e(f"s_lshl_b32 s{sT0}, s{sS}, 2")
e(f"s_add_u32 s{sH}, s{sH}, s{sT0}")
e(f"s_and_b32 s{sH}, s{sH}, 31")
e(f"s_lshl_b32 s{sId}, s{sH}, 3")
e(f"s_add_u32 s{sId}, s{sId}, s{sS}")
e(f"s_lshl_b32 s{sT0}, s{sH}, 23")
srd(sK, pAk, LIMIT, sT0)
srd(sV, pAv, LIMIT, sT0)
e(f"s_lshl_b32 s{sT0}, s{sH}, 8")
e(f"v_add_u32 v{vCtr}, s{sT0}, v{vCtr}")
e(f"s_add_u32 s{sCtr}, s{pWs}, s{sT0}")
e(f"s_addc_u32 s{sCtr+1}, s{pWs+1}, 0")
e(f"s_lshl_b32 s{sT0}, s{sS}, 2")
e(f"s_add_u32 s{sT0}, s{sT0}, s{sWave}")
e(f"s_mov_b32 s{sUw}, s{sT0}")
e(f"s_mov_b32 s{sJ}, 0")
e(f"s_mul_i32 s{sRot}, s{sH}, {hex(P.ROT*4096)}")
if P.REV:
    e(f"s_and_b32 s{sRot}, s{sH}, {P.REV}")
    e(f"s_cmp_lg_u32 s{sRot}, 0")
    e(f"s_cselect_b32 s{sRot}, {hex(P.RMASK)}, 0")

def A_issueK(b):
    for t in range(4):
        e(f"buffer_load_dwordx4 {vr(vBuf+32*b+4*t,4)}, v{vOffK}, {sr(sK,4)}, s{sOff+b} offen offset:{1024*t} nt")
def A_issueV(b, ts=range(4)):
    for t in ts:
        e(f"buffer_load_dwordx4 {vr(vBuf+32*b+16+4*t,4)}, v{vOffV}, {sr(sV,4)}, s{sOff+b} offen offset:{1024*t} nt")
vWo = (vBuf + 32 * max(N, NPRO)) if P.WOEARLY else vBuf
def A_wo_loads():
    cm("leader: issue wo slice loads: load t': lane (n,g) row 16(2g+(n>>3)) + t', cols 64s + 8(n&7)")
    srd(sW, pAwo, 4096 * 1024)
    e(f"v_lshrrev_b32 v{vT}, 3, v{vN}")
    e(f"v_lshl_or_b32 v{vT}, v{vG}, 1, v{vT}")
    e(f"v_lshlrev_b32 v{vT}, 14, v{vT}")
    e(f"v_and_b32 v{vT+1}, 7, v{vN}")
    e(f"v_lshl_or_b32 v{vT}, v{vT+1}, 4, v{vT}")
    e(f"s_lshl_b32 s{sT0}, s{sH}, 17")
    e(f"s_lshl_b32 s{sT1}, s{sS}, 7")
    e(f"s_add_u32 s{sT0}, s{sT0}, s{sT1}")
    for t in range(16):
        if t % 4 == 0 and t > 0:
            e(f"s_add_u32 s{sT0}, s{sT0}, 4096")
        e(f"buffer_load_dwordx4 {vr(vWo+4*t,4)}, v{vT}, {sr(sW,4)}, s{sT0} offen offset:{1024*(t%4)} nt")
def stat_off(b):
    if P.REV:
        e(f"s_xor_b32 s{sOff+b}, s{sStat}, s{sRot}")
    elif P.ROT:
        e(f"s_add_u32 s{sOff+b}, s{sStat}, s{sRot}")
        e(f"s_and_b32 s{sOff+b}, s{sOff+b}, {hex(LIMIT-1)}")
    else:
        e(f"s_mov_b32 s{sOff+b}, s{sStat}")
NI = P.NI
J0 = P.J0
sType, sSlot = 60, 64
sQH, sQT, sMode, sEp, sNext, sU = 80+16, 0, 0, 0, 0, 0
sQH, sQT, sMode, sEp, sNext = 57, 72, 73, 99, 77
sNext = 69
vRing = 58
vLS = 59
LDS_S = 12288
icount = [0]
sPend = 75
sExtra, sNeed = 101, 76
def request_next(tag):
    e(f"s_add_u32 s{sJ}, s{sJ}, 1")
    e(f"s_cmp_lt_u32 s{sJ}, {J0}")
    e(f"s_cbranch_scc1 GN_ST{tag}")
    e(f"s_cmp_eq_u32 s{sExtra}, 0")
    e(f"s_cselect_b32 s{sNeed}, 1, 0")
    e(f"s_add_u32 s{sNext}, s{sNext}, s{sExtra}")
    e(f"s_mov_b32 s{sExtra}, 0")
    e(f"s_branch GN_L{tag}")
    lab(f"GN_ST{tag}")
    e(f"s_add_u32 s{sNext}, s{sNext}, 32")
    e(f"s_cmp_lt_u32 s{sJ}, {J0-1}")
    e(f"s_cbranch_scc1 GN_D{tag}")
    lab(f"GN_L{tag}")
    e(f"s_cmp_lg_u32 s{sPend}, 0")
    e(f"s_cbranch_scc1 GN_D{tag}")
    e(f"s_cmp_lt_u32 s{sNext}, {max(P.TEND-P.PAIRM,0) if P.PAIR else 0}")
    e(f"s_cselect_b32 s{sPend}, 2, 1")
    e(f"s_mov_b32 s{sClaim}, s{sPend}")
    e(f"s_atomic_add s{sClaim}, s[{sCtr}:{sCtr+1}], 0x0 glc")
    lab(f"GN_D{tag}")
def _resolve(tag, wait):
    e(f"s_cmp_eq_u32 s{sNeed}, 0")
    e(f"s_cbranch_scc1 RN_D{tag}")
    if wait: e("s_waitcnt lgkmcnt(0)")
    e(f"s_min_u32 s{sNext}, s{sClaim}, 0x10000")
    e(f"s_add_u32 s{sNext}, s{sNext}, {J0*32-CBASE}")
    e(f"s_cmp_lt_u32 s{sJ}, 0x1000")
    e(f"s_cselect_b32 s{sNext}, s{sNext}, 0x10000")
    e(f"s_sub_u32 s{sExtra}, s{sPend}, 1")
    e(f"s_mov_b32 s{sPend}, 0")
    e(f"s_mov_b32 s{sNeed}, 0")
    lab(f"RN_D{tag}")
def resolve_next(tag): _resolve(tag, True)
def resolve_nowait(tag): _resolve(tag, False)
inloop = [False]
sEl = 78
sClk = 94
EB = [int(x) for x in str(P.EB).split("_")] if P.EB else None
def epoch_of_next():
    if EB is None:
        e(f"s_lshr_b32 s{sT0}, s{sNext}, {P.LE}")
    else:
        e(f"s_mov_b32 s{sT0}, 0")
        for bd in EB:
            e(f"s_cmp_ge_u32 s{sNext}, {bd}")
            e(f"s_addc_u32 s{sT0}, s{sT0}, 0")
    e(f"s_add_u32 s{sT1}, s{sNext}, 0x1000")
    e(f"s_cmp_lt_u32 s{sNext}, {P.TEND}")
    e(f"s_cselect_b32 s{sT0}, s{sT0}, s{sT1}")
sNT, sNS, sNO = 70, 71, 74
def decide(force=False):
    t = icount[0]; icount[0] += 1
    useclk = P.CLK and inloop[0]
    if useclk:
        if not force:
            e(f"s_cmp_lg_u32 s{sNeed}, 0")
            e(f"s_cbranch_scc1 IS_CK{t}")
            e(f"s_cmp_lg_u32 s{sPend}, 0")
            e(f"s_cbranch_scc1 IS_CS{t}")
        lab(f"IS_CK{t}")
        e("s_waitcnt lgkmcnt(0)")
        e(f"s_sub_u32 s{sEl}, s{sClk}, s{sFlag}")
        if P.ORG and not P.EDGE:
            e(f"s_sub_u32 s{sEl}, s{sEl}, {P.ORG}")
        if P.PMUL:
            e(f"s_mul_i32 s{sEl}, s{sEl}, {P.PMUL}")
        e(f"s_memrealtime s[{sClk}:{sClk+1}]")
        lab(f"IS_CS{t}")
    e(f"s_cmp_lg_u32 s{sMode}, 0")
    e(f"s_cbranch_scc1 IS_V{t}")
    e(f"s_cmp_ge_u32 s{sEp}, 0x1000")
    e(f"s_cbranch_scc1 IS_TOV{t}")
    if useclk and P.EDGE:
        e(f"s_add_u32 s{sT0}, s{sEl}, {P.OFF}")
        e(f"s_lshr_b32 s{sT0}, s{sT0}, {P.CLK}")
        e(f"s_and_b32 s{sT0}, s{sT0}, 0xff")
        e(f"s_cmp_lg_u32 s{sT0}, s{sEp}")
        e(f"s_mov_b32 s{sEp}, s{sT0}")
        e(f"s_cbranch_scc1 IS_TOV{t}")
        resolve_nowait(f"a{t}")
    elif useclk:
        e(f"s_bitcmp0_b32 s{sEl}, {P.CLK}")
        e(f"s_cbranch_scc1 IS_KT{t}")
        e(f"s_cmp_lg_u32 s{sQH}, s{sQT}")
        e(f"s_cbranch_scc1 IS_VG{t}")
        lab(f"IS_KT{t}")
        resolve_nowait(f"a{t}")
    else:
        resolve_next(f"a{t}")
    e(f"s_cmp_ge_u32 s{sNext}, 2048")
    e(f"s_cbranch_scc1 IS_TOV{t}")
    if P.CLK:
        e(f"s_cmp_ge_u32 s{sNext}, {P.TEND}")
        e(f"s_cselect_b32 s{sEp}, 0x1000, s{sEp}")
        e(f"s_cbranch_scc1 IS_TOV{t}")
        e(f"s_sub_u32 s{sT0}, s{sQT}, s{sQH}")
        e(f"s_cmp_ge_u32 s{sT0}, {P.CAP}")
        e(f"s_cbranch_scc1 IS_VG{t}")
    else:
        epoch_of_next()
        e(f"s_cmp_lg_u32 s{sT0}, s{sEp}")
        e(f"s_mov_b32 s{sEp}, s{sT0}")
        e(f"s_cbranch_scc1 IS_TOV{t}")
        e(f"s_sub_u32 s{sT0}, s{sQT}, s{sQH}")
        e(f"s_cmp_ge_u32 s{sT0}, {P.CAP}")
        e(f"s_cbranch_scc1 IS_TOV{t}")
    lab(f"IS_K{t}")
    e(f"s_lshl_b32 s{sNO}, s{sNext}, 12")
    e(f"s_xor_b32 s{sNO}, s{sNO}, s{sRot}")
    e(f"s_and_b32 s{sNS}, s{sQT}, 63")
    e(f"s_mov_b32 m0, s{sNS}")
    e(f"s_add_u32 s{sQT}, s{sQT}, 1")
    e(f"s_mov_b32 s{sNT}, 1")
    e(f"v_writelane_b32 v{vRing}, s{sNO}, m0")
    request_next(t)
    e(f"s_branch IS_D{t}")
    lab(f"IS_TOV{t}")
    e(f"s_mov_b32 s{sMode}, 1")
    lab(f"IS_V{t}")
    e(f"s_cmp_lg_u32 s{sQH}, s{sQT}")
    e(f"s_cbranch_scc1 IS_VG{t}")
    e(f"s_mov_b32 s{sMode}, 0")
    if useclk: resolve_nowait(f"b{t}")
    else: resolve_next(f"b{t}")
    e(f"s_cmp_lt_u32 s{sNext}, 2048")
    e(f"s_cbranch_scc1 IS_K{t}")
    e(f"s_mov_b32 s{sMode}, 1")
    e(f"s_mov_b32 s{sNT}, 0")
    e(f"s_mov_b32 s{sNO}, {hex(OOB)}")
    e(f"s_branch IS_D{t}")
    lab(f"IS_VG{t}")
    e(f"s_and_b32 s{sNS}, s{sQH}, 63")
    e(f"v_readlane_b32 s{sNO}, v{vRing}, s{sNS}")
    e(f"s_add_u32 s{sQH}, s{sQH}, 1")
    e(f"s_mov_b32 s{sNT}, 2")
    nop(3)
    lab(f"IS_D{t}")
def fire(b):
    t = icount[0]; icount[0] += 1
    ib = vBuf + 16 * b
    e(f"s_cmp_eq_u32 s{sNT}, 1")
    e(f"s_cbranch_scc1 FI_K{t}")
    for k in range(4):
        e(f"buffer_load_dwordx4 {vr(ib+4*k,4)}, v{vOffV}, {sr(sV,4)}, s{sNO} offen offset:{1024*k} nt")
    e(f"s_branch FI_D{t}")
    lab(f"FI_K{t}")
    for k in range(4):
        e(f"buffer_load_dwordx4 {vr(ib+4*k,4)}, v{vOffK}, {sr(sK,4)}, s{sNO} offen offset:{1024*k} nt")
    lab(f"FI_D{t}")
    e(f"s_mov_b32 s{sType+b}, s{sNT}")
    e(f"s_mov_b32 s{sSlot+b}, s{sNS}")
def issue(b):
    decide()
    fire(b)
def stream_init():
    e(f"s_mov_b32 s{sQH}, 0")
    e(f"s_mov_b32 s{sQT}, 0")
    e(f"s_mov_b32 s{sMode}, 0")
    e(f"s_mov_b32 s{sEp}, 0")
    e(f"s_mov_b32 s{sNext}, s{sUw}")
    e(f"s_mov_b32 s{sPend}, 0")
    e(f"s_mov_b32 s{sExtra}, 0")
    e(f"s_mov_b32 s{sNeed}, 0")

def A_slot(b):
    stat_off(b)
    e(f"s_add_u32 s{sStat}, s{sStat}, 0x20000")
    A_issueK(b)
    A_issueV(b)
def read_flag():
    e(f"v_mov_b32 v{vT}, 0")
    e(f"ds_read_b32 v{vT+1}, v{vT} offset:{LDS_FLAG}")
    e("s_waitcnt lgkmcnt(0)")
    e(f"v_readfirstlane_b32 s{sFlag}, v{vT+1}")

cm("x (ushort) + 4 wq loads per wave, issued before anything else")
srd(sW, pAx, 1024)
e(f"v_lshrrev_b32 v{vT}, 2, v{vN}")
e(f"v_lshlrev_b32 v{vT}, 3, v{vT}")
e(f"v_lshl_or_b32 v{vT}, v{vG}, 1, v{vT}")
e(f"s_lshl_b32 s{sT0}, s{sS}, 7")
e(f"s_lshl_b32 s{sT1}, s{sWave}, 5")
e(f"s_add_u32 s{sT0}, s{sT0}, s{sT1}")
e(f"buffer_load_ushort v{vZ}, v{vT}, {sr(sW,4)}, s{sT0} offen")
e(f"v_lshlrev_b32 v{vT+1}, 13, v{vG}")
e(f"v_lshl_or_b32 v{vT+1}, v{vN}, 4, v{vT+1}")
srd(sW, pAwq, 512 * 8192)
e(f"s_lshl_b32 s{sT0}, s{sT0}, 12")
e(f"s_lshl_b32 s{sT1}, s{sH}, 8")
e(f"s_add_u32 s{sT0}, s{sT0}, s{sT1}")
wqb = A_vS
for tt in range(4):
    e(f"buffer_load_dwordx4 {vr(wqb+4*tt,4)}, v{vT+1}, {sr(sW,4)}, s{sT0} offen nt")
    if tt < 3:
        e(f"s_add_u32 s{sT0}, s{sT0}, 0x8000")
e(f"s_cmp_lg_u32 s{sWave}, 0")
e("s_cbranch_scc1 A_NONLEADER0")
cm("leader: nonce load, counter init")
e(f"v_mov_b32 v{vT}, 0")
e(f"buffer_load_dword v{vTag}, v{vT}, {sr(sX,4)}, 0 offen sc1")
if P.WARM:
    e(f"buffer_load_dword v{vT+6}, v{vCtr}, {sr(sWS,4)}, 0 offen offset:128 sc1")
e(f"s_cmp_lg_u32 s{sS}, 0")
e("s_cbranch_scc1 A_NOCTR")
e(f"v_mov_b32 v{vT+5}, {CBASE}")
e(f"buffer_store_dword v{vT+5}, v{vCtr}, {sr(sWS,4)}, 0 offen sc1")
lab("A_NOCTR")
e("s_branch A_COMMON0")
lab("A_NONLEADER0")
stream_init()
if P.NX:
    for x in range(P.NX):
        issue(NI + x)
else:
    for b in range(NI):
        issue(b)
e(f"v_mov_b32 v{vT}, 0")
e(f"ds_write_b32 v{vT}, v{vT} offset:{LDS_FLAG}")
lab("A_COMMON0")
lane_consts()
e(f"s_mov_b32 s{sPend}, 0")
e(f"s_mov_b32 s{sFlag}, 0")
e(f"s_cmp_eq_u32 s{sWave}, 0")
e("s_cbranch_scc1 A_LW")
e(f"s_waitcnt vmcnt({4*(P.NX if P.NX else NI)})")
e("s_branch A_QMFMA")
lab("A_LW")
e(f"s_waitcnt vmcnt({2 if P.WARM else 1})")
lab("A_QMFMA")
e(f"v_lshl_or_b32 v{vZ}, v{vZ}, 16, v{vZ}")
nop(2)
a0 = rowsum_mfma(vZ, 0, 0, None, None, None)
a1 = rowsum_mfma(vZ, 1, 1, None, None, None)
e(f"v_mfma_f32_16x16x32_bf16 {vr(A_vO,4)}, {vr(a0,4)}, {vr(wqb,4)}, 0")
rowsum_mfma(vZ, 2, 0, None, None, None)
e(f"v_mfma_f32_16x16x32_bf16 {vr(A_vO,4)}, {vr(a1,4)}, {vr(wqb+4,4)}, {vr(A_vO,4)}")
rowsum_mfma(vZ, 3, 1, None, None, None)
e(f"v_mfma_f32_16x16x32_bf16 {vr(A_vO,4)}, {vr(a0,4)}, {vr(wqb+8,4)}, {vr(A_vO,4)}")
nop(1)
e(f"v_mfma_f32_16x16x32_bf16 {vr(A_vO,4)}, {vr(a1,4)}, {vr(wqb+12,4)}, {vr(A_vO,4)}")
e(f"v_lshlrev_b32 v{vT}, 5, v{vN}")
e(f"v_lshl_or_b32 v{vT}, v{vG}, 4, v{vT}")
e(f"s_lshl_b32 s{sT0}, s{sWave}, 9")
e(f"v_add_u32 v{vT+1}, s{sT0}, v{vT}")
e(f"s_cmp_eq_u32 s{sWave}, 0")
e("s_cbranch_scc1 A_LEADER1")
nop(3)
e("s_mov_b32 exec_hi, 0")
e(f"ds_write_b128 v{vT+1}, {vr(A_vO,4)} offset:{LDS_O}")
e("s_mov_b64 exec, -1")
e("s_waitcnt lgkmcnt(0)")
e("s_barrier")
e("s_branch A_PACE")
lab("A_LEADER1")
e("s_barrier")
for w in range(1, 4):
    e(f"ds_read_b128 {vr(wqb+4*w,4)}, v{vT} offset:{LDS_O+512*w}")
stamp(3)
get_nonce("A")
e("s_waitcnt lgkmcnt(0)")
for w in range(1, 4):
    for i in range(4):
        e(f"v_add_f32 v{A_vO+i}, v{A_vO+i}, v{wqb+4*w+i}")
e(f"v_lshlrev_b32 v{vT}, 6, v{vN}")
e(f"v_lshl_or_b32 v{vT}, v{vG}, 5, v{vT}")
e(f"v_mov_b32 v{vT+1}, {hex(OOB)}")
e(f"v_cmp_gt_u32 vcc, 32, v{vLane}")
e(f"s_lshl_b32 s{sT0}, s{sId}, 10")
e(f"s_add_u32 s{sT0}, s{sT0}, {hex(WS_QA)}")
e(f"v_cndmask_b32 v{vT}, v{vT+1}, v{vT}, vcc")
b0 = vBuf
for i in range(4):
    e(f"v_mov_b32 v{b0+2*i}, v{A_vO+i}")
    e(f"v_mov_b32 v{b0+2*i+1}, s{sNonce}")
e(f"buffer_store_dwordx4 {vr(b0,4)}, v{vT}, {sr(sWS,4)}, s{sT0} offen sc1")
e(f"buffer_store_dwordx4 {vr(b0+4,4)}, v{vT}, {sr(sWS,4)}, s{sT0} offen offset:16 sc1")
e(f"v_and_b32 v{vT}, 1, v{vG}")
e(f"v_lshlrev_b32 v{vT}, 5, v{vT}")
e(f"v_lshl_or_b32 v{vT}, v{vN}, 6, v{vT}")
e(f"v_lshrrev_b32 v{vT+1}, 5, v{vLane}")
e(f"v_lshl_or_b32 v{vT}, v{vT+1}, 12, v{vT}")
e(f"s_lshl_b32 s{sT0}, s{sH}, 13")
e(f"s_add_u32 s{sT0}, s{sT0}, {hex(WS_QA)}")
g0 = vBuf + 8
lds_ = []
for k in range(4):
    lds_.append((f"buffer_load_dwordx4 {vr(g0+8*k,4)}, v{vT}, {sr(sWS,4)}, s{sT0} offen offset:{1024*k} sc1", [g0+8*k+1, g0+8*k+3], None))
    lds_.append((f"buffer_load_dwordx4 {vr(g0+8*k+4,4)}, v{vT}, {sr(sWS,4)}, s{sT0} offen offset:{1024*k+16} sc1", [g0+8*k+5, g0+8*k+7], None))
masked_poll("A_Q", lds_, P.SLEEPQ)
stamp(5)
for i in range(4):
    e(f"v_add_f32 v{A_vO+i}, v{g0+2*i}, v{g0+8+2*i}")
    e(f"v_add_f32 v{A_vO+i}, v{A_vO+i}, v{g0+16+2*i}")
    e(f"v_add_f32 v{A_vO+i}, v{A_vO+i}, v{g0+24+2*i}")
stream_init()
for b in range(NI):
    issue(b)
for i in range(4):
    e(f"v_mov_b32 v{A_vS+i}, v{A_vO+i}")
nop(2)
for i in range(4):
    e(f"v_permlane32_swap_b32 v{A_vS+i}, v{A_vO+i}")
nop(1)
for i in range(4):
    e(f"v_add_f32 v{A_vO+i}, v{A_vS+i}, v{A_vO+i}")
e(f"v_cvt_pk_bf16_f32 v{A_vS}, v{A_vO}, v{A_vO+1}")
e(f"v_cvt_pk_bf16_f32 v{A_vS+1}, v{A_vO+2}, v{A_vO+3}")
e(f"v_and_b32 v{vT}, 1, v{vG}")
e(f"v_lshlrev_b32 v{vT}, 3, v{vT}")
e(f"v_lshl_or_b32 v{vT}, v{vN}, 4, v{vT}")
e(f"ds_write_b64 v{vT}, {vr(A_vS,2)} offset:{LDS_Q}")
e(f"v_mov_b32 v{vT}, 0")
e(f"v_mov_b32 v{vT+1}, s{sNonce}")
e("s_waitcnt lgkmcnt(0)")
e(f"ds_write_b32 v{vT}, v{vT+1} offset:{LDS_FLAG}")
e(f"s_mov_b32 s{sFlag}, s{sNonce}")
if P.WOEARLY == 1:
    A_wo_loads()
    e("s_waitcnt vmcnt(0)")
e("s_branch A_QGO")
lab("A_PACE")
if P.NX:
    e("s_waitcnt vmcnt(0)")
    for b in range(NI):
        issue(b)
lab("A_QSPIN")
e(f"s_cmp_lg_u32 s{sFlag}, 0")
e("s_cbranch_scc1 A_QGO")
read_flag()
e(f"s_add_u32 s{sCnt}, s{sCnt}, 1")
e(f"s_cmp_gt_u32 s{sCnt}, {hex(0x4000000)}")
e("s_cbranch_scc1 A_QGO")
e("s_branch A_QSPIN")
lab("A_QGO")
stampw(4)
e(f"s_mov_b32 s{sCnt}, 0")
e(f"v_and_b32 v{vT}, 3, v{vN}")
e(f"v_lshlrev_b32 v{vT}, 4, v{vT}")
e(f"v_lshl_or_b32 v{vT}, v{vG}, 6, v{vT}")
e(f"ds_read_b128 {vr(A_vS,4)}, v{vT} offset:{LDS_Q}")
e(f"v_lshrrev_b32 v{vT+1}, 2, v{vN}")
for i in range(4):
    e(f"v_mov_b32 v{A_vO+i}, 0")
e("s_waitcnt lgkmcnt(0)")
for t in range(4):
    e(f"v_cmp_eq_u32 vcc, {t}, v{vT+1}")
    nop(2)
    for i in range(4):
        e(f"v_cndmask_b32 v{A_vQ+4*t+i}, 0, v{A_vS+i}, vcc")
nop(2)

e(f"v_lshrrev_b32 v{vLS}, 2, v{vLane}")
e(f"v_lshlrev_b32 v{vLS}, 2, v{vLS}")
e(f"s_lshl_b32 s{sT0}, s{sWave}, 12")
e(f"v_add_u32 v{vLS}, s{sT0}, v{vLS}")
if P.CLK:
    e(f"s_memrealtime s[{sClk}:{sClk+1}]")
    e(f"s_mov_b32 s{sEl}, 0")
inloop[0] = True
rare = []
def k_scores(tagb, ret):
    sc = vT
    e(f"v_mov_b32_dpp v{sc}, v{A_vS} quad_perm:[0,0,0,0] {DPPM}")
    for i in range(1, 4):
        e(f"v_add_f32_dpp v{sc}, v{A_vS+i}, v{sc} quad_perm:[{i},{i},{i},{i}] {DPPM}")
    e(f"v_cvt_pk_bf16_f32 v{sc}, v{sc}, v{sc}")
    e(f"v_and_b32 v{sc}, 0xffff0000, v{sc}")
    e(f"v_mul_f32 v{sc}, s{sScale}, v{sc}")
    e(f"v_cvt_pk_bf16_f32 v{sc}, v{sc}, v{sc}")
    e(f"v_and_b32 v{sc}, 0xffff0000, v{sc}")
    e(f"ds_write_b32 v{sc+6}, v{sc} offset:{LDS_S}")
    e(f"v_cmp_gt_f32 vcc, v{sc}, v{vM}")
    e(f"s_cbranch_vccnz A_RARE{tagb}")
if P.NX:
    assert P.TEND >= 256 and J0 >= P.NX + NI + 1 and NI + P.NX <= 4
    e(f"s_cmp_eq_u32 s{sWave}, 0")
    e("s_cbranch_scc1 A_LOOP")
    for x in range(P.NX):
        ib = vBuf + 16 * (NI + x)
        e(f"s_lshl_b32 s{sT0}, s{sSlot+NI+x}, 6")
        e(f"v_add_u32 v{vT+6}, s{sT0}, v{vLS}")
        for t in range(4):
            c = "0" if t == 0 else vr(A_vS, 4)
            e(f"v_mfma_f32_16x16x32_bf16 {vr(A_vS,4)}, {vr(ib+4*t,4)}, {vr(A_vQ+4*t,4)}, {c}")
        nop(8)
        k_scores(f"X{x}", None)
        lab(f"A_NEXTX{x}")
        rare.append(f"X{x}")
lab("A_LOOP")
for b in range(NI):
    ib = vBuf + 16 * b
    sc = vT
    cm(f"--- item body {b}")
    e(f"s_cmp_eq_u32 s{sType+b}, 0")
    e("s_cbranch_scc1 A_EXIT")
    e(f"s_lshl_b32 s{sT0}, s{sSlot+b}, 6")
    e(f"v_add_u32 v{sc+6}, s{sT0}, v{vLS}")
    e(f"s_cmp_eq_u32 s{sType+b}, 2")
    e(f"s_cbranch_scc1 A_PV{b}")
    decide()
    e(f"s_waitcnt vmcnt({4*(NI-1)})")
    for t in range(4):
        c = "0" if t == 0 else vr(A_vS, 4)
        e(f"v_mfma_f32_16x16x32_bf16 {vr(A_vS,4)}, {vr(ib+4*t,4)}, {vr(A_vQ+4*t,4)}, {c}")
    fire(b)
    nop(1)
    e(f"v_mov_b32_dpp v{sc}, v{A_vS} quad_perm:[0,0,0,0] {DPPM}")
    for i in range(1, 4):
        e(f"v_add_f32_dpp v{sc}, v{A_vS+i}, v{sc} quad_perm:[{i},{i},{i},{i}] {DPPM}")
    if P.MIMIC:
        e(f"v_cvt_pk_bf16_f32 v{sc}, v{sc}, v{sc}")
        e(f"v_and_b32 v{sc}, 0xffff0000, v{sc}")
        e(f"v_mul_f32 v{sc}, s{sScale}, v{sc}")
        e(f"v_cvt_pk_bf16_f32 v{sc}, v{sc}, v{sc}")
        e(f"v_and_b32 v{sc}, 0xffff0000, v{sc}")
    else:
        e(f"v_mul_f32 v{sc}, s{sScale}, v{sc}")
    e(f"ds_write_b32 v{sc+6}, v{sc} offset:{LDS_S}")
    e(f"v_cmp_gt_f32 vcc, v{sc}, v{vM}")
    e(f"s_cbranch_vccnz A_RARE{b}")
    e(f"s_branch A_NEXT{b}")
    lab(f"A_PV{b}")
    e(f"ds_read_b32 v{sc}, v{sc+6} offset:{LDS_S}")
    e("s_waitcnt lgkmcnt(0)")
    decide(True)
    e(f"v_fma_f32 v{sc+1}, v{sc}, s{sLog2e}, -v{vML}")
    e(f"v_exp_f32 v{sc+1}, v{sc+1}")
    nop(1)
    e(f"v_cvt_pk_bf16_f32 v{sc+2}, v{sc+1}, v{sc+1}")
    e(f"v_add_f32 v{vL}, v{vL}, v{sc+1}")
    nop(1)
    pp = sc + 2
    a0 = rowsum_mfma(pp, 0, 0, None, None, None)
    a1 = rowsum_mfma(pp, 1, 1, None, None, None)
    e(f"s_waitcnt vmcnt({4*(NI-1)})")
    e(f"v_mfma_f32_16x16x32_bf16 {vr(A_vO,4)}, {vr(a0,4)}, {vr(ib,4)}, {vr(A_vO,4)}")
    rowsum_mfma(pp, 2, 0, None, None, None)
    e(f"v_mfma_f32_16x16x32_bf16 {vr(A_vO,4)}, {vr(a1,4)}, {vr(ib+4,4)}, {vr(A_vO,4)}")
    rowsum_mfma(pp, 3, 1, None, None, None)
    e(f"v_mfma_f32_16x16x32_bf16 {vr(A_vO,4)}, {vr(a0,4)}, {vr(ib+8,4)}, {vr(A_vO,4)}")
    nop(1)
    e(f"v_mfma_f32_16x16x32_bf16 {vr(A_vO,4)}, {vr(a1,4)}, {vr(ib+12,4)}, {vr(A_vO,4)}")
    fire(b)
    lab(f"A_NEXT{b}")
    rare.append(b)
e("s_branch A_LOOP")
for b in rare:
    sc = vT
    lab(f"A_RARE{b}")
    x = sc + 3
    e(f"v_mov_b32 v{x}, v{sc}")
    ror_reduce("v_max_f32", x, [4, 8])
    allreduce_rows("v_max_f32", x, sc + 4, sc + 5)
    e(f"v_mul_f32 v{sc+4}, s{sLog2e}, v{x}")
    e(f"v_sub_f32 v{sc+5}, v{vML}, v{sc+4}")
    e(f"v_exp_f32 v{sc+5}, v{sc+5}")
    e(f"v_mov_b32 v{vM}, v{x}")
    e(f"v_mov_b32 v{vML}, v{sc+4}")
    nop(8)
    e(f"v_mul_f32 v{vL}, v{vL}, v{sc+5}")
    for i in range(4):
        e(f"v_mul_f32 v{A_vO+i}, v{A_vO+i}, v{sc+5}")
    nop(2)
    e(f"s_branch A_NEXT{b}")

lab("A_EXIT")
e("s_waitcnt vmcnt(0) lgkmcnt(0)")
e(f"s_mov_b32 s{sCnt}, 0")
stamp(6)
if not P.WOEARLY:
    e(f"s_cmp_lg_u32 s{sWave}, 0")
    e("s_cbranch_scc1 A_NOWO")
    A_wo_loads()
    lab("A_NOWO")
ror_reduce("v_add_f32", vL, [4, 8])
allreduce_rows("v_add_f32", vL, vT, vT + 1)
e(f"v_lshlrev_b32 v{vT}, 5, v{vN}")
e(f"v_lshl_or_b32 v{vT}, v{vG}, 4, v{vT}")
e(f"s_lshl_b32 s{sT0}, s{sWave}, 9")
e(f"v_add_u32 v{vT}, s{sT0}, v{vT}")
e(f"s_lshl_b32 s{sT0}, s{sWave}, 3")
e(f"v_mov_b32 v{vT+1}, s{sT0}")
e("s_mov_b32 exec_hi, 0")
e(f"ds_write_b128 v{vT}, {vr(A_vO,4)} offset:{LDS_O}")
e("s_mov_b64 exec, -1")
assert (vT + 3) % 2 == 0
e(f"v_mov_b32 v{vT+3}, v{vML}")
e(f"v_mov_b32 v{vT+4}, v{vL}")
e(f"ds_write_b64 v{vT+1}, {vr(vT+3,2)} offset:{LDS_ML}")
e("s_waitcnt lgkmcnt(0)")
e("s_barrier")
if P.STAMP == 2:
    e(f"s_cmp_lg_u32 s{sWave}, 1")
    e("s_cbranch_scc1 A_NS")
    stamp_store()
    lab("A_NS")
e(f"s_cmp_lg_u32 s{sWave}, 0")
e("s_cbranch_scc1 END")
cm("leader: combine 4 waves")
stamp(1)
c0 = A_vS
e(f"v_mov_b32 v{vT}, 0")
e(f"ds_read_b128 {vr(c0,4)}, v{vT} offset:{LDS_ML}")
e(f"ds_read_b128 {vr(c0+4,4)}, v{vT} offset:{LDS_ML+16}")
e(f"v_lshlrev_b32 v{vT+1}, 3, v{vLane}")
for w in range(4):
    e(f"ds_read_b64 {vr(c0+8+2*w,2)}, v{vT+1} offset:{LDS_O+512*w}")
e("s_waitcnt lgkmcnt(0)")
e(f"v_max3_f32 v{vML}, v{c0}, v{c0+2}, v{c0+4}")
e(f"v_max_f32 v{vML}, v{vML}, v{c0+6}")
for w in range(4):
    e(f"v_sub_f32 v{c0+2*w}, v{c0+2*w}, v{vML}")
    e(f"v_exp_f32 v{c0+2*w}, v{c0+2*w}")
nop(1)
pb = c0 + 16
e(f"v_mul_f32 v{vL}, v{c0}, v{c0+1}")
e(f"v_mul_f32 v{pb}, v{c0}, v{c0+8}")
e(f"v_mul_f32 v{pb+2}, v{c0}, v{c0+9}")
for w in range(1, 4):
    e(f"v_fmac_f32 v{vL}, v{c0+2*w}, v{c0+2*w+1}")
    e(f"v_fmac_f32 v{pb}, v{c0+2*w}, v{c0+8+2*w}")
    e(f"v_fmac_f32 v{pb+2}, v{c0+2*w}, v{c0+9+2*w}")
e(f"v_mov_b32 v{pb+1}, s{sNonce}")
e(f"v_mov_b32 v{pb+3}, s{sNonce}")
e(f"v_mov_b32 v{pb+4}, v{vML}")
e(f"v_mov_b32 v{pb+5}, s{sNonce}")
e(f"v_mov_b32 v{pb+6}, v{vL}")
e(f"v_mov_b32 v{pb+7}, s{sNonce}")
e(f"s_lshl_b32 s{sT0}, s{sId}, 11")
e(f"s_add_u32 s{sT0}, s{sT0}, {hex(WS_PA)}")
e(f"v_mov_b32 v{vT+3}, {hex(OOB)}")
e(f"v_cmp_eq_u32 vcc, 0, v{vLane}")
e(f"buffer_store_dwordx4 {vr(pb,4)}, v{vOffV}, {sr(sWS,4)}, s{sT0} offen sc1")
nop(1)
e(f"v_cndmask_b32 v{vT+2}, v{vT+3}, 0, vcc")
e(f"buffer_store_dwordx4 {vr(pb+4,4)}, v{vT+2}, {sr(sWS,4)}, s{sT0} offen offset:1024 sc1")
stamp(2)
go = 22
gm = 54
e(f"s_lshl_b32 s{sT0}, s{sH}, 14")
e(f"s_add_u32 s{sT0}, s{sT0}, {hex(WS_PA)}")
e(f"s_add_u32 s{sT1}, s{sT0}, 8192")
e(f"v_and_b32 v{vT}, 7, v{vLane}")
e(f"v_lshlrev_b32 v{vT}, 11, v{vT}")
nop(2)
e(f"v_add_u32 v{vT+1}, 4096, v{vOffV}")
lds_ = []
for p in range(8):
    so = sT0 if p < 4 else sT1
    vo = vOffV if (p % 4) < 2 else vT + 1
    lds_.append((f"buffer_load_dwordx4 {vr(go+4*p,4)}, v{vo}, {sr(sWS,4)}, s{so} offen offset:{2048*(p%2)} sc1", [go+4*p+1, go+4*p+3], None))
lds_.append((f"buffer_load_dwordx4 {vr(gm,4)}, v{vT}, {sr(sWS,4)}, s{sT0} offen offset:1024 sc1", [gm+1, gm+3], None))
selE, selO, vLw, vLr, vYo = vMask, 58, 62, 63, vM
def stage2_prep():
    e(f"v_and_b32 v{vT+2}, 1, v{vN}")
    e(f"v_cmp_eq_u32 vcc, 1, v{vT+2}")
    e(f"v_mov_b32 v{vT+3}, 0x0c0c0100")
    e(f"v_mov_b32 v{vT+4}, 0x01000c0c")
    e(f"v_cndmask_b32 v{vT+3}, v{vT+3}, v{vT+4}, vcc")
    e(f"v_mov_b32 v{vT+4}, 0x0c0c0302")
    e(f"v_mov_b32 v{vT+5}, 0x03020c0c")
    e(f"v_cndmask_b32 v{vT+4}, v{vT+4}, v{vT+5}, vcc")
    e(f"v_mov_b32 v{vT+5}, 0x0c0c0c0c")
    e(f"v_bfe_u32 v{vT+2}, v{vN}, 1, 2")
    for i in range(4):
        e(f"v_cmp_eq_u32 vcc, {i}, v{vT+2}")
        nop(2)
        e(f"v_cndmask_b32 v{selE+i}, v{vT+5}, v{vT+3}, vcc")
        e(f"v_cndmask_b32 v{selO+i}, v{vT+5}, v{vT+4}, vcc")
    e(f"v_lshlrev_b32 v{vLw}, 2, v{vLane}")
    e(f"v_lshrrev_b32 v{vT+2}, 3, v{vN}")
    e(f"v_lshl_or_b32 v{vLr}, v{vG}, 1, v{vT+2}")
    e(f"v_lshlrev_b32 v{vLr}, 5, v{vLr}")
    e(f"v_and_b32 v{vYo}, 7, v{vN}")
    e(f"v_lshlrev_b32 v{vYo}, 7, v{vYo}")
    e(f"v_and_b32 v{vT+3}, 1, v{vG}")
    e(f"v_lshl_or_b32 v{vYo}, v{vT+3}, 6, v{vYo}")
    e(f"v_lshl_or_b32 v{vYo}, v{vT+2}, 4, v{vYo}")
    e(f"v_lshrrev_b32 v{vT+3}, 1, v{vG}")
    e(f"v_cmp_eq_u32 vcc, v{vT+2}, v{vT+3}")
    e(f"v_mov_b32 v{vT+3}, {hex(OOB)}")
    e(f"s_lshl_b32 s72, s{sId}, 10")
    e(f"s_add_u32 s72, s72, {hex(WS_YA)}")
    e(f"v_cndmask_b32 v{vYo}, v{vT+3}, v{vYo}, vcc")
masked_poll("A_P", lds_, P.SLEEPP, stage2_prep)
stamp(7)
e(f"v_max_f32_dpp v{vT+2}, v{gm}, v{gm} row_ror:1 {DPPM}")
ror_reduce("v_max_f32", vT + 2, [2, 4])
e(f"v_sub_f32 v{vT+3}, v{gm}, v{vT+2}")
e(f"v_exp_f32 v{vT+3}, v{vT+3}")
e(f"v_mov_b32 v{vT+5}, 0")
e(f"v_mul_f32 v{vT+4}, v{vT+3}, v{gm+2}")
e(f"v_mov_b32 v{vT+6}, 0")
rr = [1, 2, 4]
for p in range(8):
    e(f"v_fmac_f32_dpp v{vT+5}, v{vT+3}, v{go+4*p} row_newbcast:{p} {DPPM}")
    e(f"v_fmac_f32_dpp v{vT+6}, v{vT+3}, v{go+4*p+2} row_newbcast:{p} {DPPM}")
    if p < 3:
        e(f"v_add_f32_dpp v{vT+4}, v{vT+4}, v{vT+4} row_ror:{rr[p]} {DPPM}")
    if p == 3:
        e(f"v_rcp_f32 v{vT+4}, v{vT+4}")
e(f"v_mul_f32 v{vT+5}, v{vT+5}, v{vT+4}")
e(f"v_mul_f32 v{vT+6}, v{vT+6}, v{vT+4}")
e(f"v_cvt_pk_bf16_f32 v{vT+5}, v{vT+5}, v{vT+6}")
e(f"ds_write_b32 v{vLw}, v{vT+5} offset:{LDS_OB}")
od = 34
e(f"ds_read_b128 {vr(od,4)}, v{vLr} offset:{LDS_OB}")
e(f"ds_read_b128 {vr(od+4,4)}, v{vLr} offset:{LDS_OB+16}")
yb = 42
for i in range(4):
    e(f"v_mov_b32 v{yb+2*i+1}, s{sNonce}")
e("s_waitcnt lgkmcnt(0)")
yacc = 54
def abuild(t):
    a = vAop + 4 * (t & 1)
    sel = selO if t & 1 else selE
    for i in range(4):
        e(f"v_perm_b32 v{a+i}, v{od+t//2}, v{od+t//2}, v{sel+i}")
abuild(0)
for t in range(16):
    if t < 15: abuild(t + 1)
    else: nop(2)
    a = vAop + 4 * (t & 1)
    c = "0" if t == 0 else vr(yacc, 4)
    e(f"v_mfma_f32_16x16x32_bf16 {vr(yacc,4)}, {vr(a,4)}, {vr(vWo+4*t,4)}, {c}")
nop(8)
for i in range(4):
    e(f"v_mov_b32 v{yb+2*i}, v{yacc+i}")
e(f"buffer_store_dwordx4 {vr(yb,4)}, v{vYo}, {sr(sWS,4)}, s72 offen sc1")
e(f"buffer_store_dwordx4 {vr(yb+4,4)}, v{vYo}, {sr(sWS,4)}, s72 offen offset:32 sc1")
stamp(4)
e(f"s_cmp_ge_u32 s{sH}, 4")
e("s_cbranch_scc1 A_FIN")
e(f"v_lshlrev_b32 v{vT}, 13, v{vG}")
e(f"v_lshl_or_b32 v{vT}, v{vN}, 4, v{vT}")
e(f"s_lshl_b32 s{sT0}, s{sS}, 10")
e(f"s_lshl_b32 s{sT1}, s{sH}, 8")
e(f"s_add_u32 s{sT0}, s{sT0}, s{sT1}")
e(f"s_add_u32 s{sT0}, s{sT0}, {hex(WS_YA)}")
gy = vBuf
lds_ = []
for k in range(8):
    lds_.append((f"buffer_load_dwordx4 {vr(gy+4*k,4)}, v{vT}, {sr(sWS,4)}, s{sT1} offen sc1", [gy+4*k+1, gy+4*k+3], f"s_add_u32 s{sT1}, s{sT0}, {hex(k*0x8000)}"))
def stage3_prep():
    e(f"v_mov_b32 v{vT+1}, 0")
    e(f"buffer_load_dword v{vTag}, v{vT+1}, {sr(sX,4)}, 0 offen offset:4 sc1")
    srd(sW, pOut, 2048)
    e(f"v_and_b32 v{vT+1}, 0x31, v{vLane}")
    e(f"v_cmp_eq_u32 vcc, 0, v{vT+1}")
    e(f"v_mov_b32 v{vT+3}, {hex(OOB)}")
    e(f"v_lshlrev_b32 v{vT+6}, 1, v{vLane}")
    e(f"s_lshl_b32 s72, s{sS}, 7")
    e(f"s_lshl_b32 s73, s{sH}, 5")
    e(f"s_add_u32 s72, s72, s73")
    e(f"v_cndmask_b32 v{vT+6}, v{vT+3}, v{vT+6}, vcc")
masked_poll("A_Y", lds_, P.SLEEPY, stage3_prep)
for k in range(1, 8):
    e(f"v_add_f32 v{gy}, v{gy}, v{gy+4*k}")
    e(f"v_add_f32 v{gy+2}, v{gy+2}, v{gy+4*k+2}")
nop(1)
e(f"v_add_f32_dpp v{gy}, v{gy}, v{gy} quad_perm:[1,0,3,2] {DPPM}")
e(f"v_add_f32_dpp v{gy+2}, v{gy+2}, v{gy+2} quad_perm:[1,0,3,2] {DPPM}")
for sw in ("v_permlane16_swap_b32", "v_permlane32_swap_b32"):
    e(f"v_mov_b32 v{vT+2}, v{gy}")
    e(f"v_mov_b32 v{vT+4}, v{gy+2}")
    nop(1)
    e(f"{sw} v{vT+2}, v{gy}")
    e(f"{sw} v{vT+4}, v{gy+2}")
    e(f"v_add_f32 v{gy}, v{vT+2}, v{gy}")
    e(f"v_add_f32 v{gy+2}, v{vT+4}, v{gy+2}")
e(f"v_cvt_pk_bf16_f32 v{gy}, v{gy}, v{gy+2}")
e(f"buffer_store_dword v{gy}, v{vT+6}, {sr(sW,4)}, s72 offen")
cm("every leader has consumed the nonce by now: put d_debug back to zero (one workgroup, only if part B is done)")
e(f"s_cmp_lg_u32 s{sId}, 0")
e("s_cbranch_scc1 A_FIN")
e(f"v_readfirstlane_b32 s{sT0}, v{vTag}")
e(f"s_cmp_lg_u32 s{sT0}, s{sNonce}")
e("s_cbranch_scc1 A_FIN")
e(f"v_mov_b32 v{vT+2}, 0")
e(f"v_lshlrev_b32 v{vT+4}, 2, v{vLane}")
e(f"v_mov_b32 v{vT+3}, {hex(OOB)}")
e(f"v_cmp_gt_u32 vcc, 2, v{vLane}")
nop(2)
e(f"v_cndmask_b32 v{vT+4}, v{vT+3}, v{vT+4}, vcc")
e(f"buffer_store_dword v{vT+2}, v{vT+4}, {sr(sX,4)}, 0 offen sc1")
lab("A_FIN")
if P.STAMP == 1:
    stamp_store()
e("s_branch END")

lab("B_PATH")
if P.NOB:
    e("s_branch END")
if P.BLAST:
    e(f"s_sub_u32 s2, s2, {P.NA}")
NBf = P.NBUFB
lane_consts()
e(f"s_lshr_b32 s{sH}, s2, 2")
e(f"s_and_b32 s{sS}, s2, 3")
e(f"s_lshl_b32 s{sT0}, s{sH}, 23")
e(f"s_lshl_b32 s{sT1}, s{sS}, 18")
e(f"s_add_u32 s{sT0}, s{sT0}, s{sT1}")
e(f"s_add_u32 s{sT0}, s{sT0}, {hex((32768-4096)*256)}")
BLIM = 1024 * 256
srd(sK, pBk, BLIM, sT0)
srd(sV, pBv, BLIM, sT0)
e(f"s_cmp_lg_u32 s{sWave}, 0")
e("s_cbranch_scc1 B_NONONCE")
e(f"v_mov_b32 v{vT}, 0")
e(f"buffer_load_dword v{vTag}, v{vT}, {sr(sX,4)}, 0 offen sc1")
get_nonce("B")
if P.BWAIT:
    cm("B starts its heavy loads only after the A q-exchange of head s2 has been published")
    e(f"s_lshl_b32 s{sT0}, s2, 13")
    e(f"s_add_u32 s{sT0}, s{sT0}, {hex(WS_QA)}")
    e(f"v_and_b32 v{vT}, 7, v{vLane}")
    e(f"v_lshlrev_b32 v{vT}, 10, v{vT}")
    lab("B_WPOLL")
    e(f"buffer_load_dwordx2 {vr(34,2)}, v{vT}, {sr(sWS,4)}, s{sT0} offen sc1")
    e("s_waitcnt vmcnt(0)")
    tag_check([35], vT + 2, vT + 3)
    e("s_cbranch_vccz B_WDONE")
    e(f"s_add_u32 s{sCnt}, s{sCnt}, 1")
    spin_recover()
    e(f"s_cmp_gt_u32 s{sCnt}, {hex(P.SPIN)}")
    e("s_cbranch_scc1 B_WDONE")
    e(f"s_sleep {P.SLEEP*8}")
    e("s_branch B_WPOLL")
    lab("B_WDONE")
lab("B_NONONCE")
e("s_barrier")
srd(sW, pBx, 1024)
e(f"v_lshrrev_b32 v{vT}, 2, v{vN}")
e(f"v_lshlrev_b32 v{vT}, 4, v{vT}")
e(f"v_lshl_or_b32 v{vT}, v{vG}, 6, v{vT}")
e(f"s_lshl_b32 s{sT0}, s{sWave}, 8")
e(f"buffer_load_dwordx4 {vr(34,4)}, v{vT}, {sr(sW,4)}, s{sT0} offen")
nop(1)

def rowsum128(xd, rowstride_log2, label):
    ppb = 38
    first = True
    for half in range(2):
        for Tq in range(4):
            T = half * 4 + Tq
            for tt in range(4):
                idx = Tq * 4 + tt
                e(f"s_add_u32 s{sT1}, s{sT0}, {hex((8*tt+T) << rowstride_log2)}")
                e(f"buffer_load_dwordx4 {vr(vBuf+4*idx,4)}, v{vT+1}, {sr(sW,4)}, s{sT1} offen nt")
        if half == 0:
            yield "loads_issued"
            for T in range(8):
                e(f"v_perm_b32 v{ppb+T}, v{xd+T//2}, v{xd+T//2}, s{sDupHi if T&1 else sDupLo}")
            nop(2)
        for Tq in range(4):
            T = half * 4 + Tq
            for tt in range(4):
                idx = Tq * 4 + tt
                a = rowsum_mfma(ppb + T, tt, idx & 1, None, None, None)
                e(f"s_waitcnt vmcnt({15-idx})")
                nop(1)
                c = "0" if first else vr(B_vO, 4)
                first = False
                e(f"v_mfma_f32_16x16x32_bf16 {vr(B_vO,4)}, {vr(a,4)}, {vr(vBuf+4*idx,4)}, {c}")

srd(sW, pBwq, 512 * 8192)
e(f"v_lshlrev_b32 v{vT+1}, 18, v{vG}")
e(f"v_lshl_or_b32 v{vT+1}, v{vN}, 4, v{vT+1}")
e(f"s_lshl_b32 s{sT0}, s{sWave}, 20")
e(f"s_lshl_b32 s{sT1}, s2, 8")
e(f"s_add_u32 s{sT0}, s{sT0}, s{sT1}")
gen = rowsum128(34, 13, "BQ")
next(gen)
e("s_waitcnt vmcnt(16)")
for _ in gen: pass
e(f"v_lshlrev_b32 v{vT}, 5, v{vN}")
e(f"v_lshl_or_b32 v{vT}, v{vG}, 4, v{vT}")
e(f"s_lshl_b32 s{sT0}, s{sWave}, 9")
e(f"v_add_u32 v{vT}, s{sT0}, v{vT}")
nop(8)
e("s_mov_b32 exec_hi, 0")
e(f"ds_write_b128 v{vT}, {vr(B_vO,4)} offset:{LDS_O}")
e("s_mov_b64 exec, -1")
e("s_waitcnt lgkmcnt(0)")
e("s_barrier")

def B_issueK(b):
    for t in range(4):
        e(f"buffer_load_dwordx4 {vr(vBuf+32*b+4*t,4)}, v{vOffK}, {sr(sK,4)}, s{sOff+b} offen offset:{1024*t} nt")
def B_issueV(b, ts=range(4)):
    for t in ts:
        e(f"buffer_load_dwordx4 {vr(vBuf+32*b+16+4*t,4)}, v{vOffV}, {sr(sV,4)}, s{sOff+b} offen offset:{1024*t} nt")
def B_prefetch():
    e(f"s_lshl_b32 s{sStat}, s{sWave}, 12")
    for b in range(NBf):
        e(f"s_mov_b32 s{sOff+b}, s{sStat}")
        e(f"s_add_u32 s{sStat}, s{sStat}, 0x4000")
        B_issueK(b)
        B_issueV(b)

e(f"s_cmp_lg_u32 s{sWave}, 0")
e("s_cbranch_scc1 B_NONLEADER")
e(f"v_lshlrev_b32 v{vT+1}, 3, v{vLane}")
for w in range(4):
    e(f"ds_read_b64 {vr(34+2*w,2)}, v{vT+1} offset:{LDS_O+512*w}")
e("s_waitcnt lgkmcnt(0)")
for i in range(2):
    e(f"v_add_f32 v{34+i}, v{34+i}, v{36+i}")
    e(f"v_add_f32 v{34+i}, v{34+i}, v{38+i}")
    e(f"v_add_f32 v{34+i}, v{34+i}, v{40+i}")
e(f"v_cvt_pk_bf16_f32 v{34}, v{34}, v{35}")
e(f"v_mov_b32 v{35}, s{sNonce}")
e(f"s_lshl_b32 s{sT0}, s2, 10")
e(f"s_add_u32 s{sT0}, s{sT0}, {hex(WS_QB)}")
e(f"buffer_store_dwordx2 {vr(34,2)}, v{vT+1}, {sr(sWS,4)}, s{sT0} offen sc1")
e(f"s_lshl_b32 s{sT0}, s{sH}, 12")
e(f"s_add_u32 s{sT0}, s{sT0}, {hex(WS_QB)}")
lab("B_QPOLL")
for j in range(4):
    e(f"buffer_load_dwordx2 {vr(36+2*j,2)}, v{vT+1}, {sr(sWS,4)}, s{sT0} offen offset:{1024*j} sc1")
e("s_waitcnt vmcnt(0)")
tag_check([37, 39, 41, 43], vT + 2, vT + 3)
e("s_cbranch_vccz B_QDONE")
e(f"s_add_u32 s{sCnt}, s{sCnt}, 1")
spin_recover()
e(f"s_cmp_gt_u32 s{sCnt}, {hex(P.SPIN)}")
e("s_cbranch_scc1 B_QDONE")
e(f"s_sleep {P.SLEEP*4}")
e("s_branch B_QPOLL")
lab("B_QDONE")
e(f"v_lshlrev_b32 v{vT}, 2, v{vLane}")
for j in range(4):
    e(f"ds_write_b32 v{vT}, v{36+2*j} offset:{LDS_Q+256*j}")
e(f"v_mov_b32 v{vT+2}, 0")
e(f"ds_write_b32 v{vT+2}, v{35} offset:{LDS_NONCE}")
B_prefetch()
e("s_waitcnt lgkmcnt(0)")
e("s_branch B_QBAR")
lab("B_NONLEADER")
B_prefetch()
lab("B_QBAR")
e("s_barrier")
e(f"ds_read_b128 {vr(B_vQ,4)}, v{vOffK} offset:{LDS_Q}")
e(f"v_mov_b32 v{vT+2}, 0")
e(f"ds_read_b32 v{vTag}, v{vT+2} offset:{LDS_NONCE}")
vMa, vMb = 62, 63
e(f"v_and_b32 v{vT}, 1, v{vN}")
e(f"v_cmp_eq_u32 vcc, 1, v{vT}")
e(f"v_mov_b32 v{vT+1}, 0xffff")
e(f"v_mov_b32 v{vT+2}, 0xffff0000")
e(f"v_cndmask_b32 v{vT+1}, v{vT+1}, v{vT+2}, vcc")
e(f"v_and_b32 v{vT}, 2, v{vN}")
e(f"v_cmp_eq_u32 vcc, 0, v{vT}")
nop(2)
e(f"v_cndmask_b32 v{vMa}, 0, v{vT+1}, vcc")
e(f"v_cndmask_b32 v{vMb}, v{vT+1}, 0, vcc")
for i in range(12):
    e(f"v_mov_b32 v{vAop+i}, 0")
for i in range(8):
    e(f"v_mov_b32 v{B_vO+i}, 0")
e("s_waitcnt lgkmcnt(0)")
e(f"v_readfirstlane_b32 s{sNonce}, v{vTag}")
nop(2)
lab("B_LOOP")
rareB = []
for b in range(NBf):
    kb = vBuf + 32 * b
    vb = kb + 16
    cm(f"--- B body {b}")
    e(f"s_cmp_ge_u32 s{sOff+b}, {hex(BLIM)}")
    e("s_cbranch_scc1 B_EXIT")
    e(f"s_waitcnt vmcnt({8*NBf-4})")
    for t in range(4):
        e(f"v_mfma_f32_16x16x32_bf16 {vr(B_vS+4*t,4)}, {vr(kb+4*t,4)}, {vr(B_vQ,4)}, 0")
    e(f"s_mov_b32 s{sOff+b}, s{sStat}")
    e(f"s_add_u32 s{sStat}, s{sStat}, 0x4000")
    B_issueK(b)
    nop(2)
    s = vT
    for t in range(4):
        e(f"v_mov_b32_dpp v{s+t}, v{B_vS+4*t} quad_perm:[0,0,0,0] {DPPM}")
        for i in range(1, 4):
            e(f"v_add_f32_dpp v{s+t}, v{B_vS+4*t+i}, v{s+t} quad_perm:[{i},{i},{i},{i}] {DPPM}")
    for t in range(4):
        if P.MIMIC:
            e(f"v_cvt_pk_bf16_f32 v{s+t}, v{s+t}, v{s+t}")
            e(f"v_and_b32 v{s+t}, 0xffff0000, v{s+t}")
            e(f"v_mul_f32 v{s+t}, s{sScale}, v{s+t}")
            e(f"v_cvt_pk_bf16_f32 v{s+t}, v{s+t}, v{s+t}")
            e(f"v_and_b32 v{s+t}, 0xffff0000, v{s+t}")
        else:
            e(f"v_mul_f32 v{s+t}, s{sScale}, v{s+t}")
    e(f"v_max3_f32 v{s+4}, v{s}, v{s+1}, v{s+2}")
    e(f"v_max_f32 v{s+4}, v{s+4}, v{s+3}")
    e(f"v_cmp_gt_f32 vcc, v{s+4}, v{vM}")
    e(f"s_cbranch_vccnz B_RARE{b}")
    lab(f"B_BACK{b}")
    for t in range(4):
        e(f"v_fma_f32 v{s+t}, v{s+t}, s{sLog2e}, -v{vML}")
        e(f"v_exp_f32 v{s+t}, v{s+t}")
    nop(1)
    for t in range(4):
        e(f"v_add_f32 v{vL}, v{vL}, v{s+t}")
        e(f"v_cvt_pk_bf16_f32 v{s+t}, v{s+t}, v{s+t}")
    e(f"s_waitcnt vmcnt({8*NBf-4})")
    for t in range(4):
        sx = vAop + 6 * (t & 1)
        e(f"v_and_b32 v{sx+2}, v{s+t}, v{vMa}")
        e(f"v_and_b32 v{sx+3}, v{s+t}, v{vMb}")
        nop(2)
        e(f"v_mfma_f32_16x16x32_bf16 {vr(B_vO,4)}, {vr(sx+2,4)}, {vr(vb+4*t,4)}, {vr(B_vO,4)}")
        e(f"v_mfma_f32_16x16x32_bf16 {vr(B_vO+4,4)}, {vr(sx,4)}, {vr(vb+4*t,4)}, {vr(B_vO+4,4)}")
    B_issueV(b)
    rareB.append(b)
e("s_branch B_LOOP")
for b in rareB:
    s = vT
    lab(f"B_RARE{b}")
    x = s + 4
    allreduce_rows("v_max_f32", x, s + 5, s + 6)
    e(f"v_max_f32 v{x}, v{x}, v{vM}")
    e(f"v_mul_f32 v{s+5}, s{sLog2e}, v{x}")
    e(f"v_sub_f32 v{s+6}, v{vML}, v{s+5}")
    e(f"v_exp_f32 v{s+6}, v{s+6}")
    e(f"v_mov_b32 v{vM}, v{x}")
    e(f"v_mov_b32 v{vML}, v{s+5}")
    e(f"v_lshlrev_b32 v{s+5}, 4, v{vG}")
    e(f"ds_bpermute_b32 v{s+4}, v{s+5}, v{s+6}")
    e(f"v_mul_f32 v{vL}, v{vL}, v{s+6}")
    e("s_waitcnt lgkmcnt(0)")
    nop(8)
    for i in range(8):
        e(f"v_mul_f32 v{B_vO+i}, v{B_vO+i}, v{s+4}")
    e(f"s_branch B_BACK{b}")
lab("B_EXIT")
e("s_waitcnt vmcnt(0)")
allreduce_rows("v_add_f32", vL, vT, vT + 1)
e(f"v_lshlrev_b32 v{vT}, 5, v{vN}")
e(f"v_lshl_or_b32 v{vT}, v{vG}, 9, v{vT}")
e(f"s_lshl_b32 s{sT0}, s{sWave}, 11")
e(f"v_add_u32 v{vT}, s{sT0}, v{vT}")
e(f"ds_write_b128 v{vT}, {vr(B_vO,4)} offset:{LDS_O}")
e(f"ds_write_b128 v{vT}, {vr(B_vO+4,4)} offset:{LDS_O+16}")
e(f"v_lshrrev_b32 v{vT+1}, 2, v{vN}")
e(f"v_lshlrev_b32 v{vT+1}, 5, v{vT+1}")
e(f"s_lshl_b32 s{sT0}, s{sWave}, 3")
e(f"v_add_u32 v{vT+1}, s{sT0}, v{vT+1}")
e(f"v_mov_b32 v{vT+3}, v{vML}")
e(f"v_mov_b32 v{vT+4}, v{vL}")
e(f"ds_write_b64 v{vT+1}, {vr(vT+3,2)} offset:{LDS_ML}")
e("s_waitcnt lgkmcnt(0)")
e("s_barrier")
cm("wave j combines head j")
c0 = 34
e(f"s_lshl_b32 s{sT0}, s{sWave}, 5")
e(f"v_mov_b32 v{vT}, s{sT0}")
e(f"ds_read_b128 {vr(c0,4)}, v{vT} offset:{LDS_ML}")
e(f"ds_read_b128 {vr(c0+4,4)}, v{vT} offset:{LDS_ML+16}")
e(f"v_lshlrev_b32 v{vT+1}, 3, v{vLane}")
e(f"s_lshl_b32 s{sT0}, s{sWave}, 9")
e(f"v_add_u32 v{vT+1}, s{sT0}, v{vT+1}")
for w in range(4):
    e(f"ds_read_b64 {vr(c0+8+2*w,2)}, v{vT+1} offset:{LDS_O+2048*w}")
e("s_waitcnt lgkmcnt(0)")
e(f"v_max3_f32 v{vML}, v{c0}, v{c0+2}, v{c0+4}")
e(f"v_max_f32 v{vML}, v{vML}, v{c0+6}")
for w in range(4):
    e(f"v_sub_f32 v{c0+2*w}, v{c0+2*w}, v{vML}")
    e(f"v_exp_f32 v{c0+2*w}, v{c0+2*w}")
nop(1)
pb = c0 + 16
e(f"v_mul_f32 v{vL}, v{c0}, v{c0+1}")
e(f"v_mul_f32 v{pb}, v{c0}, v{c0+8}")
e(f"v_mul_f32 v{pb+2}, v{c0}, v{c0+9}")
for w in range(1, 4):
    e(f"v_fmac_f32 v{vL}, v{c0+2*w}, v{c0+2*w+1}")
    e(f"v_fmac_f32 v{pb}, v{c0+2*w}, v{c0+8+2*w}")
    e(f"v_fmac_f32 v{pb+2}, v{c0+2*w}, v{c0+9+2*w}")
e(f"v_mov_b32 v{pb+1}, s{sNonce}")
e(f"v_mov_b32 v{pb+3}, s{sNonce}")
e(f"v_mov_b32 v{pb+4}, v{vML}")
e(f"v_mov_b32 v{pb+5}, s{sNonce}")
e(f"v_mov_b32 v{pb+6}, v{vL}")
e(f"v_mov_b32 v{pb+7}, s{sNonce}")
e(f"s_lshl_b32 s{sT0}, s{sH}, 2")
e(f"s_add_u32 s{sT0}, s{sT0}, s{sWave}")
e(f"s_lshl_b32 s{sT0}, s{sT0}, 2")
e(f"s_add_u32 s{sT0}, s{sT0}, s{sS}")
e(f"s_lshl_b32 s{sT0}, s{sT0}, 11")
e(f"s_add_u32 s{sT0}, s{sT0}, {hex(WS_PB)}")
e(f"v_mov_b32 v{vT+3}, {hex(OOB)}")
e(f"v_cmp_eq_u32 vcc, 0, v{vLane}")
e(f"buffer_store_dwordx4 {vr(pb,4)}, v{vOffV}, {sr(sWS,4)}, s{sT0} offen sc1")
nop(1)
e(f"v_cndmask_b32 v{vT+2}, v{vT+3}, 0, vcc")
e(f"buffer_store_dwordx4 {vr(pb+4,4)}, v{vT+2}, {sr(sWS,4)}, s{sT0} offen offset:1024 sc1")
e(f"s_cmp_lg_u32 s{sWave}, 0")
e("s_cbranch_scc1 B_OBAR")
go = 22
gm = 38
e(f"s_lshl_b32 s{sT0}, s2, 13")
e(f"s_add_u32 s{sT0}, s{sT0}, {hex(WS_PB)}")
e(f"v_and_b32 v{vT}, 3, v{vLane}")
e(f"v_lshlrev_b32 v{vT}, 11, v{vT}")
e(f"v_add_u32 v{vT+1}, 4096, v{vOffV}")
nop(2)
lab("B_PPOLL")
for p in range(4):
    vo = vOffV if p < 2 else vT + 1
    e(f"buffer_load_dwordx4 {vr(go+4*p,4)}, v{vo}, {sr(sWS,4)}, s{sT0} offen offset:{2048*(p%2)} sc1")
e(f"buffer_load_dwordx4 {vr(gm,4)}, v{vT}, {sr(sWS,4)}, s{sT0} offen offset:1024 sc1")
e("s_waitcnt vmcnt(0)")
tag_check([go + 2 * i + 1 for i in range(8)] + [gm + 1, gm + 3], vT + 2, vT + 3)
e("s_cbranch_vccz B_PDONE")
e(f"s_add_u32 s{sCnt}, s{sCnt}, 1")
spin_recover()
e(f"s_cmp_gt_u32 s{sCnt}, {hex(P.SPIN)}")
e("s_cbranch_scc1 B_PDONE")
e(f"s_sleep {P.SLEEP*4}")
e("s_branch B_PPOLL")
lab("B_PDONE")
e(f"v_mov_b32 v{vT+2}, v{gm}")
ror_reduce("v_max_f32", vT + 2, [1, 2])
e(f"v_sub_f32 v{vT+3}, v{gm}, v{vT+2}")
e(f"v_exp_f32 v{vT+3}, v{vT+3}")
nop(1)
e(f"v_mul_f32 v{vT+4}, v{vT+3}, v{gm+2}")
ror_reduce("v_add_f32", vT + 4, [1, 2])
e(f"v_rcp_f32 v{vT+4}, v{vT+4}")
e(f"v_mov_b32 v{vT+5}, 0")
e(f"v_mov_b32 v{vT+6}, 0")
for p in range(4):
    e(f"v_fmac_f32_dpp v{vT+5}, v{vT+3}, v{go+4*p} row_newbcast:{p} {DPPM}")
    e(f"v_fmac_f32_dpp v{vT+6}, v{vT+3}, v{go+4*p+2} row_newbcast:{p} {DPPM}")
e(f"v_mul_f32 v{vT+5}, v{vT+5}, v{vT+4}")
e(f"v_mul_f32 v{vT+6}, v{vT+6}, v{vT+4}")
e(f"v_cvt_pk_bf16_f32 v{vT+5}, v{vT+5}, v{vT+6}")
e(f"v_lshlrev_b32 v{vT}, 2, v{vLane}")
e(f"ds_write_b32 v{vT}, v{vT+5} offset:{LDS_OB}")
e("s_waitcnt lgkmcnt(0)")
lab("B_OBAR")
e("s_barrier")
e(f"v_lshrrev_b32 v{vT}, 2, v{vN}")
e(f"v_lshlrev_b32 v{vT}, 4, v{vT}")
e(f"v_lshl_or_b32 v{vT}, v{vG}, 6, v{vT}")
e(f"ds_read_b128 {vr(34,4)}, v{vT} offset:{LDS_OB}")
srd(sW, pBwo, 4096 * 1024)
e(f"v_lshlrev_b32 v{vT+1}, 15, v{vG}")
e(f"v_lshl_or_b32 v{vT+1}, v{vN}, 4, v{vT+1}")
e(f"s_lshl_b32 s{sT0}, s2, 17")
e(f"s_lshl_b32 s{sT1}, s{sWave}, 8")
e(f"s_add_u32 s{sT0}, s{sT0}, s{sT1}")
e("s_waitcnt vmcnt(0)")
gen = rowsum128(34, 10, "BW")
next(gen)
e("s_waitcnt lgkmcnt(0)")
for _ in gen: pass
e(f"v_lshlrev_b32 v{vT}, 6, v{vN}")
e(f"v_lshl_or_b32 v{vT}, v{vG}, 5, v{vT}")
e(f"v_mov_b32 v{vT+1}, {hex(OOB)}")
e(f"v_cmp_gt_u32 vcc, 32, v{vLane}")
e(f"s_lshl_b32 s{sT0}, s2, 12")
e(f"s_lshl_b32 s{sT1}, s{sWave}, 10")
e(f"s_add_u32 s{sT0}, s{sT0}, s{sT1}")
e(f"s_add_u32 s{sT0}, s{sT0}, {hex(WS_YB)}")
e(f"v_cndmask_b32 v{vT}, v{vT+1}, v{vT}, vcc")
nop(8)
yb = 34
for i in range(4):
    e(f"v_mov_b32 v{yb+2*i}, v{B_vO+i}")
    e(f"v_mov_b32 v{yb+2*i+1}, s{sNonce}")
e(f"buffer_store_dwordx4 {vr(yb,4)}, v{vT}, {sr(sWS,4)}, s{sT0} offen sc1")
e(f"buffer_store_dwordx4 {vr(yb+4,4)}, v{vT}, {sr(sWS,4)}, s{sT0} offen offset:16 sc1")
e(f"s_cmp_lg_u32 s{sWave}, 0")
e("s_cbranch_scc1 END")
e(f"v_and_b32 v{vT}, 7, v{vLane}")
e(f"v_lshlrev_b32 v{vT}, 4, v{vT}")
e(f"v_lshrrev_b32 v{vT+1}, 3, v{vLane}")
e(f"v_lshl_or_b32 v{vT}, v{vT+1}, 12, v{vT}")
e(f"s_lshl_b32 s{sT0}, s2, 7")
e(f"s_add_u32 s{sT0}, s{sT0}, {hex(WS_YB)}")
gy = 44
lab("B_YPOLL")
e(f"s_mov_b32 s{sT1}, s{sT0}")
for i in range(4):
    e(f"buffer_load_dwordx4 {vr(gy+4*i,4)}, v{vT}, {sr(sWS,4)}, s{sT1} offen sc1")
    if i < 3:
        e(f"s_add_u32 s{sT1}, s{sT1}, 0x8000")
e("s_waitcnt vmcnt(0)")
tag_check([gy + 2 * i + 1 for i in range(8)], vT + 2, vT + 3)
e("s_cbranch_vccz B_YDONE")
e(f"s_add_u32 s{sCnt}, s{sCnt}, 1")
spin_recover()
e(f"s_cmp_gt_u32 s{sCnt}, {hex(P.SPIN)}")
e("s_cbranch_scc1 B_YDONE")
e(f"s_sleep {P.SLEEP*4}")
e("s_branch B_YPOLL")
lab("B_YDONE")
for c in (0, 2):
    e(f"v_add_f32 v{gy+c}, v{gy+c}, v{gy+4+c}")
    e(f"v_add_f32 v{gy+c}, v{gy+c}, v{gy+8+c}")
    e(f"v_add_f32 v{gy+c}, v{gy+c}, v{gy+12+c}")
ror_reduce("v_add_f32", gy, [8])
ror_reduce("v_add_f32", gy + 2, [8])
allreduce_rows("v_add_f32", gy, vT + 2, vT + 3)
allreduce_rows("v_add_f32", gy + 2, vT + 2, vT + 3)
e(f"v_cvt_pk_bf16_f32 v{gy}, v{gy}, v{gy+2}")
srd(sW, pOut, 2048)
e(f"v_mov_b32 v{vT+3}, {hex(OOB)}")
e(f"v_cmp_gt_u32 vcc, 8, v{vLane}")
e(f"v_lshlrev_b32 v{vT+2}, 2, v{vLane}")
e(f"s_lshl_b32 s{sT0}, s2, 5")
e(f"s_add_u32 s{sT0}, s{sT0}, 1024")
e(f"v_cndmask_b32 v{vT+2}, v{vT+3}, v{vT+2}, vcc")
e(f"buffer_store_dword v{gy}, v{vT+2}, {sr(sW,4)}, s{sT0} offen")
e("s_cmp_lg_u32 s2, 0")
e("s_cbranch_scc1 END")
e(f"v_mov_b32 v{vT+3}, s{sNonce}")
e(f"buffer_store_dword v{vT+3}, v{vCtr}, {sr(sX,4)}, 0 offen offset:4 sc1")
lab("END")
e("s_endpgm")

nvgpr = max(vBuf + 32 * max(P.NBUF, P.NBUFB, 2, P.NPRO), vWo + 64)
out += "\n".join(L) + "\n"
out += f""".section .rodata,"a"
.p2align 6
.amdhsa_kernel {KNAME}
  .amdhsa_next_free_vgpr {nvgpr}
  .amdhsa_next_free_sgpr 102
  .amdhsa_accum_offset {nvgpr}
  .amdhsa_group_segment_fixed_size 0
  .amdhsa_kernarg_size 104
  .amdhsa_user_sgpr_count 2
  .amdhsa_user_sgpr_kernarg_segment_ptr 1
  .amdhsa_system_sgpr_workgroup_id_x 1
.end_amdhsa_kernel
"""
open(sys.argv[1], "w").write(out)
print("wrote", sys.argv[1], "lines", len(L), "vgpr", nvgpr)
```

```python
import sys, struct

KNAME = "concat_heads__mha_block_cached__sliding_block_cached__decode_kernel"

class P:
    NBUF = 2
    NBUFB = 2
    J = 54
    NB = 32
    NA = 256
    MIMIC = 1
    STAMP = 0
    SLEEP = 1
    BWAIT = 1
    ROT = 0
    NOB = 0
    NI = 2
    LE = 8
    TEND = 1792
    CAP = 60
    J0 = 6
    EB = 0
    EDGE = 0
    FULLDRAIN = 0
    BDELAY = 0
    ORG = 0
    PMUL = 0
    OFF = 0
    PAIR = 1
    PAIRM = 96
    CLK = 0
    NX = 0
    RMASK = 0x7ff000
    BLAST = 0
    SAT = 1
    CLPOS = 0
    FAKEAT = 0
    LA = 2
    REV = 0
    WARM = 0
    WOEARLY = 0
    NPRO = 1
    SLEEPQ = 1
    SLEEPP = 1
    SLEEPY = 1
    PW = 1
    SPIN = 0x40000

for a in sys.argv[2:]:
    k, v = a.split("=")
    setattr(P, k, v if "_" in v else int(v, 0))

L = []
def e(s): L.append("    " + s)
def lab(s): L.append(s + ":")
def cm(s): L.append("    ; " + s)
def nop(n):
    while n > 0:
        k = min(n, 16)
        e(f"s_nop {k-1}")
        n -= k
def f32(x): return "0x%08x" % struct.unpack("<I", struct.pack("<f", x))[0]
def vr(b, n): return f"v[{b}:{b+n-1}]"
def sr(b, n): return f"s[{b}:{b+n-1}]"
DPPM = "row_mask:0xf bank_mask:0xf"

WS_CTR = 0x0
WS_QA = 0x10000
WS_PA = 0x80000
WS_YA = 0x100000
WS_QB = 0x180000
WS_PB = 0x1A0000
WS_YB = 0x200000
WS_STAMP = 0x300000
WS_SIZE = 0x400000
OOB = 0x40000000
CBASE = 16

sK, sV, sWS, sW, sX = 4, 8, 12, 16, 20
pAx, pAk, pAv, pAwq, pAwo, pBx, pBk, pBv, pBwq, pBwo, pOut, pDbg, pWs = [24 + 2 * i for i in range(13)]
sWave = 50; sH = 51; sS = 52; sT0 = 53; sT1 = 54; sNonce = 55; sJ = 56; sStat = 57
sScale = 58; sLog2e = 59; sOff = 60
sId = 68; sT2 = 69; sTm = 70
sDupLo = 74; sDupHi = 75; sCnt = 76; sMask = 78
sStampA = 80
sFlag = 77
sRot = 3
sCtr = 96
sClaim = 98
sUw = 100

vLane, vOffK, vOffV, vCtr = 0, 1, 2, 3
vN, vG = 4, 5
vMask = 6
vM, vML, vL = 10, 11, 12
vT = 13
vTag = 20
vZ = 21
vAop = 22
vS = 34
vO = 50
vQ = 34 + 4
A_vS, A_vQ, A_vO, A_vClaim = 34, 38, 54, 58
B_vS, B_vQ, B_vO = 34, 50, 54
vBuf = 64

LDS_Q = 0
LDS_NONCE = 1024
LDS_FLAG = 1028
LDS_O = 2048
LDS_ML = 10240
LDS_OB = 10496
LDS_BYTES = 12288 + 16384

def srd(dst, ptr, nrec, add_lo=None):
    if add_lo is None:
        e(f"s_mov_b32 s{dst}, s{ptr}")
        e(f"s_mov_b32 s{dst+1}, s{ptr+1}")
    else:
        e(f"s_add_u32 s{dst}, s{ptr}, s{add_lo}")
        e(f"s_addc_u32 s{dst+1}, s{ptr+1}, 0")
    e(f"s_mov_b32 s{dst+2}, {hex(nrec)}")
    e(f"s_mov_b32 s{dst+3}, 0x00020000")

def stamp(idx):
    if P.STAMP == 1 or (P.STAMP == 2 and idx == 0):
        e(f"s_memrealtime s[{sStampA+2*idx}:{sStampA+2*idx+1}]")

def stamp_store():
    e(f"v_mov_b32 v{vT+3}, {hex(OOB)}")
    e(f"v_cmp_eq_u32 vcc, 0, v{vLane}")
    nop(2)
    e(f"v_cndmask_b32 v{vT+2}, v{vT+3}, 0, vcc")
    e(f"s_memrealtime s[{sTm}:{sTm+1}]")
    e("s_waitcnt lgkmcnt(0)")
    for i in range(8):
        e(f"v_mov_b32 v{34+i}, s{sStampA+2*i}")
    e(f"v_mov_b32 v{42}, s{sTm}")
    e(f"s_getreg_b32 s{sT1}, hwreg(HW_REG_XCC_ID)")
    e(f"v_mov_b32 v{43}, s{sT1}")
    e(f"v_mov_b32 v{44}, s{sJ}")
    e(f"v_mov_b32 v{45}, s{sCnt}")
    e(f"s_lshl_b32 s{sT0}, s2, 6")
    e(f"s_add_u32 s{sT0}, s{sT0}, {hex(WS_STAMP)}")
    e(f"buffer_store_dwordx4 {vr(34,4)}, v{vT+2}, {sr(sWS,4)}, s{sT0} offen")
    e(f"buffer_store_dwordx4 {vr(38,4)}, v{vT+2}, {sr(sWS,4)}, s{sT0} offen offset:16")
    e(f"buffer_store_dwordx4 {vr(42,4)}, v{vT+2}, {sr(sWS,4)}, s{sT0} offen offset:32")

def stampw(idx):
    if P.STAMP == 2:
        e(f"s_memrealtime s[{sStampA+2*idx}:{sStampA+2*idx+1}]")

def allreduce_rows(op, x, a, b):
    e(f"v_mov_b32 v{a}, v{x}")
    e(f"v_mov_b32 v{b}, v{x}")
    nop(2)
    e(f"v_permlane16_swap_b32 v{a}, v{b}")
    nop(1)
    e(f"{op} v{x}, v{a}, v{b}")
    e(f"v_mov_b32 v{a}, v{x}")
    e(f"v_mov_b32 v{b}, v{x}")
    nop(2)
    e(f"v_permlane32_swap_b32 v{a}, v{b}")
    nop(1)
    e(f"{op} v{x}, v{a}, v{b}")

def ror_reduce(op, x, rors):
    for r in rors:
        nop(2)
        e(f"{op}_dpp v{x}, v{x}, v{x} row_ror:{r} {DPPM}")

def tag_check(tags, t0, t1):
    tags = list(tags)
    if len(tags) == 1:
        e(f"v_cmp_ne_u32 vcc, s{sNonce}, v{tags[0]}")
        return
    e(f"v_min_u32 v{t0}, v{tags[0]}, v{tags[1]}")
    e(f"v_max_u32 v{t1}, v{tags[0]}, v{tags[1]}")
    rest = tags[2:]
    while len(rest) >= 2:
        e(f"v_min3_u32 v{t0}, v{t0}, v{rest[0]}, v{rest[1]}")
        e(f"v_max3_u32 v{t1}, v{t1}, v{rest[0]}, v{rest[1]}")
        rest = rest[2:]
    if rest:
        e(f"v_min_u32 v{t0}, v{t0}, v{rest[0]}")
        e(f"v_max_u32 v{t1}, v{t1}, v{rest[0]}")
    e(f"v_cmp_ne_u32 vcc, s{sNonce}, v{t0}")
    e(f"v_cmp_ne_u32 s[{sMask}:{sMask+1}], s{sNonce}, v{t1}")
    e(f"s_or_b64 vcc, vcc, s[{sMask}:{sMask+1}]")

rcount = [0]
def spin_recover():
    k = rcount[0]; rcount[0] += 1
    e(f"s_and_b32 s{sMask}, s{sCnt}, 63")
    e(f"s_cmp_lg_u32 s{sMask}, 63")
    e(f"s_cbranch_scc1 SPINR{k}")
    e("s_waitcnt vmcnt(0)")
    e("buffer_inv sc1")
    e("s_waitcnt vmcnt(0)")
    lab(f"SPINR{k}")

def masked_poll(name, loads, sleep, filler=None):
    for (lt, tags, pre) in loads:
        if pre: e(pre)
        e(lt)
    if filler: filler()
    lab(f"{name}_POLL")
    e("s_waitcnt vmcnt(0)")
    e(f"s_mov_b32 s{sT2}, 0")
    for k, (lt, tags, pre) in enumerate(loads):
        if pre: e(pre)
        e(f"v_cmp_ne_u32 vcc, s{sNonce}, v{tags[0]}")
        for t in tags[1:]:
            e(f"v_cmp_ne_u32 s[{sMask}:{sMask+1}], s{sNonce}, v{t}")
            e(f"s_or_b64 vcc, vcc, s[{sMask}:{sMask+1}]")
        e(f"s_cbranch_vccz {name}_S{k}")
        e("s_mov_b64 exec, vcc")
        e(lt)
        e("s_mov_b64 exec, -1")
        e(f"s_mov_b32 s{sT2}, 1")
        lab(f"{name}_S{k}")
    e(f"s_cmp_eq_u32 s{sT2}, 0")
    e(f"s_cbranch_scc1 {name}_DONE")
    e(f"s_add_u32 s{sCnt}, s{sCnt}, 1")
    spin_recover()
    e(f"s_cmp_gt_u32 s{sCnt}, {hex(P.SPIN)}")
    e(f"s_cbranch_scc1 {name}_DONE")
    if sleep: e(f"s_sleep {sleep}")
    e(f"s_branch {name}_POLL")
    lab(f"{name}_DONE")
    e("s_waitcnt vmcnt(0)")

def get_nonce(tag):
    lab(f"NONCE_{tag}")
    e("s_waitcnt vmcnt(0)")
    e(f"v_readfirstlane_b32 s{sNonce}, v{vTag}")
    e(f"s_cmp_lg_u32 s{sNonce}, 0")
    e(f"s_cbranch_scc1 NONCE_OK_{tag}")
    e(f"s_add_u32 s{sCnt}, s{sCnt}, 1")
    spin_recover()
    e(f"s_cmp_gt_u32 s{sCnt}, {hex(P.SPIN)}")
    e(f"s_cbranch_scc1 NONCE_OK_{tag}")
    e(f"s_sleep {P.SLEEP}")
    e(f"v_mov_b32 v{vT}, 0")
    e(f"buffer_load_dword v{vTag}, v{vT}, {sr(sX,4)}, 0 offen sc1")
    e(f"s_branch NONCE_{tag}")
    lab(f"NONCE_OK_{tag}")

def rowsum_mfma(pp, tt, setidx, breg, acc, first, masks=vMask):
    a = vAop + 4 * setidx
    for i in range(4):
        e(f"v_and_b32_dpp v{a+i}, v{pp}, v{masks+i} row_newbcast:{4*tt} {DPPM}")
    return a

hdr = open("concat_heads__mha_block_cached__sliding_block_cached__decode.s.ref").read().split("; Override launch")[0]
out = hdr
NWG = P.NB + P.NA
out += "; Override launch geometry by editing the next line (default: block=256,\n"
out += f"; @launch grid=({NWG},1,1) block=(256,1,1) lds={LDS_BYTES}\n"
out += """;
;    as {value, tag} granules (tag = per-launch nonce published in d_debug[0]); all hand-offs use sc1 stores/loads.
"""
out += '.amdgcn_target "amdgcn-amd-amdhsa--gfx950"\n.text\n'
out += f".globl {KNAME}\n.p2align 8\n.type {KNAME},@function\n{KNAME}:\n"

e(f"s_cmp_ge_u32 s2, {NWG}")
e("s_cbranch_scc1 END")
e("s_load_dwordx16 s[24:39], s[0:1], 0")
e("s_load_dwordx8 s[40:47], s[0:1], 64")
e("s_load_dwordx2 s[48:49], s[0:1], 96")
stamp(0)
e(f"v_lshrrev_b32 v{vT}, 6, v0")
e(f"v_and_b32 v{vLane}, 63, v0")
e(f"v_readfirstlane_b32 s{sWave}, v{vT}")
e(f"v_and_b32 v{vN}, 15, v{vLane}")
e(f"v_lshrrev_b32 v{vG}, 4, v{vLane}")
e(f"v_lshrrev_b32 v{vT}, 2, v{vN}")
e(f"v_lshlrev_b32 v{vOffK}, 8, v{vT}")
e(f"v_lshl_or_b32 v{vOffK}, v{vG}, 6, v{vOffK}")
e(f"v_and_b32 v{vT}, 3, v{vN}")
e(f"v_lshl_or_b32 v{vOffK}, v{vT}, 4, v{vOffK}")
e(f"v_lshlrev_b32 v{vOffV}, 4, v{vLane}")
e(f"v_mov_b32 v{vT}, {hex(OOB)}")
e(f"v_cmp_eq_u32 vcc, 0, v{vLane}")
nop(2)
e(f"v_cndmask_b32 v{vCtr}, v{vT}, 0, vcc")
def lane_consts():
    e(f"v_and_b32 v{vT}, 1, v{vN}")
    e(f"v_cmp_eq_u32 vcc, 1, v{vT}")
    e(f"v_mov_b32 v{vT+1}, 0xffff")
    e(f"v_mov_b32 v{vT+2}, 0xffff0000")
    e(f"v_cndmask_b32 v{vT+1}, v{vT+1}, v{vT+2}, vcc")
    e(f"v_lshrrev_b32 v{vT}, 1, v{vN}")
    for i in range(4):
        e(f"v_cmp_eq_u32 vcc, {i}, v{vT}")
        nop(2)
        e(f"v_cndmask_b32 v{vMask+i}, 0, v{vT+1}, vcc")
    e(f"s_mov_b32 s{sScale}, {f32(128 ** -0.5)}")
    e(f"s_mov_b32 s{sLog2e}, {f32(1.4426950408889634)}")
    e(f"s_mov_b32 s{sCnt}, 0")
    e(f"s_mov_b32 s{sDupLo}, 0x01000100")
    e(f"s_mov_b32 s{sDupHi}, 0x03020302")
    e(f"v_mov_b32 v{vM}, 0xff800000")
    e(f"v_mov_b32 v{vML}, 0xff800000")
    e(f"v_mov_b32 v{vL}, 0")
e("s_waitcnt lgkmcnt(0)")
srd(sWS, pWs, WS_SIZE)
srd(sX, pDbg, 256)
e("s_cmp_lg_u32 s2, 0")
e("s_cbranch_scc1 NO_NONCE_WRITE")
e(f"s_cmp_lg_u32 s{sWave}, 0")
e("s_cbranch_scc1 NO_NONCE_WRITE")
e(f"s_memrealtime s[{sTm}:{sTm+1}]")
e("s_waitcnt lgkmcnt(0)")
e(f"s_or_b32 s{sT0}, s{sTm}, 1")
e(f"v_mov_b32 v{vT}, s{sT0}")
e(f"buffer_store_dword v{vT}, v{vCtr}, {sr(sX,4)}, 0 offen sc1")
lab("NO_NONCE_WRITE")
if P.BLAST:
    e(f"s_cmp_ge_u32 s2, {P.NA}")
    e("s_cbranch_scc1 B_PATH")
else:
    e(f"s_cmp_lt_u32 s2, {P.NB}")
    e("s_cbranch_scc1 B_PATH")

N = P.NBUF
NPRO = max(P.NPRO, N)
J = P.J
assert J > NPRO + 2 * N + 2 and P.PW <= NPRO
LIMIT = 0x800000
e(f"s_sub_u32 s{sId}, s2, {0 if P.BLAST else P.NB}")
e(f"s_lshr_b32 s{sH}, s{sId}, 3")
e(f"s_and_b32 s{sS}, s{sId}, 7")
e(f"s_lshl_b32 s{sT0}, s{sS}, 2")
e(f"s_add_u32 s{sH}, s{sH}, s{sT0}")
e(f"s_and_b32 s{sH}, s{sH}, 31")
e(f"s_lshl_b32 s{sId}, s{sH}, 3")
e(f"s_add_u32 s{sId}, s{sId}, s{sS}")
e(f"s_lshl_b32 s{sT0}, s{sH}, 23")
srd(sK, pAk, LIMIT, sT0)
srd(sV, pAv, LIMIT, sT0)
e(f"s_lshl_b32 s{sT0}, s{sH}, 8")
e(f"v_add_u32 v{vCtr}, s{sT0}, v{vCtr}")
e(f"s_add_u32 s{sCtr}, s{pWs}, s{sT0}")
e(f"s_addc_u32 s{sCtr+1}, s{pWs+1}, 0")
e(f"s_lshl_b32 s{sT0}, s{sS}, 2")
e(f"s_add_u32 s{sT0}, s{sT0}, s{sWave}")
e(f"s_mov_b32 s{sUw}, s{sT0}")
e(f"s_mov_b32 s{sJ}, 0")
e(f"s_mul_i32 s{sRot}, s{sH}, {hex(P.ROT*4096)}")
if P.REV:
    e(f"s_and_b32 s{sRot}, s{sH}, {P.REV}")
    e(f"s_cmp_lg_u32 s{sRot}, 0")
    e(f"s_cselect_b32 s{sRot}, {hex(P.RMASK)}, 0")

def A_issueK(b):
    for t in range(4):
        e(f"buffer_load_dwordx4 {vr(vBuf+32*b+4*t,4)}, v{vOffK}, {sr(sK,4)}, s{sOff+b} offen offset:{1024*t} nt")
def A_issueV(b, ts=range(4)):
    for t in ts:
        e(f"buffer_load_dwordx4 {vr(vBuf+32*b+16+4*t,4)}, v{vOffV}, {sr(sV,4)}, s{sOff+b} offen offset:{1024*t} nt")
vWo = (vBuf + 32 * max(N, NPRO)) if P.WOEARLY else vBuf
def A_wo_loads():
    cm("leader: issue wo slice loads: load t': lane (n,g) row 16(2g+(n>>3)) + t', cols 64s + 8(n&7)")
    srd(sW, pAwo, 4096 * 1024)
    e(f"v_lshrrev_b32 v{vT}, 3, v{vN}")
    e(f"v_lshl_or_b32 v{vT}, v{vG}, 1, v{vT}")
    e(f"v_lshlrev_b32 v{vT}, 14, v{vT}")
    e(f"v_and_b32 v{vT+1}, 7, v{vN}")
    e(f"v_lshl_or_b32 v{vT}, v{vT+1}, 4, v{vT}")
    e(f"s_lshl_b32 s{sT0}, s{sH}, 17")
    e(f"s_lshl_b32 s{sT1}, s{sS}, 7")
    e(f"s_add_u32 s{sT0}, s{sT0}, s{sT1}")
    for t in range(16):
        if t % 4 == 0 and t > 0:
            e(f"s_add_u32 s{sT0}, s{sT0}, 4096")
        e(f"buffer_load_dwordx4 {vr(vWo+4*t,4)}, v{vT}, {sr(sW,4)}, s{sT0} offen offset:{1024*(t%4)} nt")
def stat_off(b):
    if P.REV:
        e(f"s_xor_b32 s{sOff+b}, s{sStat}, s{sRot}")
    elif P.ROT:
        e(f"s_add_u32 s{sOff+b}, s{sStat}, s{sRot}")
        e(f"s_and_b32 s{sOff+b}, s{sOff+b}, {hex(LIMIT-1)}")
    else:
        e(f"s_mov_b32 s{sOff+b}, s{sStat}")
NI = P.NI
J0 = P.J0
sType, sSlot = 60, 64
sQH, sQT, sMode, sEp, sNext, sU = 80+16, 0, 0, 0, 0, 0
sQH, sQT, sMode, sEp, sNext = 57, 72, 73, 99, 77
sNext = 69
vRing = 58
vLS = 59
LDS_S = 12288
icount = [0]
sPend = 75
sExtra, sNeed = 101, 76
def request_next(tag):
    e(f"s_add_u32 s{sJ}, s{sJ}, 1")
    e(f"s_cmp_lt_u32 s{sJ}, {J0}")
    e(f"s_cbranch_scc1 GN_ST{tag}")
    e(f"s_cmp_eq_u32 s{sExtra}, 0")
    e(f"s_cselect_b32 s{sNeed}, 1, 0")
    e(f"s_add_u32 s{sNext}, s{sNext}, s{sExtra}")
    e(f"s_mov_b32 s{sExtra}, 0")
    e(f"s_branch GN_L{tag}")
    lab(f"GN_ST{tag}")
    e(f"s_add_u32 s{sNext}, s{sNext}, 32")
    e(f"s_cmp_lt_u32 s{sJ}, {J0-1}")
    e(f"s_cbranch_scc1 GN_D{tag}")
    lab(f"GN_L{tag}")
    e(f"s_cmp_lg_u32 s{sPend}, 0")
    e(f"s_cbranch_scc1 GN_D{tag}")
    e(f"s_cmp_lt_u32 s{sNext}, {max(P.TEND-P.PAIRM,0) if P.PAIR else 0}")
    e(f"s_cselect_b32 s{sPend}, 2, 1")
    e(f"s_mov_b32 s{sClaim}, s{sPend}")
    e(f"s_atomic_add s{sClaim}, s[{sCtr}:{sCtr+1}], 0x0 glc")
    lab(f"GN_D{tag}")
def _resolve(tag, wait):
    e(f"s_cmp_eq_u32 s{sNeed}, 0")
    e(f"s_cbranch_scc1 RN_D{tag}")
    if wait: e("s_waitcnt lgkmcnt(0)")
    e(f"s_min_u32 s{sNext}, s{sClaim}, 0x10000")
    e(f"s_add_u32 s{sNext}, s{sNext}, {J0*32-CBASE}")
    e(f"s_cmp_lt_u32 s{sJ}, 0x1000")
    e(f"s_cselect_b32 s{sNext}, s{sNext}, 0x10000")
    e(f"s_sub_u32 s{sExtra}, s{sPend}, 1")
    e(f"s_mov_b32 s{sPend}, 0")
    e(f"s_mov_b32 s{sNeed}, 0")
    lab(f"RN_D{tag}")
def resolve_next(tag): _resolve(tag, True)
def resolve_nowait(tag): _resolve(tag, False)
inloop = [False]
sEl = 78
sClk = 94
EB = [int(x) for x in str(P.EB).split("_")] if P.EB else None
def epoch_of_next():
    if EB is None:
        e(f"s_lshr_b32 s{sT0}, s{sNext}, {P.LE}")
    else:
        e(f"s_mov_b32 s{sT0}, 0")
        for bd in EB:
            e(f"s_cmp_ge_u32 s{sNext}, {bd}")
            e(f"s_addc_u32 s{sT0}, s{sT0}, 0")
    e(f"s_add_u32 s{sT1}, s{sNext}, 0x1000")
    e(f"s_cmp_lt_u32 s{sNext}, {P.TEND}")
    e(f"s_cselect_b32 s{sT0}, s{sT0}, s{sT1}")
sNT, sNS, sNO = 70, 71, 74
def decide(force=False):
    t = icount[0]; icount[0] += 1
    useclk = P.CLK and inloop[0]
    if useclk:
        if not force:
            e(f"s_cmp_lg_u32 s{sNeed}, 0")
            e(f"s_cbranch_scc1 IS_CK{t}")
            e(f"s_cmp_lg_u32 s{sPend}, 0")
            e(f"s_cbranch_scc1 IS_CS{t}")
        lab(f"IS_CK{t}")
        e("s_waitcnt lgkmcnt(0)")
        e(f"s_sub_u32 s{sEl}, s{sClk}, s{sFlag}")
        if P.ORG and not P.EDGE:
            e(f"s_sub_u32 s{sEl}, s{sEl}, {P.ORG}")
        if P.PMUL:
            e(f"s_mul_i32 s{sEl}, s{sEl}, {P.PMUL}")
        e(f"s_memrealtime s[{sClk}:{sClk+1}]")
        lab(f"IS_CS{t}")
    e(f"s_cmp_lg_u32 s{sMode}, 0")
    e(f"s_cbranch_scc1 IS_V{t}")
    e(f"s_cmp_ge_u32 s{sEp}, 0x1000")
    e(f"s_cbranch_scc1 IS_TOV{t}")
    if useclk and P.EDGE:
        e(f"s_add_u32 s{sT0}, s{sEl}, {P.OFF}")
        e(f"s_lshr_b32 s{sT0}, s{sT0}, {P.CLK}")
        e(f"s_and_b32 s{sT0}, s{sT0}, 0xff")
        e(f"s_cmp_lg_u32 s{sT0}, s{sEp}")
        e(f"s_mov_b32 s{sEp}, s{sT0}")
        e(f"s_cbranch_scc1 IS_TOV{t}")
        resolve_nowait(f"a{t}")
    elif useclk:
        e(f"s_bitcmp0_b32 s{sEl}, {P.CLK}")
        e(f"s_cbranch_scc1 IS_KT{t}")
        e(f"s_cmp_lg_u32 s{sQH}, s{sQT}")
        e(f"s_cbranch_scc1 IS_{'TOV' if P.FULLDRAIN else 'VG'}{t}")
        lab(f"IS_KT{t}")
        resolve_nowait(f"a{t}")
    else:
        resolve_next(f"a{t}")
    e(f"s_cmp_ge_u32 s{sNext}, 2048")
    e(f"s_cbranch_scc1 IS_TOV{t}")
    if P.CLK:
        e(f"s_cmp_ge_u32 s{sNext}, {P.TEND}")
        e(f"s_cselect_b32 s{sEp}, 0x1000, s{sEp}")
        e(f"s_cbranch_scc1 IS_TOV{t}")
        e(f"s_sub_u32 s{sT0}, s{sQT}, s{sQH}")
        e(f"s_cmp_ge_u32 s{sT0}, {P.CAP}")
        e(f"s_cbranch_scc1 IS_VG{t}")
    else:
        epoch_of_next()
        e(f"s_cmp_lg_u32 s{sT0}, s{sEp}")
        e(f"s_mov_b32 s{sEp}, s{sT0}")
        e(f"s_cbranch_scc1 IS_TOV{t}")
        e(f"s_sub_u32 s{sT0}, s{sQT}, s{sQH}")
        e(f"s_cmp_ge_u32 s{sT0}, {P.CAP}")
        e(f"s_cbranch_scc1 IS_TOV{t}")
    lab(f"IS_K{t}")
    e(f"s_lshl_b32 s{sNO}, s{sNext}, 12")
    e(f"s_xor_b32 s{sNO}, s{sNO}, s{sRot}")
    e(f"s_and_b32 s{sNS}, s{sQT}, 63")
    e(f"s_mov_b32 m0, s{sNS}")
    e(f"s_add_u32 s{sQT}, s{sQT}, 1")
    e(f"s_mov_b32 s{sNT}, 1")
    e(f"v_writelane_b32 v{vRing}, s{sNO}, m0")
    request_next(t)
    e(f"s_branch IS_D{t}")
    lab(f"IS_TOV{t}")
    e(f"s_mov_b32 s{sMode}, 1")
    lab(f"IS_V{t}")
    e(f"s_cmp_lg_u32 s{sQH}, s{sQT}")
    e(f"s_cbranch_scc1 IS_VG{t}")
    e(f"s_mov_b32 s{sMode}, 0")
    if useclk: resolve_nowait(f"b{t}")
    else: resolve_next(f"b{t}")
    e(f"s_cmp_lt_u32 s{sNext}, 2048")
    e(f"s_cbranch_scc1 IS_K{t}")
    e(f"s_mov_b32 s{sMode}, 1")
    e(f"s_mov_b32 s{sNT}, 0")
    e(f"s_mov_b32 s{sNO}, {hex(OOB)}")
    e(f"s_branch IS_D{t}")
    lab(f"IS_VG{t}")
    e(f"s_and_b32 s{sNS}, s{sQH}, 63")
    e(f"v_readlane_b32 s{sNO}, v{vRing}, s{sNS}")
    e(f"s_add_u32 s{sQH}, s{sQH}, 1")
    e(f"s_mov_b32 s{sNT}, 2")
    nop(3)
    lab(f"IS_D{t}")
def fire(b):
    t = icount[0]; icount[0] += 1
    ib = vBuf + 16 * b
    e(f"s_cmp_eq_u32 s{sNT}, 1")
    e(f"s_cbranch_scc1 FI_K{t}")
    for k in range(4):
        e(f"buffer_load_dwordx4 {vr(ib+4*k,4)}, v{vOffV}, {sr(sV,4)}, s{sNO} offen offset:{1024*k} nt")
    e(f"s_branch FI_D{t}")
    lab(f"FI_K{t}")
    for k in range(4):
        e(f"buffer_load_dwordx4 {vr(ib+4*k,4)}, v{vOffK}, {sr(sK,4)}, s{sNO} offen offset:{1024*k} nt")
    lab(f"FI_D{t}")
    e(f"s_mov_b32 s{sType+b}, s{sNT}")
    e(f"s_mov_b32 s{sSlot+b}, s{sNS}")
def issue(b):
    decide()
    fire(b)
def stream_init():
    e(f"s_mov_b32 s{sQH}, 0")
    e(f"s_mov_b32 s{sQT}, 0")
    e(f"s_mov_b32 s{sMode}, 0")
    e(f"s_mov_b32 s{sEp}, 0")
    e(f"s_mov_b32 s{sNext}, s{sUw}")
    e(f"s_mov_b32 s{sPend}, 0")
    e(f"s_mov_b32 s{sExtra}, 0")
    e(f"s_mov_b32 s{sNeed}, 0")

def A_slot(b):
    stat_off(b)
    e(f"s_add_u32 s{sStat}, s{sStat}, 0x20000")
    A_issueK(b)
    A_issueV(b)
def read_flag():
    e(f"v_mov_b32 v{vT}, 0")
    e(f"ds_read_b32 v{vT+1}, v{vT} offset:{LDS_FLAG}")
    e("s_waitcnt lgkmcnt(0)")
    e(f"v_readfirstlane_b32 s{sFlag}, v{vT+1}")

cm("x (ushort) + 4 wq loads per wave, issued before anything else")
srd(sW, pAx, 1024)
e(f"v_lshrrev_b32 v{vT}, 2, v{vN}")
e(f"v_lshlrev_b32 v{vT}, 3, v{vT}")
e(f"v_lshl_or_b32 v{vT}, v{vG}, 1, v{vT}")
e(f"s_lshl_b32 s{sT0}, s{sS}, 7")
e(f"s_lshl_b32 s{sT1}, s{sWave}, 5")
e(f"s_add_u32 s{sT0}, s{sT0}, s{sT1}")
e(f"buffer_load_ushort v{vZ}, v{vT}, {sr(sW,4)}, s{sT0} offen")
e(f"v_lshlrev_b32 v{vT+1}, 13, v{vG}")
e(f"v_lshl_or_b32 v{vT+1}, v{vN}, 4, v{vT+1}")
srd(sW, pAwq, 512 * 8192)
e(f"s_lshl_b32 s{sT0}, s{sT0}, 12")
e(f"s_lshl_b32 s{sT1}, s{sH}, 8")
e(f"s_add_u32 s{sT0}, s{sT0}, s{sT1}")
wqb = A_vS
for tt in range(4):
    e(f"buffer_load_dwordx4 {vr(wqb+4*tt,4)}, v{vT+1}, {sr(sW,4)}, s{sT0} offen nt")
    if tt < 3:
        e(f"s_add_u32 s{sT0}, s{sT0}, 0x8000")
e(f"s_cmp_lg_u32 s{sWave}, 0")
e("s_cbranch_scc1 A_NONLEADER0")
cm("leader: nonce load, counter init")
e(f"v_mov_b32 v{vT}, 0")
e(f"buffer_load_dword v{vTag}, v{vT}, {sr(sX,4)}, 0 offen sc1")
if P.WARM:
    e(f"buffer_load_dword v{vT+6}, v{vCtr}, {sr(sWS,4)}, 0 offen offset:128 sc1")
e(f"s_cmp_lg_u32 s{sS}, 0")
e("s_cbranch_scc1 A_NOCTR")
e(f"v_mov_b32 v{vT+5}, {CBASE}")
e(f"buffer_store_dword v{vT+5}, v{vCtr}, {sr(sWS,4)}, 0 offen sc1")
lab("A_NOCTR")
e("s_branch A_COMMON0")
lab("A_NONLEADER0")
stream_init()
if P.NX:
    for x in range(P.NX):
        issue(NI + x)
else:
    for b in range(NI):
        issue(b)
e(f"v_mov_b32 v{vT}, 0")
e(f"ds_write_b32 v{vT}, v{vT} offset:{LDS_FLAG}")
lab("A_COMMON0")
lane_consts()
e(f"s_mov_b32 s{sPend}, 0")
e(f"s_mov_b32 s{sFlag}, 0")
e(f"s_cmp_eq_u32 s{sWave}, 0")
e("s_cbranch_scc1 A_LW")
e(f"s_waitcnt vmcnt({4*(P.NX if P.NX else NI)})")
e("s_branch A_QMFMA")
lab("A_LW")
e(f"s_waitcnt vmcnt({2 if P.WARM else 1})")
lab("A_QMFMA")
e(f"v_lshl_or_b32 v{vZ}, v{vZ}, 16, v{vZ}")
nop(2)
a0 = rowsum_mfma(vZ, 0, 0, None, None, None)
a1 = rowsum_mfma(vZ, 1, 1, None, None, None)
e(f"v_mfma_f32_16x16x32_bf16 {vr(A_vO,4)}, {vr(a0,4)}, {vr(wqb,4)}, 0")
rowsum_mfma(vZ, 2, 0, None, None, None)
e(f"v_mfma_f32_16x16x32_bf16 {vr(A_vO,4)}, {vr(a1,4)}, {vr(wqb+4,4)}, {vr(A_vO,4)}")
rowsum_mfma(vZ, 3, 1, None, None, None)
e(f"v_mfma_f32_16x16x32_bf16 {vr(A_vO,4)}, {vr(a0,4)}, {vr(wqb+8,4)}, {vr(A_vO,4)}")
nop(1)
e(f"v_mfma_f32_16x16x32_bf16 {vr(A_vO,4)}, {vr(a1,4)}, {vr(wqb+12,4)}, {vr(A_vO,4)}")
e(f"v_lshlrev_b32 v{vT}, 5, v{vN}")
e(f"v_lshl_or_b32 v{vT}, v{vG}, 4, v{vT}")
e(f"s_lshl_b32 s{sT0}, s{sWave}, 9")
e(f"v_add_u32 v{vT+1}, s{sT0}, v{vT}")
e(f"s_cmp_eq_u32 s{sWave}, 0")
e("s_cbranch_scc1 A_LEADER1")
nop(3)
e("s_mov_b32 exec_hi, 0")
e(f"ds_write_b128 v{vT+1}, {vr(A_vO,4)} offset:{LDS_O}")
e("s_mov_b64 exec, -1")
e("s_waitcnt lgkmcnt(0)")
e("s_barrier")
e("s_branch A_PACE")
lab("A_LEADER1")
e("s_barrier")
for w in range(1, 4):
    e(f"ds_read_b128 {vr(wqb+4*w,4)}, v{vT} offset:{LDS_O+512*w}")
stamp(3)
get_nonce("A")
e("s_waitcnt lgkmcnt(0)")
for w in range(1, 4):
    for i in range(4):
        e(f"v_add_f32 v{A_vO+i}, v{A_vO+i}, v{wqb+4*w+i}")
e(f"v_lshlrev_b32 v{vT}, 6, v{vN}")
e(f"v_lshl_or_b32 v{vT}, v{vG}, 5, v{vT}")
e(f"v_mov_b32 v{vT+1}, {hex(OOB)}")
e(f"v_cmp_gt_u32 vcc, 32, v{vLane}")
e(f"s_lshl_b32 s{sT0}, s{sId}, 10")
e(f"s_add_u32 s{sT0}, s{sT0}, {hex(WS_QA)}")
e(f"v_cndmask_b32 v{vT}, v{vT+1}, v{vT}, vcc")
b0 = vBuf
for i in range(4):
    e(f"v_mov_b32 v{b0+2*i}, v{A_vO+i}")
    e(f"v_mov_b32 v{b0+2*i+1}, s{sNonce}")
e(f"buffer_store_dwordx4 {vr(b0,4)}, v{vT}, {sr(sWS,4)}, s{sT0} offen sc1")
e(f"buffer_store_dwordx4 {vr(b0+4,4)}, v{vT}, {sr(sWS,4)}, s{sT0} offen offset:16 sc1")
e(f"v_and_b32 v{vT}, 1, v{vG}")
e(f"v_lshlrev_b32 v{vT}, 5, v{vT}")
e(f"v_lshl_or_b32 v{vT}, v{vN}, 6, v{vT}")
e(f"v_lshrrev_b32 v{vT+1}, 5, v{vLane}")
e(f"v_lshl_or_b32 v{vT}, v{vT+1}, 12, v{vT}")
e(f"s_lshl_b32 s{sT0}, s{sH}, 13")
e(f"s_add_u32 s{sT0}, s{sT0}, {hex(WS_QA)}")
g0 = vBuf + 8
lds_ = []
for k in range(4):
    lds_.append((f"buffer_load_dwordx4 {vr(g0+8*k,4)}, v{vT}, {sr(sWS,4)}, s{sT0} offen offset:{1024*k} sc1", [g0+8*k+1, g0+8*k+3], None))
    lds_.append((f"buffer_load_dwordx4 {vr(g0+8*k+4,4)}, v{vT}, {sr(sWS,4)}, s{sT0} offen offset:{1024*k+16} sc1", [g0+8*k+5, g0+8*k+7], None))
masked_poll("A_Q", lds_, P.SLEEPQ)
stamp(5)
for i in range(4):
    e(f"v_add_f32 v{A_vO+i}, v{g0+2*i}, v{g0+8+2*i}")
    e(f"v_add_f32 v{A_vO+i}, v{A_vO+i}, v{g0+16+2*i}")
    e(f"v_add_f32 v{A_vO+i}, v{A_vO+i}, v{g0+24+2*i}")
stream_init()
for b in range(NI):
    issue(b)
for i in range(4):
    e(f"v_mov_b32 v{A_vS+i}, v{A_vO+i}")
nop(2)
for i in range(4):
    e(f"v_permlane32_swap_b32 v{A_vS+i}, v{A_vO+i}")
nop(1)
for i in range(4):
    e(f"v_add_f32 v{A_vO+i}, v{A_vS+i}, v{A_vO+i}")
e(f"v_cvt_pk_bf16_f32 v{A_vS}, v{A_vO}, v{A_vO+1}")
e(f"v_cvt_pk_bf16_f32 v{A_vS+1}, v{A_vO+2}, v{A_vO+3}")
e(f"v_and_b32 v{vT}, 1, v{vG}")
e(f"v_lshlrev_b32 v{vT}, 3, v{vT}")
e(f"v_lshl_or_b32 v{vT}, v{vN}, 4, v{vT}")
e(f"ds_write_b64 v{vT}, {vr(A_vS,2)} offset:{LDS_Q}")
e(f"v_mov_b32 v{vT}, 0")
e(f"v_mov_b32 v{vT+1}, s{sNonce}")
e("s_waitcnt lgkmcnt(0)")
e(f"ds_write_b32 v{vT}, v{vT+1} offset:{LDS_FLAG}")
e(f"s_mov_b32 s{sFlag}, s{sNonce}")
if P.WOEARLY == 1:
    A_wo_loads()
    e("s_waitcnt vmcnt(0)")
e("s_branch A_QGO")
lab("A_PACE")
if P.NX:
    e("s_waitcnt vmcnt(0)")
    for b in range(NI):
        issue(b)
lab("A_QSPIN")
e(f"s_cmp_lg_u32 s{sFlag}, 0")
e("s_cbranch_scc1 A_QGO")
read_flag()
e(f"s_add_u32 s{sCnt}, s{sCnt}, 1")
e(f"s_cmp_gt_u32 s{sCnt}, {hex(0x4000000)}")
e("s_cbranch_scc1 A_QGO")
e("s_branch A_QSPIN")
lab("A_QGO")
stampw(4)
e(f"s_mov_b32 s{sCnt}, 0")
e(f"v_and_b32 v{vT}, 3, v{vN}")
e(f"v_lshlrev_b32 v{vT}, 4, v{vT}")
e(f"v_lshl_or_b32 v{vT}, v{vG}, 6, v{vT}")
e(f"ds_read_b128 {vr(A_vS,4)}, v{vT} offset:{LDS_Q}")
e(f"v_lshrrev_b32 v{vT+1}, 2, v{vN}")
for i in range(4):
    e(f"v_mov_b32 v{A_vO+i}, 0")
e("s_waitcnt lgkmcnt(0)")
for t in range(4):
    e(f"v_cmp_eq_u32 vcc, {t}, v{vT+1}")
    nop(2)
    for i in range(4):
        e(f"v_cndmask_b32 v{A_vQ+4*t+i}, 0, v{A_vS+i}, vcc")
nop(2)

e(f"v_lshrrev_b32 v{vLS}, 2, v{vLane}")
e(f"v_lshlrev_b32 v{vLS}, 2, v{vLS}")
e(f"s_lshl_b32 s{sT0}, s{sWave}, 12")
e(f"v_add_u32 v{vLS}, s{sT0}, v{vLS}")
if P.CLK:
    e(f"s_memrealtime s[{sClk}:{sClk+1}]")
    e(f"s_mov_b32 s{sEl}, 0")
inloop[0] = True
rare = []
def k_scores(tagb, ret):
    sc = vT
    e(f"v_mov_b32_dpp v{sc}, v{A_vS} quad_perm:[0,0,0,0] {DPPM}")
    for i in range(1, 4):
        e(f"v_add_f32_dpp v{sc}, v{A_vS+i}, v{sc} quad_perm:[{i},{i},{i},{i}] {DPPM}")
    e(f"v_cvt_pk_bf16_f32 v{sc}, v{sc}, v{sc}")
    e(f"v_and_b32 v{sc}, 0xffff0000, v{sc}")
    e(f"v_mul_f32 v{sc}, s{sScale}, v{sc}")
    e(f"v_cvt_pk_bf16_f32 v{sc}, v{sc}, v{sc}")
    e(f"v_and_b32 v{sc}, 0xffff0000, v{sc}")
    e(f"ds_write_b32 v{sc+6}, v{sc} offset:{LDS_S}")
    e(f"v_cmp_gt_f32 vcc, v{sc}, v{vM}")
    e(f"s_cbranch_vccnz A_RARE{tagb}")
if P.NX:
    assert P.TEND >= 256 and J0 >= P.NX + NI + 1 and NI + P.NX <= 4
    e(f"s_cmp_eq_u32 s{sWave}, 0")
    e("s_cbranch_scc1 A_LOOP")
    for x in range(P.NX):
        ib = vBuf + 16 * (NI + x)
        e(f"s_lshl_b32 s{sT0}, s{sSlot+NI+x}, 6")
        e(f"v_add_u32 v{vT+6}, s{sT0}, v{vLS}")
        for t in range(4):
            c = "0" if t == 0 else vr(A_vS, 4)
            e(f"v_mfma_f32_16x16x32_bf16 {vr(A_vS,4)}, {vr(ib+4*t,4)}, {vr(A_vQ+4*t,4)}, {c}")
        nop(8)
        k_scores(f"X{x}", None)
        lab(f"A_NEXTX{x}")
        rare.append(f"X{x}")
lab("A_LOOP")
for b in range(NI):
    ib = vBuf + 16 * b
    sc = vT
    cm(f"--- item body {b}")
    e(f"s_cmp_eq_u32 s{sType+b}, 0")
    e("s_cbranch_scc1 A_EXIT")
    e(f"s_lshl_b32 s{sT0}, s{sSlot+b}, 6")
    e(f"v_add_u32 v{sc+6}, s{sT0}, v{vLS}")
    e(f"s_cmp_eq_u32 s{sType+b}, 2")
    e(f"s_cbranch_scc1 A_PV{b}")
    decide()
    e(f"s_waitcnt vmcnt({4*(NI-1)})")
    for t in range(4):
        c = "0" if t == 0 else vr(A_vS, 4)
        e(f"v_mfma_f32_16x16x32_bf16 {vr(A_vS,4)}, {vr(ib+4*t,4)}, {vr(A_vQ+4*t,4)}, {c}")
    fire(b)
    nop(1)
    e(f"v_mov_b32_dpp v{sc}, v{A_vS} quad_perm:[0,0,0,0] {DPPM}")
    for i in range(1, 4):
        e(f"v_add_f32_dpp v{sc}, v{A_vS+i}, v{sc} quad_perm:[{i},{i},{i},{i}] {DPPM}")
    if P.MIMIC:
        e(f"v_cvt_pk_bf16_f32 v{sc}, v{sc}, v{sc}")
        e(f"v_and_b32 v{sc}, 0xffff0000, v{sc}")
        e(f"v_mul_f32 v{sc}, s{sScale}, v{sc}")
        e(f"v_cvt_pk_bf16_f32 v{sc}, v{sc}, v{sc}")
        e(f"v_and_b32 v{sc}, 0xffff0000, v{sc}")
    else:
        e(f"v_mul_f32 v{sc}, s{sScale}, v{sc}")
    e(f"ds_write_b32 v{sc+6}, v{sc} offset:{LDS_S}")
    e(f"v_cmp_gt_f32 vcc, v{sc}, v{vM}")
    e(f"s_cbranch_vccnz A_RARE{b}")
    e(f"s_branch A_NEXT{b}")
    lab(f"A_PV{b}")
    e(f"ds_read_b32 v{sc}, v{sc+6} offset:{LDS_S}")
    e("s_waitcnt lgkmcnt(0)")
    decide(True)
    e(f"v_fma_f32 v{sc+1}, v{sc}, s{sLog2e}, -v{vML}")
    e(f"v_exp_f32 v{sc+1}, v{sc+1}")
    nop(1)
    e(f"v_cvt_pk_bf16_f32 v{sc+2}, v{sc+1}, v{sc+1}")
    e(f"v_add_f32 v{vL}, v{vL}, v{sc+1}")
    nop(1)
    pp = sc + 2
    a0 = rowsum_mfma(pp, 0, 0, None, None, None)
    a1 = rowsum_mfma(pp, 1, 1, None, None, None)
    e(f"s_waitcnt vmcnt({4*(NI-1)})")
    e(f"v_mfma_f32_16x16x32_bf16 {vr(A_vO,4)}, {vr(a0,4)}, {vr(ib,4)}, {vr(A_vO,4)}")
    rowsum_mfma(pp, 2, 0, None, None, None)
    e(f"v_mfma_f32_16x16x32_bf16 {vr(A_vO,4)}, {vr(a1,4)}, {vr(ib+4,4)}, {vr(A_vO,4)}")
    rowsum_mfma(pp, 3, 1, None, None, None)
    e(f"v_mfma_f32_16x16x32_bf16 {vr(A_vO,4)}, {vr(a0,4)}, {vr(ib+8,4)}, {vr(A_vO,4)}")
    nop(1)
    e(f"v_mfma_f32_16x16x32_bf16 {vr(A_vO,4)}, {vr(a1,4)}, {vr(ib+12,4)}, {vr(A_vO,4)}")
    fire(b)
    lab(f"A_NEXT{b}")
    rare.append(b)
e("s_branch A_LOOP")
for b in rare:
    sc = vT
    lab(f"A_RARE{b}")
    x = sc + 3
    e(f"v_mov_b32 v{x}, v{sc}")
    ror_reduce("v_max_f32", x, [4, 8])
    allreduce_rows("v_max_f32", x, sc + 4, sc + 5)
    e(f"v_mul_f32 v{sc+4}, s{sLog2e}, v{x}")
    e(f"v_sub_f32 v{sc+5}, v{vML}, v{sc+4}")
    e(f"v_exp_f32 v{sc+5}, v{sc+5}")
    e(f"v_mov_b32 v{vM}, v{x}")
    e(f"v_mov_b32 v{vML}, v{sc+4}")
    nop(8)
    e(f"v_mul_f32 v{vL}, v{vL}, v{sc+5}")
    for i in range(4):
        e(f"v_mul_f32 v{A_vO+i}, v{A_vO+i}, v{sc+5}")
    nop(2)
    e(f"s_branch A_NEXT{b}")

lab("A_EXIT")
e("s_waitcnt vmcnt(0) lgkmcnt(0)")
e(f"s_mov_b32 s{sCnt}, 0")
stamp(6)
if not P.WOEARLY:
    e(f"s_cmp_lg_u32 s{sWave}, 0")
    e("s_cbranch_scc1 A_NOWO")
    A_wo_loads()
    lab("A_NOWO")
ror_reduce("v_add_f32", vL, [4, 8])
allreduce_rows("v_add_f32", vL, vT, vT + 1)
e(f"v_lshlrev_b32 v{vT}, 5, v{vN}")
e(f"v_lshl_or_b32 v{vT}, v{vG}, 4, v{vT}")
e(f"s_lshl_b32 s{sT0}, s{sWave}, 9")
e(f"v_add_u32 v{vT}, s{sT0}, v{vT}")
e(f"s_lshl_b32 s{sT0}, s{sWave}, 3")
e(f"v_mov_b32 v{vT+1}, s{sT0}")
e("s_mov_b32 exec_hi, 0")
e(f"ds_write_b128 v{vT}, {vr(A_vO,4)} offset:{LDS_O}")
e("s_mov_b64 exec, -1")
assert (vT + 3) % 2 == 0
e(f"v_mov_b32 v{vT+3}, v{vML}")
e(f"v_mov_b32 v{vT+4}, v{vL}")
e(f"ds_write_b64 v{vT+1}, {vr(vT+3,2)} offset:{LDS_ML}")
e("s_waitcnt lgkmcnt(0)")
e("s_barrier")
if P.STAMP == 2:
    e(f"s_cmp_lg_u32 s{sWave}, 1")
    e("s_cbranch_scc1 A_NS")
    stamp_store()
    lab("A_NS")
e(f"s_cmp_lg_u32 s{sWave}, 0")
e("s_cbranch_scc1 END")
cm("leader: combine 4 waves")
stamp(1)
c0 = A_vS
e(f"v_mov_b32 v{vT}, 0")
e(f"ds_read_b128 {vr(c0,4)}, v{vT} offset:{LDS_ML}")
e(f"ds_read_b128 {vr(c0+4,4)}, v{vT} offset:{LDS_ML+16}")
e(f"v_lshlrev_b32 v{vT+1}, 3, v{vLane}")
for w in range(4):
    e(f"ds_read_b64 {vr(c0+8+2*w,2)}, v{vT+1} offset:{LDS_O+512*w}")
e("s_waitcnt lgkmcnt(0)")
e(f"v_max3_f32 v{vML}, v{c0}, v{c0+2}, v{c0+4}")
e(f"v_max_f32 v{vML}, v{vML}, v{c0+6}")
for w in range(4):
    e(f"v_sub_f32 v{c0+2*w}, v{c0+2*w}, v{vML}")
    e(f"v_exp_f32 v{c0+2*w}, v{c0+2*w}")
nop(1)
pb = c0 + 16
e(f"v_mul_f32 v{vL}, v{c0}, v{c0+1}")
e(f"v_mul_f32 v{pb}, v{c0}, v{c0+8}")
e(f"v_mul_f32 v{pb+2}, v{c0}, v{c0+9}")
for w in range(1, 4):
    e(f"v_fmac_f32 v{vL}, v{c0+2*w}, v{c0+2*w+1}")
    e(f"v_fmac_f32 v{pb}, v{c0+2*w}, v{c0+8+2*w}")
    e(f"v_fmac_f32 v{pb+2}, v{c0+2*w}, v{c0+9+2*w}")
e(f"v_mov_b32 v{pb+1}, s{sNonce}")
e(f"v_mov_b32 v{pb+3}, s{sNonce}")
e(f"v_mov_b32 v{pb+4}, v{vML}")
e(f"v_mov_b32 v{pb+5}, s{sNonce}")
e(f"v_mov_b32 v{pb+6}, v{vL}")
e(f"v_mov_b32 v{pb+7}, s{sNonce}")
e(f"s_lshl_b32 s{sT0}, s{sId}, 11")
e(f"s_add_u32 s{sT0}, s{sT0}, {hex(WS_PA)}")
e(f"v_mov_b32 v{vT+3}, {hex(OOB)}")
e(f"v_cmp_eq_u32 vcc, 0, v{vLane}")
e(f"buffer_store_dwordx4 {vr(pb,4)}, v{vOffV}, {sr(sWS,4)}, s{sT0} offen sc1")
nop(1)
e(f"v_cndmask_b32 v{vT+2}, v{vT+3}, 0, vcc")
e(f"buffer_store_dwordx4 {vr(pb+4,4)}, v{vT+2}, {sr(sWS,4)}, s{sT0} offen offset:1024 sc1")
stamp(2)
go = 22
gm = 54
e(f"s_lshl_b32 s{sT0}, s{sH}, 14")
e(f"s_add_u32 s{sT0}, s{sT0}, {hex(WS_PA)}")
e(f"s_add_u32 s{sT1}, s{sT0}, 8192")
e(f"v_and_b32 v{vT}, 7, v{vLane}")
e(f"v_lshlrev_b32 v{vT}, 11, v{vT}")
nop(2)
e(f"v_add_u32 v{vT+1}, 4096, v{vOffV}")
lds_ = []
for p in range(8):
    so = sT0 if p < 4 else sT1
    vo = vOffV if (p % 4) < 2 else vT + 1
    lds_.append((f"buffer_load_dwordx4 {vr(go+4*p,4)}, v{vo}, {sr(sWS,4)}, s{so} offen offset:{2048*(p%2)} sc1", [go+4*p+1, go+4*p+3], None))
lds_.append((f"buffer_load_dwordx4 {vr(gm,4)}, v{vT}, {sr(sWS,4)}, s{sT0} offen offset:1024 sc1", [gm+1, gm+3], None))
selE, selO, vLw, vLr, vYo = vMask, 58, 62, 63, vM
def stage2_prep():
    e(f"v_and_b32 v{vT+2}, 1, v{vN}")
    e(f"v_cmp_eq_u32 vcc, 1, v{vT+2}")
    e(f"v_mov_b32 v{vT+3}, 0x0c0c0100")
    e(f"v_mov_b32 v{vT+4}, 0x01000c0c")
    e(f"v_cndmask_b32 v{vT+3}, v{vT+3}, v{vT+4}, vcc")
    e(f"v_mov_b32 v{vT+4}, 0x0c0c0302")
    e(f"v_mov_b32 v{vT+5}, 0x03020c0c")
    e(f"v_cndmask_b32 v{vT+4}, v{vT+4}, v{vT+5}, vcc")
    e(f"v_mov_b32 v{vT+5}, 0x0c0c0c0c")
    e(f"v_bfe_u32 v{vT+2}, v{vN}, 1, 2")
    for i in range(4):
        e(f"v_cmp_eq_u32 vcc, {i}, v{vT+2}")
        nop(2)
        e(f"v_cndmask_b32 v{selE+i}, v{vT+5}, v{vT+3}, vcc")
        e(f"v_cndmask_b32 v{selO+i}, v{vT+5}, v{vT+4}, vcc")
    e(f"v_lshlrev_b32 v{vLw}, 2, v{vLane}")
    e(f"v_lshrrev_b32 v{vT+2}, 3, v{vN}")
    e(f"v_lshl_or_b32 v{vLr}, v{vG}, 1, v{vT+2}")
    e(f"v_lshlrev_b32 v{vLr}, 5, v{vLr}")
    e(f"v_and_b32 v{vYo}, 7, v{vN}")
    e(f"v_lshlrev_b32 v{vYo}, 7, v{vYo}")
    e(f"v_and_b32 v{vT+3}, 1, v{vG}")
    e(f"v_lshl_or_b32 v{vYo}, v{vT+3}, 6, v{vYo}")
    e(f"v_lshl_or_b32 v{vYo}, v{vT+2}, 4, v{vYo}")
    e(f"v_lshrrev_b32 v{vT+3}, 1, v{vG}")
    e(f"v_cmp_eq_u32 vcc, v{vT+2}, v{vT+3}")
    e(f"v_mov_b32 v{vT+3}, {hex(OOB)}")
    e(f"s_lshl_b32 s72, s{sId}, 10")
    e(f"s_add_u32 s72, s72, {hex(WS_YA)}")
    e(f"v_cndmask_b32 v{vYo}, v{vT+3}, v{vYo}, vcc")
masked_poll("A_P", lds_, P.SLEEPP, stage2_prep)
stamp(7)
e(f"v_max_f32_dpp v{vT+2}, v{gm}, v{gm} row_ror:1 {DPPM}")
ror_reduce("v_max_f32", vT + 2, [2, 4])
e(f"v_sub_f32 v{vT+3}, v{gm}, v{vT+2}")
e(f"v_exp_f32 v{vT+3}, v{vT+3}")
e(f"v_mov_b32 v{vT+5}, 0")
e(f"v_mul_f32 v{vT+4}, v{vT+3}, v{gm+2}")
e(f"v_mov_b32 v{vT+6}, 0")
rr = [1, 2, 4]
for p in range(8):
    e(f"v_fmac_f32_dpp v{vT+5}, v{vT+3}, v{go+4*p} row_newbcast:{p} {DPPM}")
    e(f"v_fmac_f32_dpp v{vT+6}, v{vT+3}, v{go+4*p+2} row_newbcast:{p} {DPPM}")
    if p < 3:
        e(f"v_add_f32_dpp v{vT+4}, v{vT+4}, v{vT+4} row_ror:{rr[p]} {DPPM}")
    if p == 3:
        e(f"v_rcp_f32 v{vT+4}, v{vT+4}")
e(f"v_mul_f32 v{vT+5}, v{vT+5}, v{vT+4}")
e(f"v_mul_f32 v{vT+6}, v{vT+6}, v{vT+4}")
e(f"v_cvt_pk_bf16_f32 v{vT+5}, v{vT+5}, v{vT+6}")
e(f"ds_write_b32 v{vLw}, v{vT+5} offset:{LDS_OB}")
od = 34
e(f"ds_read_b128 {vr(od,4)}, v{vLr} offset:{LDS_OB}")
e(f"ds_read_b128 {vr(od+4,4)}, v{vLr} offset:{LDS_OB+16}")
yb = 42
for i in range(4):
    e(f"v_mov_b32 v{yb+2*i+1}, s{sNonce}")
e("s_waitcnt lgkmcnt(0)")
yacc = 54
def abuild(t):
    a = vAop + 4 * (t & 1)
    sel = selO if t & 1 else selE
    for i in range(4):
        e(f"v_perm_b32 v{a+i}, v{od+t//2}, v{od+t//2}, v{sel+i}")
abuild(0)
for t in range(16):
    if t < 15: abuild(t + 1)
    else: nop(2)
    a = vAop + 4 * (t & 1)
    c = "0" if t == 0 else vr(yacc, 4)
    e(f"v_mfma_f32_16x16x32_bf16 {vr(yacc,4)}, {vr(a,4)}, {vr(vWo+4*t,4)}, {c}")
nop(8)
for i in range(4):
    e(f"v_mov_b32 v{yb+2*i}, v{yacc+i}")
e(f"buffer_store_dwordx4 {vr(yb,4)}, v{vYo}, {sr(sWS,4)}, s72 offen sc1")
e(f"buffer_store_dwordx4 {vr(yb+4,4)}, v{vYo}, {sr(sWS,4)}, s72 offen offset:32 sc1")
stamp(4)
e(f"s_cmp_ge_u32 s{sH}, 4")
e("s_cbranch_scc1 A_FIN")
e(f"v_lshlrev_b32 v{vT}, 13, v{vG}")
e(f"v_lshl_or_b32 v{vT}, v{vN}, 4, v{vT}")
e(f"s_lshl_b32 s{sT0}, s{sS}, 10")
e(f"s_lshl_b32 s{sT1}, s{sH}, 8")
e(f"s_add_u32 s{sT0}, s{sT0}, s{sT1}")
e(f"s_add_u32 s{sT0}, s{sT0}, {hex(WS_YA)}")
gy = vBuf
lds_ = []
for k in range(8):
    lds_.append((f"buffer_load_dwordx4 {vr(gy+4*k,4)}, v{vT}, {sr(sWS,4)}, s{sT1} offen sc1", [gy+4*k+1, gy+4*k+3], f"s_add_u32 s{sT1}, s{sT0}, {hex(k*0x8000)}"))
def stage3_prep():
    e(f"v_mov_b32 v{vT+1}, 0")
    e(f"buffer_load_dword v{vTag}, v{vT+1}, {sr(sX,4)}, 0 offen offset:4 sc1")
    srd(sW, pOut, 2048)
    e(f"v_and_b32 v{vT+1}, 0x31, v{vLane}")
    e(f"v_cmp_eq_u32 vcc, 0, v{vT+1}")
    e(f"v_mov_b32 v{vT+3}, {hex(OOB)}")
    e(f"v_lshlrev_b32 v{vT+6}, 1, v{vLane}")
    e(f"s_lshl_b32 s72, s{sS}, 7")
    e(f"s_lshl_b32 s73, s{sH}, 5")
    e(f"s_add_u32 s72, s72, s73")
    e(f"v_cndmask_b32 v{vT+6}, v{vT+3}, v{vT+6}, vcc")
masked_poll("A_Y", lds_, P.SLEEPY, stage3_prep)
for k in range(1, 8):
    e(f"v_add_f32 v{gy}, v{gy}, v{gy+4*k}")
    e(f"v_add_f32 v{gy+2}, v{gy+2}, v{gy+4*k+2}")
nop(1)
e(f"v_add_f32_dpp v{gy}, v{gy}, v{gy} quad_perm:[1,0,3,2] {DPPM}")
e(f"v_add_f32_dpp v{gy+2}, v{gy+2}, v{gy+2} quad_perm:[1,0,3,2] {DPPM}")
for sw in ("v_permlane16_swap_b32", "v_permlane32_swap_b32"):
    e(f"v_mov_b32 v{vT+2}, v{gy}")
    e(f"v_mov_b32 v{vT+4}, v{gy+2}")
    nop(1)
    e(f"{sw} v{vT+2}, v{gy}")
    e(f"{sw} v{vT+4}, v{gy+2}")
    e(f"v_add_f32 v{gy}, v{vT+2}, v{gy}")
    e(f"v_add_f32 v{gy+2}, v{vT+4}, v{gy+2}")
e(f"v_cvt_pk_bf16_f32 v{gy}, v{gy}, v{gy+2}")
e(f"buffer_store_dword v{gy}, v{vT+6}, {sr(sW,4)}, s72 offen")
cm("every leader has consumed the nonce by now: put d_debug back to zero (one workgroup, only if part B is done)")
e(f"s_cmp_lg_u32 s{sId}, 0")
e("s_cbranch_scc1 A_FIN")
e(f"v_readfirstlane_b32 s{sT0}, v{vTag}")
e(f"s_cmp_lg_u32 s{sT0}, s{sNonce}")
e("s_cbranch_scc1 A_FIN")
e(f"v_mov_b32 v{vT+2}, 0")
e(f"v_lshlrev_b32 v{vT+4}, 2, v{vLane}")
e(f"v_mov_b32 v{vT+3}, {hex(OOB)}")
e(f"v_cmp_gt_u32 vcc, 2, v{vLane}")
nop(2)
e(f"v_cndmask_b32 v{vT+4}, v{vT+3}, v{vT+4}, vcc")
e(f"buffer_store_dword v{vT+2}, v{vT+4}, {sr(sX,4)}, 0 offen sc1")
lab("A_FIN")
if P.STAMP == 1:
    stamp_store()
e("s_branch END")

lab("B_PATH")
if P.NOB:
    e("s_branch END")
if P.BLAST:
    e(f"s_sub_u32 s2, s2, {P.NA}")
NBf = P.NBUFB
lane_consts()
e(f"s_lshr_b32 s{sH}, s2, 2")
e(f"s_and_b32 s{sS}, s2, 3")
e(f"s_lshl_b32 s{sT0}, s{sH}, 23")
e(f"s_lshl_b32 s{sT1}, s{sS}, 18")
e(f"s_add_u32 s{sT0}, s{sT0}, s{sT1}")
e(f"s_add_u32 s{sT0}, s{sT0}, {hex((32768-4096)*256)}")
BLIM = 1024 * 256
srd(sK, pBk, BLIM, sT0)
srd(sV, pBv, BLIM, sT0)
e(f"s_cmp_lg_u32 s{sWave}, 0")
e("s_cbranch_scc1 B_NONONCE")
e(f"v_mov_b32 v{vT}, 0")
e(f"buffer_load_dword v{vTag}, v{vT}, {sr(sX,4)}, 0 offen sc1")
get_nonce("B")
if P.BWAIT:
    cm("B starts its heavy loads only after the A q-exchange of head s2 has been published")
    e(f"s_lshl_b32 s{sT0}, s2, 13")
    e(f"s_add_u32 s{sT0}, s{sT0}, {hex(WS_QA)}")
    e(f"v_and_b32 v{vT}, 7, v{vLane}")
    e(f"v_lshlrev_b32 v{vT}, 10, v{vT}")
    lab("B_WPOLL")
    e(f"buffer_load_dwordx2 {vr(34,2)}, v{vT}, {sr(sWS,4)}, s{sT0} offen sc1")
    e("s_waitcnt vmcnt(0)")
    tag_check([35], vT + 2, vT + 3)
    e("s_cbranch_vccz B_WDONE")
    e(f"s_add_u32 s{sCnt}, s{sCnt}, 1")
    spin_recover()
    e(f"s_cmp_gt_u32 s{sCnt}, {hex(P.SPIN)}")
    e("s_cbranch_scc1 B_WDONE")
    e(f"s_sleep {P.SLEEP*8}")
    e("s_branch B_WPOLL")
    lab("B_WDONE")
lab("B_NONONCE")
e("s_barrier")
srd(sW, pBx, 1024)
e(f"v_lshrrev_b32 v{vT}, 2, v{vN}")
e(f"v_lshlrev_b32 v{vT}, 4, v{vT}")
e(f"v_lshl_or_b32 v{vT}, v{vG}, 6, v{vT}")
e(f"s_lshl_b32 s{sT0}, s{sWave}, 8")
e(f"buffer_load_dwordx4 {vr(34,4)}, v{vT}, {sr(sW,4)}, s{sT0} offen")
nop(1)

def rowsum128(xd, rowstride_log2, label):
    ppb = 38
    first = True
    for half in range(2):
        for Tq in range(4):
            T = half * 4 + Tq
            for tt in range(4):
                idx = Tq * 4 + tt
                e(f"s_add_u32 s{sT1}, s{sT0}, {hex((8*tt+T) << rowstride_log2)}")
                e(f"buffer_load_dwordx4 {vr(vBuf+4*idx,4)}, v{vT+1}, {sr(sW,4)}, s{sT1} offen nt")
        if half == 0:
            yield "loads_issued"
            for T in range(8):
                e(f"v_perm_b32 v{ppb+T}, v{xd+T//2}, v{xd+T//2}, s{sDupHi if T&1 else sDupLo}")
            nop(2)
        for Tq in range(4):
            T = half * 4 + Tq
            for tt in range(4):
                idx = Tq * 4 + tt
                a = rowsum_mfma(ppb + T, tt, idx & 1, None, None, None)
                e(f"s_waitcnt vmcnt({15-idx})")
                nop(1)
                c = "0" if first else vr(B_vO, 4)
                first = False
                e(f"v_mfma_f32_16x16x32_bf16 {vr(B_vO,4)}, {vr(a,4)}, {vr(vBuf+4*idx,4)}, {c}")

srd(sW, pBwq, 512 * 8192)
e(f"v_lshlrev_b32 v{vT+1}, 18, v{vG}")
e(f"v_lshl_or_b32 v{vT+1}, v{vN}, 4, v{vT+1}")
e(f"s_lshl_b32 s{sT0}, s{sWave}, 20")
e(f"s_lshl_b32 s{sT1}, s2, 8")
e(f"s_add_u32 s{sT0}, s{sT0}, s{sT1}")
gen = rowsum128(34, 13, "BQ")
next(gen)
e("s_waitcnt vmcnt(16)")
for _ in gen: pass
e(f"v_lshlrev_b32 v{vT}, 5, v{vN}")
e(f"v_lshl_or_b32 v{vT}, v{vG}, 4, v{vT}")
e(f"s_lshl_b32 s{sT0}, s{sWave}, 9")
e(f"v_add_u32 v{vT}, s{sT0}, v{vT}")
nop(8)
e("s_mov_b32 exec_hi, 0")
e(f"ds_write_b128 v{vT}, {vr(B_vO,4)} offset:{LDS_O}")
e("s_mov_b64 exec, -1")
e("s_waitcnt lgkmcnt(0)")
e("s_barrier")

def B_issueK(b):
    for t in range(4):
        e(f"buffer_load_dwordx4 {vr(vBuf+32*b+4*t,4)}, v{vOffK}, {sr(sK,4)}, s{sOff+b} offen offset:{1024*t} nt")
def B_issueV(b, ts=range(4)):
    for t in ts:
        e(f"buffer_load_dwordx4 {vr(vBuf+32*b+16+4*t,4)}, v{vOffV}, {sr(sV,4)}, s{sOff+b} offen offset:{1024*t} nt")
def B_prefetch():
    e(f"s_lshl_b32 s{sStat}, s{sWave}, 12")
    for b in range(NBf):
        e(f"s_mov_b32 s{sOff+b}, s{sStat}")
        e(f"s_add_u32 s{sStat}, s{sStat}, 0x4000")
        B_issueK(b)
        B_issueV(b)

e(f"s_cmp_lg_u32 s{sWave}, 0")
e("s_cbranch_scc1 B_NONLEADER")
e(f"v_lshlrev_b32 v{vT+1}, 3, v{vLane}")
for w in range(4):
    e(f"ds_read_b64 {vr(34+2*w,2)}, v{vT+1} offset:{LDS_O+512*w}")
e("s_waitcnt lgkmcnt(0)")
for i in range(2):
    e(f"v_add_f32 v{34+i}, v{34+i}, v{36+i}")
    e(f"v_add_f32 v{34+i}, v{34+i}, v{38+i}")
    e(f"v_add_f32 v{34+i}, v{34+i}, v{40+i}")
e(f"v_cvt_pk_bf16_f32 v{34}, v{34}, v{35}")
e(f"v_mov_b32 v{35}, s{sNonce}")
e(f"s_lshl_b32 s{sT0}, s2, 10")
e(f"s_add_u32 s{sT0}, s{sT0}, {hex(WS_QB)}")
e(f"buffer_store_dwordx2 {vr(34,2)}, v{vT+1}, {sr(sWS,4)}, s{sT0} offen sc1")
e(f"s_lshl_b32 s{sT0}, s{sH}, 12")
e(f"s_add_u32 s{sT0}, s{sT0}, {hex(WS_QB)}")
lab("B_QPOLL")
for j in range(4):
    e(f"buffer_load_dwordx2 {vr(36+2*j,2)}, v{vT+1}, {sr(sWS,4)}, s{sT0} offen offset:{1024*j} sc1")
e("s_waitcnt vmcnt(0)")
tag_check([37, 39, 41, 43], vT + 2, vT + 3)
e("s_cbranch_vccz B_QDONE")
e(f"s_add_u32 s{sCnt}, s{sCnt}, 1")
spin_recover()
e(f"s_cmp_gt_u32 s{sCnt}, {hex(P.SPIN)}")
e("s_cbranch_scc1 B_QDONE")
e(f"s_sleep {P.SLEEP*4}")
e("s_branch B_QPOLL")
lab("B_QDONE")
if P.BDELAY:
    lab("B_DLY")
    e(f"s_memrealtime s[{sTm}:{sTm+1}]")
    e("s_waitcnt lgkmcnt(0)")
    e(f"s_sub_u32 s{sT0}, s{sTm}, s{sNonce}")
    e(f"s_cmp_ge_u32 s{sT0}, {P.BDELAY}")
    e("s_cbranch_scc1 B_DLYD")
    e("s_sleep 16")
    e("s_branch B_DLY")
    lab("B_DLYD")
e(f"v_lshlrev_b32 v{vT}, 2, v{vLane}")
for j in range(4):
    e(f"ds_write_b32 v{vT}, v{36+2*j} offset:{LDS_Q+256*j}")
e(f"v_mov_b32 v{vT+2}, 0")
e(f"ds_write_b32 v{vT+2}, v{35} offset:{LDS_NONCE}")
B_prefetch()
e("s_waitcnt lgkmcnt(0)")
e("s_branch B_QBAR")
lab("B_NONLEADER")
B_prefetch()
lab("B_QBAR")
e("s_barrier")
e(f"ds_read_b128 {vr(B_vQ,4)}, v{vOffK} offset:{LDS_Q}")
e(f"v_mov_b32 v{vT+2}, 0")
e(f"ds_read_b32 v{vTag}, v{vT+2} offset:{LDS_NONCE}")
vMa, vMb = 62, 63
e(f"v_and_b32 v{vT}, 1, v{vN}")
e(f"v_cmp_eq_u32 vcc, 1, v{vT}")
e(f"v_mov_b32 v{vT+1}, 0xffff")
e(f"v_mov_b32 v{vT+2}, 0xffff0000")
e(f"v_cndmask_b32 v{vT+1}, v{vT+1}, v{vT+2}, vcc")
e(f"v_and_b32 v{vT}, 2, v{vN}")
e(f"v_cmp_eq_u32 vcc, 0, v{vT}")
nop(2)
e(f"v_cndmask_b32 v{vMa}, 0, v{vT+1}, vcc")
e(f"v_cndmask_b32 v{vMb}, v{vT+1}, 0, vcc")
for i in range(12):
    e(f"v_mov_b32 v{vAop+i}, 0")
for i in range(8):
    e(f"v_mov_b32 v{B_vO+i}, 0")
e("s_waitcnt lgkmcnt(0)")
e(f"v_readfirstlane_b32 s{sNonce}, v{vTag}")
nop(2)
lab("B_LOOP")
rareB = []
for b in range(NBf):
    kb = vBuf + 32 * b
    vb = kb + 16
    cm(f"--- B body {b}")
    e(f"s_cmp_ge_u32 s{sOff+b}, {hex(BLIM)}")
    e("s_cbranch_scc1 B_EXIT")
    e(f"s_waitcnt vmcnt({8*NBf-4})")
    for t in range(4):
        e(f"v_mfma_f32_16x16x32_bf16 {vr(B_vS+4*t,4)}, {vr(kb+4*t,4)}, {vr(B_vQ,4)}, 0")
    e(f"s_mov_b32 s{sOff+b}, s{sStat}")
    e(f"s_add_u32 s{sStat}, s{sStat}, 0x4000")
    B_issueK(b)
    nop(2)
    s = vT
    for t in range(4):
        e(f"v_mov_b32_dpp v{s+t}, v{B_vS+4*t} quad_perm:[0,0,0,0] {DPPM}")
        for i in range(1, 4):
            e(f"v_add_f32_dpp v{s+t}, v{B_vS+4*t+i}, v{s+t} quad_perm:[{i},{i},{i},{i}] {DPPM}")
    for t in range(4):
        if P.MIMIC:
            e(f"v_cvt_pk_bf16_f32 v{s+t}, v{s+t}, v{s+t}")
            e(f"v_and_b32 v{s+t}, 0xffff0000, v{s+t}")
            e(f"v_mul_f32 v{s+t}, s{sScale}, v{s+t}")
            e(f"v_cvt_pk_bf16_f32 v{s+t}, v{s+t}, v{s+t}")
            e(f"v_and_b32 v{s+t}, 0xffff0000, v{s+t}")
        else:
            e(f"v_mul_f32 v{s+t}, s{sScale}, v{s+t}")
    e(f"v_max3_f32 v{s+4}, v{s}, v{s+1}, v{s+2}")
    e(f"v_max_f32 v{s+4}, v{s+4}, v{s+3}")
    e(f"v_cmp_gt_f32 vcc, v{s+4}, v{vM}")
    e(f"s_cbranch_vccnz B_RARE{b}")
    lab(f"B_BACK{b}")
    for t in range(4):
        e(f"v_fma_f32 v{s+t}, v{s+t}, s{sLog2e}, -v{vML}")
        e(f"v_exp_f32 v{s+t}, v{s+t}")
    nop(1)
    for t in range(4):
        e(f"v_add_f32 v{vL}, v{vL}, v{s+t}")
        e(f"v_cvt_pk_bf16_f32 v{s+t}, v{s+t}, v{s+t}")
    e(f"s_waitcnt vmcnt({8*NBf-4})")
    for t in range(4):
        sx = vAop + 6 * (t & 1)
        e(f"v_and_b32 v{sx+2}, v{s+t}, v{vMa}")
        e(f"v_and_b32 v{sx+3}, v{s+t}, v{vMb}")
        nop(2)
        e(f"v_mfma_f32_16x16x32_bf16 {vr(B_vO,4)}, {vr(sx+2,4)}, {vr(vb+4*t,4)}, {vr(B_vO,4)}")
        e(f"v_mfma_f32_16x16x32_bf16 {vr(B_vO+4,4)}, {vr(sx,4)}, {vr(vb+4*t,4)}, {vr(B_vO+4,4)}")
    B_issueV(b)
    rareB.append(b)
e("s_branch B_LOOP")
for b in rareB:
    s = vT
    lab(f"B_RARE{b}")
    x = s + 4
    allreduce_rows("v_max_f32", x, s + 5, s + 6)
    e(f"v_max_f32 v{x}, v{x}, v{vM}")
    e(f"v_mul_f32 v{s+5}, s{sLog2e}, v{x}")
    e(f"v_sub_f32 v{s+6}, v{vML}, v{s+5}")
    e(f"v_exp_f32 v{s+6}, v{s+6}")
    e(f"v_mov_b32 v{vM}, v{x}")
    e(f"v_mov_b32 v{vML}, v{s+5}")
    e(f"v_lshlrev_b32 v{s+5}, 4, v{vG}")
    e(f"ds_bpermute_b32 v{s+4}, v{s+5}, v{s+6}")
    e(f"v_mul_f32 v{vL}, v{vL}, v{s+6}")
    e("s_waitcnt lgkmcnt(0)")
    nop(8)
    for i in range(8):
        e(f"v_mul_f32 v{B_vO+i}, v{B_vO+i}, v{s+4}")
    e(f"s_branch B_BACK{b}")
lab("B_EXIT")
e("s_waitcnt vmcnt(0)")
allreduce_rows("v_add_f32", vL, vT, vT + 1)
e(f"v_lshlrev_b32 v{vT}, 5, v{vN}")
e(f"v_lshl_or_b32 v{vT}, v{vG}, 9, v{vT}")
e(f"s_lshl_b32 s{sT0}, s{sWave}, 11")
e(f"v_add_u32 v{vT}, s{sT0}, v{vT}")
e(f"ds_write_b128 v{vT}, {vr(B_vO,4)} offset:{LDS_O}")
e(f"ds_write_b128 v{vT}, {vr(B_vO+4,4)} offset:{LDS_O+16}")
e(f"v_lshrrev_b32 v{vT+1}, 2, v{vN}")
e(f"v_lshlrev_b32 v{vT+1}, 5, v{vT+1}")
e(f"s_lshl_b32 s{sT0}, s{sWave}, 3")
e(f"v_add_u32 v{vT+1}, s{sT0}, v{vT+1}")
e(f"v_mov_b32 v{vT+3}, v{vML}")
e(f"v_mov_b32 v{vT+4}, v{vL}")
e(f"ds_write_b64 v{vT+1}, {vr(vT+3,2)} offset:{LDS_ML}")
e("s_waitcnt lgkmcnt(0)")
e("s_barrier")
cm("wave j combines head j")
c0 = 34
e(f"s_lshl_b32 s{sT0}, s{sWave}, 5")
e(f"v_mov_b32 v{vT}, s{sT0}")
e(f"ds_read_b128 {vr(c0,4)}, v{vT} offset:{LDS_ML}")
e(f"ds_read_b128 {vr(c0+4,4)}, v{vT} offset:{LDS_ML+16}")
e(f"v_lshlrev_b32 v{vT+1}, 3, v{vLane}")
e(f"s_lshl_b32 s{sT0}, s{sWave}, 9")
e(f"v_add_u32 v{vT+1}, s{sT0}, v{vT+1}")
for w in range(4):
    e(f"ds_read_b64 {vr(c0+8+2*w,2)}, v{vT+1} offset:{LDS_O+2048*w}")
e("s_waitcnt lgkmcnt(0)")
e(f"v_max3_f32 v{vML}, v{c0}, v{c0+2}, v{c0+4}")
e(f"v_max_f32 v{vML}, v{vML}, v{c0+6}")
for w in range(4):
    e(f"v_sub_f32 v{c0+2*w}, v{c0+2*w}, v{vML}")
    e(f"v_exp_f32 v{c0+2*w}, v{c0+2*w}")
nop(1)
pb = c0 + 16
e(f"v_mul_f32 v{vL}, v{c0}, v{c0+1}")
e(f"v_mul_f32 v{pb}, v{c0}, v{c0+8}")
e(f"v_mul_f32 v{pb+2}, v{c0}, v{c0+9}")
for w in range(1, 4):
    e(f"v_fmac_f32 v{vL}, v{c0+2*w}, v{c0+2*w+1}")
    e(f"v_fmac_f32 v{pb}, v{c0+2*w}, v{c0+8+2*w}")
    e(f"v_fmac_f32 v{pb+2}, v{c0+2*w}, v{c0+9+2*w}")
e(f"v_mov_b32 v{pb+1}, s{sNonce}")
e(f"v_mov_b32 v{pb+3}, s{sNonce}")
e(f"v_mov_b32 v{pb+4}, v{vML}")
e(f"v_mov_b32 v{pb+5}, s{sNonce}")
e(f"v_mov_b32 v{pb+6}, v{vL}")
e(f"v_mov_b32 v{pb+7}, s{sNonce}")
e(f"s_lshl_b32 s{sT0}, s{sH}, 2")
e(f"s_add_u32 s{sT0}, s{sT0}, s{sWave}")
e(f"s_lshl_b32 s{sT0}, s{sT0}, 2")
e(f"s_add_u32 s{sT0}, s{sT0}, s{sS}")
e(f"s_lshl_b32 s{sT0}, s{sT0}, 11")
e(f"s_add_u32 s{sT0}, s{sT0}, {hex(WS_PB)}")
e(f"v_mov_b32 v{vT+3}, {hex(OOB)}")
e(f"v_cmp_eq_u32 vcc, 0, v{vLane}")
e(f"buffer_store_dwordx4 {vr(pb,4)}, v{vOffV}, {sr(sWS,4)}, s{sT0} offen sc1")
nop(1)
e(f"v_cndmask_b32 v{vT+2}, v{vT+3}, 0, vcc")
e(f"buffer_store_dwordx4 {vr(pb+4,4)}, v{vT+2}, {sr(sWS,4)}, s{sT0} offen offset:1024 sc1")
e(f"s_cmp_lg_u32 s{sWave}, 0")
e("s_cbranch_scc1 B_OBAR")
go = 22
gm = 38
e(f"s_lshl_b32 s{sT0}, s2, 13")
e(f"s_add_u32 s{sT0}, s{sT0}, {hex(WS_PB)}")
e(f"v_and_b32 v{vT}, 3, v{vLane}")
e(f"v_lshlrev_b32 v{vT}, 11, v{vT}")
e(f"v_add_u32 v{vT+1}, 4096, v{vOffV}")
nop(2)
lab("B_PPOLL")
for p in range(4):
    vo = vOffV if p < 2 else vT + 1
    e(f"buffer_load_dwordx4 {vr(go+4*p,4)}, v{vo}, {sr(sWS,4)}, s{sT0} offen offset:{2048*(p%2)} sc1")
e(f"buffer_load_dwordx4 {vr(gm,4)}, v{vT}, {sr(sWS,4)}, s{sT0} offen offset:1024 sc1")
e("s_waitcnt vmcnt(0)")
tag_check([go + 2 * i + 1 for i in range(8)] + [gm + 1, gm + 3], vT + 2, vT + 3)
e("s_cbranch_vccz B_PDONE")
e(f"s_add_u32 s{sCnt}, s{sCnt}, 1")
spin_recover()
e(f"s_cmp_gt_u32 s{sCnt}, {hex(P.SPIN)}")
e("s_cbranch_scc1 B_PDONE")
e(f"s_sleep {P.SLEEP*4}")
e("s_branch B_PPOLL")
lab("B_PDONE")
e(f"v_mov_b32 v{vT+2}, v{gm}")
ror_reduce("v_max_f32", vT + 2, [1, 2])
e(f"v_sub_f32 v{vT+3}, v{gm}, v{vT+2}")
e(f"v_exp_f32 v{vT+3}, v{vT+3}")
nop(1)
e(f"v_mul_f32 v{vT+4}, v{vT+3}, v{gm+2}")
ror_reduce("v_add_f32", vT + 4, [1, 2])
e(f"v_rcp_f32 v{vT+4}, v{vT+4}")
e(f"v_mov_b32 v{vT+5}, 0")
e(f"v_mov_b32 v{vT+6}, 0")
for p in range(4):
    e(f"v_fmac_f32_dpp v{vT+5}, v{vT+3}, v{go+4*p} row_newbcast:{p} {DPPM}")
    e(f"v_fmac_f32_dpp v{vT+6}, v{vT+3}, v{go+4*p+2} row_newbcast:{p} {DPPM}")
e(f"v_mul_f32 v{vT+5}, v{vT+5}, v{vT+4}")
e(f"v_mul_f32 v{vT+6}, v{vT+6}, v{vT+4}")
e(f"v_cvt_pk_bf16_f32 v{vT+5}, v{vT+5}, v{vT+6}")
e(f"v_lshlrev_b32 v{vT}, 2, v{vLane}")
e(f"ds_write_b32 v{vT}, v{vT+5} offset:{LDS_OB}")
e("s_waitcnt lgkmcnt(0)")
lab("B_OBAR")
e("s_barrier")
e(f"v_lshrrev_b32 v{vT}, 2, v{vN}")
e(f"v_lshlrev_b32 v{vT}, 4, v{vT}")
e(f"v_lshl_or_b32 v{vT}, v{vG}, 6, v{vT}")
e(f"ds_read_b128 {vr(34,4)}, v{vT} offset:{LDS_OB}")
srd(sW, pBwo, 4096 * 1024)
e(f"v_lshlrev_b32 v{vT+1}, 15, v{vG}")
e(f"v_lshl_or_b32 v{vT+1}, v{vN}, 4, v{vT+1}")
e(f"s_lshl_b32 s{sT0}, s2, 17")
e(f"s_lshl_b32 s{sT1}, s{sWave}, 8")
e(f"s_add_u32 s{sT0}, s{sT0}, s{sT1}")
e("s_waitcnt vmcnt(0)")
gen = rowsum128(34, 10, "BW")
next(gen)
e("s_waitcnt lgkmcnt(0)")
for _ in gen: pass
e(f"v_lshlrev_b32 v{vT}, 6, v{vN}")
e(f"v_lshl_or_b32 v{vT}, v{vG}, 5, v{vT}")
e(f"v_mov_b32 v{vT+1}, {hex(OOB)}")
e(f"v_cmp_gt_u32 vcc, 32, v{vLane}")
e(f"s_lshl_b32 s{sT0}, s2, 12")
e(f"s_lshl_b32 s{sT1}, s{sWave}, 10")
e(f"s_add_u32 s{sT0}, s{sT0}, s{sT1}")
e(f"s_add_u32 s{sT0}, s{sT0}, {hex(WS_YB)}")
e(f"v_cndmask_b32 v{vT}, v{vT+1}, v{vT}, vcc")
nop(8)
yb = 34
for i in range(4):
    e(f"v_mov_b32 v{yb+2*i}, v{B_vO+i}")
    e(f"v_mov_b32 v{yb+2*i+1}, s{sNonce}")
e(f"buffer_store_dwordx4 {vr(yb,4)}, v{vT}, {sr(sWS,4)}, s{sT0} offen sc1")
e(f"buffer_store_dwordx4 {vr(yb+4,4)}, v{vT}, {sr(sWS,4)}, s{sT0} offen offset:16 sc1")
e(f"s_cmp_lg_u32 s{sWave}, 0")
e("s_cbranch_scc1 END")
e(f"v_and_b32 v{vT}, 7, v{vLane}")
e(f"v_lshlrev_b32 v{vT}, 4, v{vT}")
e(f"v_lshrrev_b32 v{vT+1}, 3, v{vLane}")
e(f"v_lshl_or_b32 v{vT}, v{vT+1}, 12, v{vT}")
e(f"s_lshl_b32 s{sT0}, s2, 7")
e(f"s_add_u32 s{sT0}, s{sT0}, {hex(WS_YB)}")
gy = 44
lab("B_YPOLL")
e(f"s_mov_b32 s{sT1}, s{sT0}")
for i in range(4):
    e(f"buffer_load_dwordx4 {vr(gy+4*i,4)}, v{vT}, {sr(sWS,4)}, s{sT1} offen sc1")
    if i < 3:
        e(f"s_add_u32 s{sT1}, s{sT1}, 0x8000")
e("s_waitcnt vmcnt(0)")
tag_check([gy + 2 * i + 1 for i in range(8)], vT + 2, vT + 3)
e("s_cbranch_vccz B_YDONE")
e(f"s_add_u32 s{sCnt}, s{sCnt}, 1")
spin_recover()
e(f"s_cmp_gt_u32 s{sCnt}, {hex(P.SPIN)}")
e("s_cbranch_scc1 B_YDONE")
e(f"s_sleep {P.SLEEP*4}")
e("s_branch B_YPOLL")
lab("B_YDONE")
for c in (0, 2):
    e(f"v_add_f32 v{gy+c}, v{gy+c}, v{gy+4+c}")
    e(f"v_add_f32 v{gy+c}, v{gy+c}, v{gy+8+c}")
    e(f"v_add_f32 v{gy+c}, v{gy+c}, v{gy+12+c}")
ror_reduce("v_add_f32", gy, [8])
ror_reduce("v_add_f32", gy + 2, [8])
allreduce_rows("v_add_f32", gy, vT + 2, vT + 3)
allreduce_rows("v_add_f32", gy + 2, vT + 2, vT + 3)
e(f"v_cvt_pk_bf16_f32 v{gy}, v{gy}, v{gy+2}")
srd(sW, pOut, 2048)
e(f"v_mov_b32 v{vT+3}, {hex(OOB)}")
e(f"v_cmp_gt_u32 vcc, 8, v{vLane}")
e(f"v_lshlrev_b32 v{vT+2}, 2, v{vLane}")
e(f"s_lshl_b32 s{sT0}, s2, 5")
e(f"s_add_u32 s{sT0}, s{sT0}, 1024")
e(f"v_cndmask_b32 v{vT+2}, v{vT+3}, v{vT+2}, vcc")
e(f"buffer_store_dword v{gy}, v{vT+2}, {sr(sW,4)}, s{sT0} offen")
e("s_cmp_lg_u32 s2, 0")
e("s_cbranch_scc1 END")
e(f"v_mov_b32 v{vT+3}, s{sNonce}")
e(f"buffer_store_dword v{vT+3}, v{vCtr}, {sr(sX,4)}, 0 offen offset:4 sc1")
lab("END")
e("s_endpgm")

nvgpr = max(vBuf + 32 * max(P.NBUF, P.NBUFB, 2, P.NPRO), vWo + 64)
out += "\n".join(L) + "\n"
out += f""".section .rodata,"a"
.p2align 6
.amdhsa_kernel {KNAME}
  .amdhsa_next_free_vgpr {nvgpr}
  .amdhsa_next_free_sgpr 102
  .amdhsa_accum_offset {nvgpr}
  .amdhsa_group_segment_fixed_size 0
  .amdhsa_kernarg_size 104
  .amdhsa_user_sgpr_count 2
  .amdhsa_user_sgpr_kernarg_segment_ptr 1
  .amdhsa_system_sgpr_workgroup_id_x 1
.end_amdhsa_kernel
"""
open(sys.argv[1], "w").write(out)
print("wrote", sys.argv[1], "lines", len(L), "vgpr", nvgpr)
```
